```python
import torch

def _softmax(x, axis=-1):
    return torch.softmax(x, dim=axis)
def _gelu(x):
    return torch.nn.functional.gelu(x, approximate="tanh")
def _silu(x):
    return torch.nn.functional.silu(x)
def _sigmoid(x):
    return torch.sigmoid(x)
def _layernorm(x, axis=-1, eps=1e-5):
    m = x.mean(dim=axis, keepdim=True)
    v = x.var(dim=axis, keepdim=True, unbiased=False)
    return (x - m) / torch.sqrt(v + eps)
def _scatter_add(tgt, idx, src, axis=0):
    return tgt.clone().index_add_(axis, idx, src)
def _segment_sum(src, seg, n):
    out = torch.zeros((n,) + src.shape[1:], dtype=src.dtype)
    return out.index_add_(0, seg, src)
def _pad(x, pw):
    flat = tuple(v for pair in reversed(pw) for v in pair)
    return torch.nn.functional.pad(x, flat)

kernel_name = 'sequential_preLN__sliding_block_cached__mixer_channel_mlp__decode'

def setup_inputs():

    _w = (lambda a: (lambda t: t.to(torch.bfloat16) if t.is_floating_point() else t)(torch.as_tensor(a)))
    def _A_setup():
        B, Sq, D = 1, 1, 576
        Hq, Hkv, Sk, Dh = 32, 16, 65536, 128
        assert Hq % Hkv == 0, (Hq, Hkv)
        return {
            "x": _w((lambda *s: torch.randn(*s, dtype=torch.bfloat16) * 0.05)(B, Sq, D)),
            "k_cache": _w((lambda *s: torch.randn(*s, dtype=torch.bfloat16) * 3.2)(B, Hkv, Sk, Dh)),
            "v_cache": _w((lambda *s: torch.randn(*s, dtype=torch.bfloat16) * 0.4)(B, Hkv, Sk, Dh)),
            "wq": _w((lambda *s: torch.randn(*s, dtype=torch.bfloat16) * 3.2)(D, Hq * Dh) * (D ** -0.5)),
            "wo": _w((lambda *s: torch.randn(*s, dtype=torch.bfloat16) * 0.4)(Hq * Dh, D) * ((Hq * Dh) ** -0.5)),
        }
    _A_in = _A_setup()

    def _B_setup():
        B, S, D, F = 1, 1, 576, 4608
        return {
            "x": _w((lambda *s: torch.randn(*s, dtype=torch.bfloat16) * 0.05)(B, S, D)),
            "w1": _w((lambda *s: torch.randn(*s, dtype=torch.bfloat16) * 3.2)(D, F) * (D ** -0.5)),
            "b1": _w((lambda *s: torch.randn(*s, dtype=torch.bfloat16) * 3.2)(F)),
            "w2": _w((lambda *s: torch.randn(*s, dtype=torch.bfloat16) * 0.1)(F, D) * (F ** -0.5)),
            "b2": _w((lambda *s: torch.randn(*s, dtype=torch.bfloat16) * 0.1)(D)),
        }
    _B_in = _B_setup()

    return {
        "A_x": _A_in["x"],
        "A_k_cache": _A_in["k_cache"],
        "A_v_cache": _A_in["v_cache"],
        "A_wq": _A_in["wq"],
        "A_wo": _A_in["wo"],
        "B_x": _B_in["x"],
        "B_w1": _B_in["w1"],
        "B_b1": _B_in["b1"],
        "B_w2": _B_in["w2"],
        "B_b2": _B_in["b2"],
    }

def reference(A_x, A_k_cache, A_v_cache, A_wq, A_wo, B_x, B_w1, B_b1, B_w2, B_b2):
    def _A_ref(x, k_cache, v_cache, wq, wo):
        B, Sq, D = x.shape
        Hq, Dh = 32, 128
        Hkv, Sk = k_cache.shape[1], k_cache.shape[2]
        W = min(4096, max(256, Sk // 4))
        rep = Hq // Hkv
        q = (lambda x, *d: x.permute(*d))((x @ wq).reshape(B, Sq, Hq, Dh), 0, 2, 1, 3)
        k = (lambda x, n, axis: torch.repeat_interleave(x, n, dim=axis))(k_cache[:, :, Sk - W:, :], rep, axis=1)
        v = (lambda x, n, axis: torch.repeat_interleave(x, n, dim=axis))(v_cache[:, :, Sk - W:, :], rep, axis=1)
        scores = torch.einsum("bhqd,bhkd->bhqk", q, k) * (Dh ** -0.5)
        p = _softmax(scores, axis=-1)
        o = torch.einsum("bhqk,bhkd->bhqd", p, v)
        return (lambda x, *d: x.permute(*d))(o, 0, 2, 1, 3).reshape(B, Sq, Hq * Dh) @ wo

    def _B_ref(x, w1, b1, w2, b2):
        y = _layernorm(x, axis=-1)
        h = _gelu(torch.einsum("bsd,df->bsf", y, w1) + b1)
        return torch.einsum("bsf,fd->bsd", h, w2) + b2

    x = A_x
    h = x + _A_ref(_layernorm(x, axis=-1), A_k_cache, A_v_cache, A_wq, A_wo)
    h2 = h + _B_ref(_layernorm(h, axis=-1), B_w1, B_b1, B_w2, B_b2)
    return h2
```

```python
import re

_REG = re.compile(r'^(-|\|)?([vs])(\d+)\|?$|^(-)?([vs])\[(\d+):(\d+)\]$')

TRANS = ('v_exp_f32', 'v_rcp_f32', 'v_sqrt_f32', 'v_rsq_f32', 'v_log_f32')


def regs_of(op):
    op = op.strip()
    if op in ('vcc', 'vcc_lo', 'vcc_hi'):
        return {('vcc', 0)}
    if op in ('exec', 'exec_lo', 'exec_hi'):
        return {('exec', 0)}
    m = _REG.match(op)
    if not m:
        return set()
    if m.group(2):
        return {(m.group(2), int(m.group(3)))}
    return {(m.group(5), i) for i in range(int(m.group(6)), int(m.group(7)) + 1)}


class Ins:
    __slots__ = ('text', 'op', 'kind', 'w', 'r', 'dpp', 'srcc', 'ab', 'wide', 'ws', 'lanesel')

    def __init__(self, text):
        self.text = text
        t = text.strip()
        sp = t.split(None, 1)
        self.op = sp[0]
        rest = sp[1] if len(sp) > 1 else ''
        parts = [p.strip() for p in re.split(r',(?![^\[]*\])', rest)] if rest else []
        ops = []
        mods = ''
        for i, p in enumerate(parts):
            q = p.split(None, 1)
            ops.append(q[0] if q else '')
            if len(q) > 1:
                mods += ' ' + q[1]
        op = self.op
        self.w = set()
        self.r = set()
        self.dpp = ('_dpp' in op) or any(k in mods for k in ('quad_perm', 'row_', 'wave_'))
        self.srcc = set()
        self.ab = set()
        self.wide = False
        self.ws = 1
        self.lanesel = set()
        R = [regs_of(o) for o in ops]
        if op == 's_nop':
            self.kind = 'nop'
            self.ws = int(ops[0]) + 1
        elif op.startswith('v_mfma'):
            self.kind = 'mfma'
            self.w = R[0]
            self.ab = R[1] | R[2]
            self.srcc = R[3]
            self.r = self.ab | self.srcc
        elif op.startswith('v_'):
            self.kind = 'valu'
            if op.startswith('v_permlane') and 'swap' in op:
                self.w = R[0] | R[1]
                self.r = R[0] | R[1]
            elif op.startswith('v_cmp'):
                self.w = R[0]
                for x in R[1:]:
                    self.r |= x
            elif op.startswith('v_readlane'):
                self.w = R[0]
                self.r = R[1] | R[2]
                self.lanesel = R[2]
            elif op.startswith('v_add_co') or op.startswith('v_sub_co') or op.startswith('v_addc_co'):
                self.w = R[0] | R[1]
                for x in R[2:]:
                    self.r |= x
            else:
                self.w = R[0]
                for x in R[1:]:
                    self.r |= x
                if op.startswith('v_fmac') or op.startswith('v_dot2c') or self.dpp:
                    self.r |= R[0]
                if op.startswith('v_cndmask') and len(ops) == 3:
                    self.r |= {('vcc', 0)}
                if op.startswith('v_dot2'):
                    self.srcc = R[3] if len(R) > 3 else R[0]
                    self.ab = R[1] | R[2]
        elif op.startswith('global_load') or op.startswith('buffer_load'):
            self.kind = 'vmem'
            self.w = R[0]
            for x in R[1:]:
                self.r |= x
        elif op.startswith('global_store') or op.startswith('buffer_store') or op.startswith('global_atomic'):
            self.kind = 'vmem'
            for x in R:
                self.r |= x
            if 'x4' in op or 'x3' in op:
                self.wide = True
                self.srcc = R[1]
        elif op.startswith('ds_read'):
            self.kind = 'ds'
            self.w = R[0]
            for x in R[1:]:
                self.r |= x
        elif op.startswith('ds_'):
            self.kind = 'ds'
            for x in R:
                self.r |= x
            if 'b128' in op or 'b96' in op:
                self.wide = True
                self.srcc = R[1]
        elif op.startswith('s_'):
            self.kind = 'salu'
            if op.startswith('s_cmp') or op.startswith('s_cbranch') or op in ('s_barrier', 's_waitcnt', 's_endpgm', 's_branch', 's_setprio'):
                for x in R:
                    self.r |= x
            else:
                if R:
                    self.w = R[0]
                for x in R[1:]:
                    self.r |= x
        else:
            raise ValueError('unknown instruction ' + text)


def need(p, c):
    n = 0
    vw = {x for x in p.w if x[0] == 'v'}
    sw = {x for x in p.w if x[0] != 'v'}
    if p.kind == 'valu':
        isdot = p.op.startswith('v_dot')
        if vw & c.r or (isdot and vw & c.w):
            if c.kind == 'valu' and c.dpp:
                n = max(n, 2)
            if c.op.startswith('v_permlane'):
                n = max(n, 2)
            if c.op.startswith('v_readlane') or c.op.startswith('v_readfirstlane'):
                n = max(n, 1)
            if p.op in TRANS:
                n = max(n, 1)
            if c.kind == 'mfma':
                n = max(n, 2)
            if isdot:
                if c.op == p.op and not (vw & c.ab):
                    pass
                else:
                    n = max(n, 3)
        if sw & c.r:
            if c.kind in ('valu', 'mfma'):
                n = max(n, 2)
            if c.kind == 'vmem':
                n = max(n, 5)
            if sw & c.lanesel:
                n = max(n, 4)
            if c.kind == 'salu':
                n = max(n, 1)
    if p.kind == 'mfma':
        if c.kind == 'mfma':
            if vw & c.ab:
                n = max(n, 8)
            if vw & c.srcc and c.srcc != vw:
                n = max(n, 6)
        elif (vw & c.r) or (vw & c.w):
            n = max(n, 8)
        if c.kind == 'valu' and (p.srcc & c.w):
            n = max(n, 3)
    if p.wide and (p.srcc & c.w):
        n = max(n, 2 if c.kind in ('valu', 'mfma') else 1)
    return n


class Em:
    def __init__(self):
        self.lines = []
        self.hist = []
        self.vm = []
        self.nins = 0

    def raw(self, text):
        self.lines.append(text)

    def c(self, text):
        self.lines.append('    ; ' + text)

    def label(self, name):
        self.lines.append(name + ':')

    def i(self, text, tok=None):
        ins = Ins(text)
        dist = 0
        pad = 0
        for p in reversed(self.hist):
            n = need(p, ins)
            if n > dist:
                pad = max(pad, n - dist)
            dist += p.ws
            if dist >= 12:
                break
        if pad > 0:
            nop = Ins('s_nop %d' % (pad - 1))
            self.lines.append('    ' + nop.text)
            self.hist.append(nop)
            self.nins += 1
        self.lines.append('    ' + text)
        self.hist.append(ins)
        self.nins += 1
        if len(self.hist) > 16:
            self.hist = self.hist[-16:]
        if ins.kind == 'vmem':
            self.vm.append(tok)
        return ins

    def __call__(self, text, tok=None):
        return self.i(text, tok)

    def wait_vm(self, tok):
        if tok not in self.vm:
            return
        idx = max(i for i, t in enumerate(self.vm) if t == tok)
        n = len(self.vm) - 1 - idx
        assert n <= 63
        self.i('s_waitcnt vmcnt(%d)' % n)
        self.vm = self.vm[idx + 1:]

    def wait_vm0(self):
        self.i('s_waitcnt vmcnt(0)')
        self.vm = []

    def wait_lgkm(self, n=0):
        self.i('s_waitcnt lgkmcnt(%d)' % n)

    def snap(self):
        return (list(self.hist), list(self.vm))

    def restore(self, s):
        self.hist = list(s[0])
        self.vm = list(s[1])

    def text(self):
        return '\n'.join(self.lines) + '\n'
```

```python
import sys, struct, argparse
sys.path.insert(0, 'dev')
from emit import Em, Ins, need

NAME = 'sequential_preLN__sliding_block_cached__mixer_channel_mlp__decode'


def f32(x):
    return '0x%08x' % struct.unpack('<I', struct.pack('<f', x))[0]


WS_QP = 0x10000
WS_ML = 0x30000
WS_OP = 0x40000
WS_HP = 0x80000
WS_FP = 0x90000
WS_TS = 0x100000

L_QPART = 0x0000
L_QL = 0x1200
L_MX = 0x1400
L_LP = 0x1500
L_F = 0x1600
L_ST1 = 0x1700
L_ST2 = 0x1900
L_H1 = 0x1B00
L_OPART = 0x2000
LDS_SIZE = 0x4000

LOG2E = 1.4426950408889634
SCALE = 128 ** -0.5

DPP = 'row_mask:0xf bank_mask:0xf'
X1 = 'quad_perm:[1,0,3,2] ' + DPP
X2 = 'quad_perm:[2,3,0,1] ' + DPP
HM = 'row_half_mirror ' + DPP
MI = 'row_mirror ' + DPP


def ROR(n):
    return 'row_ror:%d %s' % (n, DPP)


def vr(a, n=4):
    return 'v[%d:%d]' % (a, a + n - 1)


def sr(a, n=2):
    return 's[%d:%d]' % (a, a + n - 1)


sX, sK, sV, sWQ, sWO, sW1, sB1, sW2, sB2, sOUT, sDBG, sWS = 4, 6, 8, 10, 12, 16, 18, 20, 22, 24, 26, 28
sW = 3
sT = 30
sT0 = 31
sLOG2E = 35
sONES = 36
sG, sS, sIDX, sXCD, sID = 39, 40, 41, 42, 43
sKB, sVB, sQ0, sQ1 = 44, 46, 48, 50
sA, sB = 52, 54
sVALID = 56
sSPIN = 58
sTMP = 59
sTS = 64
sGP, sC = 96, 97
sL8 = 98

vL = 1
vM = 2
vKV = 6
vDQ = 7
vD = 8
vT = 12
vKt = 16
vVt = 48
vW1 = 80
vW2 = 112
vQO, vQX = 144, 148
vSC = 152
vU = 160


class Gen:
    def __init__(self, cfg):
        self.cfg = cfg
        self.e = Em()
        self.nts = 0

    def ts(self, k):
        if self.cfg.diag:
            self.e('s_memrealtime %s' % sr(sTS + 2 * k))

    def ts_store(self, nslots=16):
        e = self.e
        if not self.cfg.diag:
            return
        e('s_waitcnt lgkmcnt(0)')
        e('s_mul_i32 s59, s2, 9')
        e('s_add_u32 s59, s59, s%d' % sW)
        e('s_lshl_b32 s59, s59, 7')
        e('s_add_u32 s59, s59, 0x%x' % WS_TS)
        e('s_mov_b64 exec, 1')
        e('v_mov_b32 v0, s59')
        for k in range(0, nslots, 4):
            for j in range(4):
                e('v_mov_b32 v%d, s%d' % (vU + j, sTS + 2 * (k + j)))
            e('global_store_dwordx4 v0, %s, %s offset:%d' % (vr(vU), sr(sWS), 4 * k))
            e('s_nop 1')
        e('s_mov_b64 exec, -1')

    def pad_needed(self, text):
        ins = Ins(text)
        dist = 0
        pad = 0
        for p in reversed(self.e.hist):
            n = need(p, ins)
            if n > dist:
                pad = max(pad, n - dist)
            dist += p.ws
            if dist >= 12:
                break
        return pad

    def emit_item(self, it):
        if isinstance(it, str):
            self.e(it)
        elif it[0] == 'wait':
            self.e.wait_vm(it[1])
        elif it[0] == 'load':
            self.e(it[1], it[2])

    def weave(self, *streams):
        streams = [list(s) for s in streams if s]
        while any(streams):
            best = None
            for k, s in enumerate(streams):
                if not s:
                    continue
                it = s[0]
                if isinstance(it, str):
                    p = self.pad_needed(it)
                elif it[0] == 'load':
                    p = self.pad_needed(it[1])
                else:
                    p = 0
                if best is None or p < best[0]:
                    best = (p, k)
                if p == 0:
                    break
            self.emit_item(streams[best[1]].pop(0))

    def barrier(self):
        self.e('s_waitcnt lgkmcnt(0)')
        self.e('s_barrier')

    def add64(self, dst, base, off):
        self.e('s_add_u32 s%d, s%d, %s' % (dst, base, off))
        self.e('s_addc_u32 s%d, s%d, 0' % (dst + 1, base + 1))

    def rnd(self, d, s):
        return 'v_cvt_pk_bf16_f32 v%d, 0, v%d' % (d, s)

    def ln_scalars(self, S, Q, inv, m, sd, r, t):
        return [
            'v_mul_f32 v%d, %s, v%d' % (m, S, inv),
            'v_mul_f32 v%d, %s, v%d' % (t, Q, inv),
            'v_fma_f32 v%d, -v%d, v%d, v%d' % (t, m, m, t),
            self.rnd(m, m),
            self.rnd(t, t),
            'v_add_f32 v%d, %s, v%d' % (t, f32(1e-5), t),
            self.rnd(t, t),
            'v_sqrt_f32 v%d, v%d' % (sd, t),
            self.rnd(sd, sd),
            'v_rcp_f32 v%d, v%d' % (r, sd),
        ]

    def ln_apply(self, x, m, sd, r, t):
        return [
            'v_sub_f32 v%d, v%d, v%d' % (x, x, m),
            self.rnd(x, x),
            'v_mul_f32 v%d, v%d, v%d' % (t, x, r),
            'v_fma_f32 v%d, -v%d, v%d, v%d' % (x, t, sd, x),
            'v_fma_f32 v%d, v%d, v%d, v%d' % (x, x, r, t),
        ]

    def spin_begin(self, name):
        self.e('s_movk_i32 s%d, 0x%x' % (sSPIN, self.cfg.spin))
        self.e.label(name)

    def spin_end(self, name, acc, bytemask=True):
        e = self.e
        if bytemask:
            e('v_and_b32 v%d, 0xff, v%d' % (acc, acc))
        e('v_cmp_ne_u32 vcc, 0, v%d' % acc)
        e('s_sub_u32 s%d, s%d, 1' % (sSPIN, sSPIN))
        e('s_cbranch_scc1 %s_x' % name)
        e('s_cbranch_vccnz %s' % name)
        e.label(name + '_x')

    def strip(self, base, n, acc):
        e = self.e
        regs = []
        for gi in range(n):
            for i in range(4):
                r = base + 4 * gi + i
                e('v_xor_b32 v%d, s%d, v%d' % (r, sT0 + i, r))
                regs.append(r)
        e('v_or3_b32 v%d, v%d, v%d, v%d' % (acc, regs[0], regs[1], regs[2]))
        k = 3
        while k < len(regs):
            if k + 1 < len(regs):
                e('v_or3_b32 v%d, v%d, v%d, v%d' % (acc, acc, regs[k], regs[k + 1]))
                k += 2
            else:
                e('v_or_b32 v%d, v%d, v%d' % (acc, acc, regs[k]))
                k += 1

    def tag(self, base, vmask):
        for i in range(4):
            self.e('v_and_or_b32 v%d, v%d, v%d, s%d' % (base + i, base + i, vmask, sT0 + i))

    def a_ops_plain(self, dst, src):
        return ['v_and_b32 v%d, v%d, v%d' % (dst + p, src, vM + p) for p in range(4)]

    def a_ops_rot(self, dst, src, j):
        out = []
        for p in range(4):
            n = (2 * (p - j) * self.cfg.rorsign) % 16
            if n == 0:
                out.append('v_and_b32 v%d, v%d, v%d' % (dst + p, src, vM + p))
            else:
                out.append('v_and_b32_dpp v%d, v%d, v%d %s' % (dst + p, src, vM + p, ROR(n)))
        return out

    def mfma(self, d, a, b, first):
        return 'v_mfma_f32_16x16x32_bf16 %s, %s, %s, %s' % (vr(d), vr(a), vr(b), '0' if first else vr(d))

    def gemv8(self, ya, yb, wbase):
        e = self.e
        A = lambda jj: self.a_ops_rot(vKt + 4 * jj, yb if (jj & 1) else ya, jj >> 1)
        for x in A(0):
            e(x)
        for jj in range(8):
            if jj + 1 < 8:
                for x in A(jj + 1):
                    e(x)
            e(self.mfma(vD, vKt + 4 * jj, wbase + 4 * jj, jj == 0))

    def kload(self, t):
        return ('load', 'global_load_dwordx4 %s, v%d, %s offset:%d nt' % (vr(vKt + 4 * t), vKV, sr(sKB), 256 * t), 'K%d' % t)

    def vload(self, t):
        return ('load', 'global_load_dwordx4 %s, v%d, %s offset:%d nt' % (vr(vVt + 4 * t), vKV, sr(sVB), 256 * t), 'V%d' % t)

    def build(self):
        e = self.e
        cfg = self.cfg
        K = NAME + '_kernel'
        e.raw('; @launch grid=(256,1,1) block=(576,1,1) lds=%d' % LDS_SIZE)
        e.raw('.amdgcn_target "amdgcn-amd-amdhsa--gfx950"')
        e.raw('.text')
        e.raw('.globl %s' % K)
        e.raw('.p2align 8')
        e.raw('.type %s,@function' % K)
        e.label(K)
        e('s_cmp_ge_u32 s2, 0x100')
        e('s_cbranch_scc1 L_end')
        e('s_load_dwordx16 s[4:19], s[0:1], 0')
        e('s_load_dwordx8 s[20:27], s[0:1], 64')
        e('s_load_dwordx2 s[28:29], s[0:1], 96')
        self.ts(0)
        e('s_getpc_b64 s[60:61]')
        e.label('L_pc')
        e('v_lshlrev_b32 v12, 7, v0')
        e('v_min_u32 v12, L_end-L_pc, v12')
        e('v_mov_b32 v14, s60')
        e('v_mov_b32 v15, s61')
        e('v_add_co_u32 v14, vcc, v14, v12')
        e('v_lshrrev_b32 v13, 6, v0')
        e('v_and_b32 v%d, 63, v0' % vL)
        e('v_addc_co_u32 v15, vcc, 0, v15, vcc')
        e('v_readfirstlane_b32 s%d, v13' % sW)
        e('global_load_dword v%d, v[14:15], off' % (vU + 7), 'PF')
        e('s_and_b32 s%d, s2, 7' % sXCD)
        e('s_lshr_b32 s%d, s2, 3' % sIDX)
        e('s_lshr_b32 s%d, s%d, 4' % (sG, sIDX))
        e('s_lshl1_add_u32 s%d, s%d, s%d' % (sG, sXCD, sG))
        e('s_and_b32 s%d, s%d, 15' % (sS, sIDX))
        e('s_lshr_b32 s59, s%d, 2' % sS)
        e('s_mul_i32 s59, s59, 144')
        e('s_lshl4_add_u32 s59, s%d, s59' % sW)
        e('s_lshl_b32 s60, s59, 13')
        e('s_lshl_b32 s61, s%d, 9' % sG)
        e('s_add_u32 s60, s60, s61')
        e('s_and_b32 s61, s%d, 3' % sS)
        e('s_lshl_b32 s61, s61, 7')
        e('s_add_u32 s60, s60, s61')
        e('s_lshl_b32 s59, s59, 1')
        e('s_lshl_b32 s61, s%d, 24' % sG)
        e('s_lshl_b32 s62, s%d, 16' % sS)
        e('s_add_u32 s61, s61, s62')
        e('s_lshl_b32 s62, s%d, 13' % sW)
        e('s_add_u32 s61, s61, s62')
        e('s_add_u32 s61, s61, 0x%x' % (61440 * 256))
        vRHO, vC16, vXA, vXB, vXC, vQOFF = 12, 13, 14, 15, vU, vU + 1
        e('v_lshrrev_b32 v%d, 3, v%d' % (vRHO, vL))
        e('v_and_b32 v%d, 7, v%d' % (vC16, vL))
        e('v_lshlrev_b32 v%d, 4, v%d' % (vC16, vC16))
        e('v_lshlrev_b32 v%d, 4, v%d' % (vXA, vL))
        e('v_lshlrev_b32 v%d, 1, v%d' % (vXB, vL))
        e('v_lshl_add_u32 v%d, v%d, 2, s59' % (vXC, vRHO))
        e('v_lshl_add_u32 v%d, v%d, 14, v%d' % (vQOFF, vRHO, vC16))
        e('v_lshrrev_b32 v%d, 4, v%d' % (vKV, vL))
        e('v_and_b32 v%d, 0xf0, v%d' % (vU + 2, vXA))
        e('v_lshl_add_u32 v%d, v%d, 11, v%d' % (vKV, vKV, vU + 2))
        e('s_waitcnt lgkmcnt(0)')
        e('s_load_dword s%d, %s, 0' % (sT, sr(sWS)))
        vX = vW2 + 8
        e('global_load_dwordx4 %s, v%d, %s' % (vr(vX), vXA, sr(sX)), 'XA')
        e('global_load_ushort v%d, v%d, %s offset:1024' % (vX + 4, vXB, sr(sX)), 'XB')
        e('global_load_dword v%d, v%d, %s' % (vX + 5, vXC, sr(sX)), 'XC')
        self.add64(sQ0, sWQ, 's60')
        e('global_load_dwordx4 %s, v%d, %s nt' % (vr(vW2), vQOFF, sr(sQ0)), 'Q0')
        self.add64(sQ1, sQ0, '0x2000')
        e('global_load_dwordx4 %s, v%d, %s nt' % (vr(vW2 + 4), vQOFF, sr(sQ1)), 'Q1')
        self.add64(sKB, sK, 's61')
        self.add64(sVB, sV, 's61')
        e('s_cmp_eq_u32 s%d, 8' % sW)
        e('s_cbranch_scc1 L_w8_pre')
        snapA = e.snap()
        for t in range(cfg.nka):
            self.emit_item(self.kload(t))
        e.label('L_pre_join')
        self.ts(1)
        e('v_and_b32 v%d, 3, v%d' % (vU + 2, vL))
        e('v_lshlrev_b32 v%d, 4, v%d' % (vU + 2, vU + 2))
        e('v_mov_b32 v%d, 0xffff' % (vU + 4))
        e('v_mov_b32 v%d, 0' % (vU + 5))
        e('v_lshlrev_b64 %s, v%d, %s' % (vr(vU + 4, 2), vU + 2, vr(vU + 4, 2)))
        e('v_bfe_i32 v%d, v%d, 2, 1' % (vU + 2, vL))
        e('v_and_b32 v%d, v%d, v%d' % (vM + 2, vU + 4, vU + 2))
        e('v_and_b32 v%d, v%d, v%d' % (vM + 3, vU + 5, vU + 2))
        e('v_xor_b32 v%d, v%d, v%d' % (vM + 0, vU + 4, vM + 2))
        e('v_xor_b32 v%d, v%d, v%d' % (vM + 1, vU + 5, vM + 3))
        e('v_lshrrev_b32 v%d, 5, v%d' % (vDQ, vL))
        e('v_lshlrev_b32 v%d, 8, v%d' % (vDQ, vDQ))
        e('v_lshl_add_u32 v%d, v%d, 1, v%d' % (vDQ, vC16, vDQ))
        e('v_and_b32 v%d, 16, v%d' % (vU + 2, vL))
        e('s_lshl_b32 s59, s%d, 9' % sW)
        e('v_add3_u32 v%d, v%d, v%d, s59' % (vDQ, vDQ, vU + 2))
        e('s_mov_b32 s%d, 0x00ff00ff' % sVALID)
        e('s_mov_b32 s%d, 0xff00ff00' % (sVALID + 1))
        e('s_mov_b32 s%d, 0x01010101' % sL8)
        e('s_mov_b32 s%d, 0x01010101' % (sL8 + 1))
        e('s_mov_b32 s%d, %s' % (sLOG2E, f32(LOG2E)))
        e('s_mov_b32 s%d, 0x3f803f80' % sONES)
        vINV = vU + 6
        e('v_mov_b32 v%d, %s' % (vINV, f32(1.0 / 576)))
        e.wait_vm('XB')
        vS, vQ = vU + 2, vU + 3
        for k in range(5):
            e('v_dot2_f32_bf16 v%d, v%d, s%d, %s' % (vS, vX + k, sONES, '0' if k == 0 else 'v%d' % vS))
            e('v_dot2_f32_bf16 v%d, v%d, v%d, %s' % (vQ, vX + k, vX + k, '0' if k == 0 else 'v%d' % vQ))
        for d in (X1, X2, HM, MI):
            e('v_add_f32_dpp v%d, v%d, v%d %s' % (vS, vS, vS, d))
            e('v_add_f32_dpp v%d, v%d, v%d %s' % (vQ, vQ, vQ, d))
        for d in ('row_bcast:15 row_mask:0xa bank_mask:0xf', 'row_bcast:31 row_mask:0xc bank_mask:0xf'):
            e('v_add_f32_dpp v%d, v%d, v%d %s' % (vS, vS, vS, d))
            e('v_add_f32_dpp v%d, v%d, v%d %s' % (vQ, vQ, vQ, d))
        e('v_readlane_b32 s59, v%d, 63' % vS)
        e('v_readlane_b32 s60, v%d, 63' % vQ)
        e.wait_vm('XC')
        y0, y1 = vX, vX + 1
        e('v_lshlrev_b32 v%d, 16, v%d' % (y0, vX + 5))
        e('v_and_b32 v%d, 0xffff0000, v%d' % (y1, vX + 5))
        m, sd, r, t = vU + 2, vU + 3, vU + 4, vU + 5
        for x in self.ln_scalars('s59', 's60', vINV, m, sd, r, t):
            e(x)
        self.weave(self.ln_apply(y0, m, sd, r, vX + 2), self.ln_apply(y1, m, sd, r, vX + 3))
        e('v_cvt_pk_bf16_f32 v%d, v%d, v%d' % (y0, y0, y0))
        e('v_cvt_pk_bf16_f32 v%d, v%d, v%d' % (y1, y1, y1))
        A0, A1 = vT, vX + 4
        for x in self.a_ops_plain(A0, y0):
            e(x)
        for x in self.a_ops_plain(A1, y1):
            e(x)
        e.wait_vm('Q0')
        e(self.mfma(vD, A0, vW2, True))
        e.wait_vm('Q1')
        e(self.mfma(vD, A1, vW2 + 4, False))
        e('s_waitcnt lgkmcnt(0)')
        e('s_add_u32 s%d, s%d, 0x01010101' % (sT, sT))
        e('s_and_b32 s%d, s%d, 0xff' % (sT0, sT))
        e('s_bfe_u32 s%d, s%d, 0x80008' % (sT0 + 1, sT))
        e('s_bfe_u32 s%d, s%d, 0x80010' % (sT0 + 2, sT))
        e('s_lshr_b32 s%d, s%d, 24' % (sT0 + 3, sT))
        e('s_mov_b64 exec, %s' % sr(sVALID))
        e('ds_write_b128 v%d, %s offset:%d' % (vDQ, vr(vD), L_QPART))
        e('s_mov_b64 exec, -1')
        self.ts(2)
        self.barrier()
        e('s_cmp_eq_u32 s%d, 8' % sW)
        e('s_cbranch_scc1 L_comm')
        snapB1 = e.snap()

        for t in range(cfg.nka, 8):
            self.emit_item(self.kload(t))
        for t in range(cfg.nvb):
            self.emit_item(self.vload(t))
        vQA, vMXA, vLPA = vU, vU + 1, vU + 2
        e('v_and_b32 v%d, 8, v%d' % (vMXA, vL))
        e('v_lshlrev_b32 v%d, 5, v%d' % (vQA, vMXA))
        e('v_and_b32 v%d, 0xf0, v%d' % (vU + 3, vKV))
        e('v_add_u32 v%d, v%d, v%d' % (vQA, vQA, vU + 3))
        e('v_xor_b32 v%d, 0x100, v%d' % (vU + 3, vQA))
        e('v_lshlrev_b32 v%d, 4, v%d' % (vLPA, vMXA))
        e('v_lshrrev_b32 v%d, 1, v%d' % (vMXA, vMXA))
        e('v_lshrrev_b32 v%d, 4, v%d' % (vU + 4, vL))
        e('v_lshl_add_u32 v%d, v%d, 2, v%d' % (vLPA, vU + 4, vLPA))
        e('s_lshl_b32 s59, s%d, 4' % sW)
        e('v_add_u32 v%d, s59, v%d' % (vLPA, vLPA))
        vSCL = vU + 4
        e('v_mov_b32 v%d, %s' % (vSCL, f32(SCALE)))
        self.ts(3)
        e('s_barrier')
        e('ds_read_b128 %s, v%d offset:%d' % (vr(vQO), vQA, L_QL))
        e('ds_read_b128 %s, v%d offset:%d' % (vr(vQX), vU + 3, L_QL))
        self.ts(4)
        e('s_waitcnt lgkmcnt(0)')
        vnext = cfg.nvb
        prevR = []
        for t in range(8):
            a, b = vSC + t, (vT + (t & 1))
            D = [('wait', 'K%d' % t)]
            for k in range(4):
                D.append('v_dot2_f32_bf16 v%d, v%d, v%d, %s' % (a, vKt + 4 * t + k, vQO + k, '0' if k == 0 else 'v%d' % a))
                D.append('v_dot2_f32_bf16 v%d, v%d, v%d, %s' % (b, vKt + 4 * t + k, vQX + k, '0' if k == 0 else 'v%d' % b))
            if t in cfg.vq and vnext < 8:
                D.append(self.vload(vnext))
                vnext += 1
            self.weave(prevR, D)
            prevR = [
                'v_add_f32_dpp v%d, v%d, v%d %s' % (a, b, a, ROR(8)),
                'v_add_f32_dpp v%d, v%d, v%d %s' % (a, a, a, X1),
                'v_add_f32_dpp v%d, v%d, v%d %s' % (a, a, a, X2),
                'v_add_f32_dpp v%d, v%d, v%d %s' % (a, a, a, HM),
                self.rnd(a, a),
                'v_mul_f32 v%d, v%d, v%d' % (a, a, vSCL),
                self.rnd(a, a),
            ]
        mx = vT + 2
        pre = ['v_max3_f32 v%d, v%d, v%d, v%d' % (mx, vSC, vSC + 1, vSC + 2),
               'v_max3_f32 v%d, v%d, v%d, v%d' % (mx, mx, vSC + 3, vSC + 4),
               'v_max3_f32 v%d, v%d, v%d, v%d' % (mx, mx, vSC + 5, vSC + 6)]
        self.weave(prevR, pre)
        e('v_max_f32 v%d, v%d, v%d' % (mx, mx, vSC + 7))
        e('s_mov_b64 exec, %s' % sr(sL8))
        e('ds_max_f32 v%d, v%d offset:%d' % (vMXA, mx, L_MX))
        e('s_mov_b64 exec, -1')
        for _ in range(cfg.vm):
            if vnext < 8:
                self.emit_item(self.vload(vnext))
                vnext += 1
        self.ts(5)
        self.barrier()
        e('ds_read_b32 v%d, v%d offset:%d' % (mx, vMXA, L_MX))
        e('s_waitcnt lgkmcnt(0)')
        e('v_mul_f32 v%d, s%d, v%d' % (mx, sLOG2E, mx))
        for t in range(8):
            e('v_fma_f32 v%d, v%d, s%d, -v%d' % (vSC + t, vSC + t, sLOG2E, mx))
        for t in range(8):
            e('v_exp_f32 v%d, v%d' % (vSC + t, vSC + t))
        ls = vT
        e('v_add_f32 v%d, v%d, v%d' % (ls, vSC, vSC + 1))
        e('v_add_f32 v%d, v%d, v%d' % (ls + 1, vSC + 2, vSC + 3))
        e('v_add_f32 v%d, v%d, v%d' % (ls + 2, vSC + 4, vSC + 5))
        e('v_add_f32 v%d, v%d, v%d' % (ls + 3, vSC + 6, vSC + 7))
        e('v_add_f32 v%d, v%d, v%d' % (ls, ls, ls + 1))
        e('v_add_f32 v%d, v%d, v%d' % (ls + 2, ls + 2, ls + 3))
        e('v_add_f32 v%d, v%d, v%d' % (ls, ls, ls + 2))
        e('s_mov_b64 exec, %s' % sr(sL8))
        e('ds_write_b32 v%d, v%d offset:%d' % (vLPA, ls, L_LP))
        e('s_mov_b64 exec, -1')
        while vnext < 8:
            self.emit_item(self.vload(vnext))
            vnext += 1
        self.barrier()
        for t in range(8):
            e('v_cvt_pk_bf16_f32 v%d, v%d, v%d' % (vSC + t, vSC + t, vSC + t))
        for t in range(8):
            for x in self.a_ops_plain(vKt + 4 * t, vSC + t):
                e(x)
        vOPA = vU
        e('s_lshl_b32 s59, s%d, 10' % sW)
        e('v_lshl_add_u32 v%d, v%d, 4, s59' % (vOPA, vL))
        self.ts(6)
        e('s_cmp_lt_u32 s%d, 18' % sIDX)
        e('s_cbranch_scc1 L_wo')
        e('s_cmp_lt_u32 s%d, 27' % sIDX)
        e('s_cbranch_scc1 L_mlp')
        snapR = e.snap()

        def pv(extra=()):
            extra = list(extra)
            for t in range(8):
                e.wait_vm('V%d' % t)
                e(self.mfma(vD, vKt + 4 * t, vVt + 4 * t, t == 0))
                if extra:
                    for it in extra.pop(0):
                        self.emit_item(it)
            for ex in extra:
                for it in ex:
                    self.emit_item(it)
            e('ds_write_b128 v%d, %s offset:%d' % (vOPA, vr(vD), L_OPART))
            self.ts(7)
            self.barrier()

        pv()
        self.ts_store()
        e('s_endpgm')

        e.restore(snapR)
        e.label('L_wo')
        self.wo_ids()
        vWO = vU + 1
        e('v_lshrrev_b32 v%d, 3, v%d' % (vU + 2, vL))
        e('v_and_b32 v%d, 0x70, v%d' % (vWO, vKV))
        e('v_mov_b32 v%d, 4608' % (vU + 3))
        e('v_mad_u32_u24 v%d, v%d, v%d, v%d' % (vWO, vU + 2, vU + 3, vWO))
        e('s_lshl_b32 s59, s%d, 3' % sGP)
        e('s_add_u32 s59, s59, s%d' % sW)
        e('s_mul_i32 s59, s59, %d' % (32 * 1152))
        e('s_lshl_b32 s60, s%d, 7' % sC)
        e('s_add_u32 s59, s59, s60')
        self.add64(sA, sWO, 's59')
        for j in range(4):
            e('global_load_dwordx4 %s, v%d, %s offset:%d nt' % (vr(vW1 + 4 * j), vWO, sr(sA), 1152 * j), 'W%d' % j)
        vP0, vP1, vFA = vU + 1, vU + 2, vU + 3
        e('v_and_b32 v%d, 0xf0, v%d' % (vFA, vKV))
        e('v_lshl_add_u32 v%d, v%d, 8, v%d' % (vU + 2, vU + 2, vFA))
        e('s_lshl_b32 s59, s%d, 14' % sGP)
        e('s_lshl_b32 s60, s%d, 11' % sW)
        e('s_add_u32 s59, s59, s60')
        e('s_add_u32 s59, s59, 0x%x' % WS_OP)
        e('v_add_u32 v%d, s59, v%d' % (vP0, vU + 2))
        e('v_xor_b32 v%d, 0x80, v%d' % (vP1, vP0))
        e('s_lshr_b32 s59, s%d, 2' % sW)
        e('s_lshl_b32 s59, s59, 6')
        e('v_lshrrev_b32 v%d, 2, v%d' % (vFA, vFA))
        e('v_add_u32 v%d, s59, v%d' % (vFA, vFA))
        pv()
        f0, f1 = vU + 4, vU + 5
        e('ds_read_b32 v%d, v%d offset:%d' % (f0, vFA, L_F))
        self.spin_begin('L_wo_poll')
        e('global_load_dwordx4 %s, v%d, %s sc1' % (vr(vVt), vP0, sr(sWS)))
        e('global_load_dwordx4 %s, v%d, %s sc1' % (vr(vVt + 4), vP1, sr(sWS)))
        e('s_waitcnt vmcnt(0) lgkmcnt(0)')
        e.vm = []
        self.strip(vVt, 2, vT)
        self.spin_end('L_wo_poll', vT)
        self.ts(8)
        e('v_mov_b32_dpp v%d, v%d %s' % (f1, f0, ROR(8)))
        for c in range(4):
            e('v_mul_f32 v%d, v%d, v%d' % (vVt + c, vVt + c, f0))
        for c in range(4):
            e('v_fmac_f32 v%d, v%d, v%d' % (vVt + c, vVt + 4 + c, f1))
        for d in (X1, X2, HM):
            for c in range(4):
                e('v_add_f32_dpp v%d, v%d, v%d %s' % (vVt + c, vVt + c, vVt + c, d))
        for c in range(4):
            e('v_cvt_pk_bf16_f32 v%d, v%d, v%d' % (vVt + c, vVt + c, vVt + c))
        for x in self.a_ops_plain(vKt, vVt):
            e(x)
        for j in range(4):
            if j + 1 < 4:
                for x in self.a_ops_plain(vKt + 4 * (j + 1), vVt + j + 1):
                    e(x)
            e(self.mfma(vD, vKt + 4 * j, vW1 + 4 * j, j == 0))
        e('s_mov_b64 exec, %s' % sr(sVALID))
        e('ds_write_b128 v%d, %s offset:%d' % (vDQ, vr(vD), L_QPART))
        e('s_mov_b64 exec, -1')
        self.ts(9)
        self.barrier()
        self.ts_store()
        e('s_endpgm')

        e.restore(snapR)
        e.label('L_mlp')
        self.mlp_setup()
        loads = self.mlp_loads()
        for it in loads[:cfg.mw0]:
            for x in it:
                self.emit_item(x)
        pv(loads[cfg.mw0:])
        e('s_branch L_mlp2')
        snapM = e.snap()

        e.restore(snapA)
        e.label('L_w8_pre')
        vFX, vFB, vB1 = 16, 17, 156
        e('s_mul_i32 s59, s%d, 18' % sXCD)
        e('s_add_u32 s59, s59, s%d' % sIDX)
        e('s_min_u32 s59, s59, 143')
        e('s_lshl_b32 s59, s59, 3')
        e('v_lshrrev_b32 v19, 5, v%d' % vL)
        e('v_bfe_u32 v20, v%d, 4, 1' % vL)
        e('v_lshl_add_u32 v19, v20, 1, v19')
        e('v_lshl_add_u32 v19, v19, 1, s59')
        e('global_load_ushort v%d, v19, %s' % (vFX, sr(sX)), 'K0')
        e('global_load_ushort v%d, v19, %s' % (vFB, sr(sB2)), 'K1')
        e('s_mul_i32 s59, s%d, 9' % sXCD)
        e('s_add_u32 s59, s59, s%d' % sIDX)
        e('s_sub_u32 s59, s59, 18')
        e('s_min_u32 s59, s59, 71')
        e('s_lshl_b32 s59, s59, 7')
        e('v_add_u32 v20, s59, v%d' % vXB)
        e('global_load_ushort v%d, v20, %s' % (vB1, sr(sB1)), 'K2')
        for t in range(3, cfg.nka):
            e('global_load_ushort v21, v20, %s' % sr(sB1), 'K%d' % t)
        e('v_mov_b32 v20, 0')
        e('v_mov_b32 v21, 0xff800000')
        e('v_lshlrev_b32 v22, 2, v%d' % vL)
        e('ds_write2st64_b32 v22, v20, v20 offset0:%d offset1:%d' % (L_ST1 // 256, L_ST1 // 256 + 1))
        e('ds_write2st64_b32 v22, v20, v20 offset0:%d offset1:%d' % (L_ST2 // 256, L_ST2 // 256 + 1))
        e('ds_write_b32 v22, v21 offset:%d' % L_MX)
        e('s_branch L_pre_join')

        e.restore(snapB1)
        e.label('L_comm')
        vA = 24
        vMASK = 23
        e('v_lshlrev_b32 v%d, 3, v%d' % (vA, vL))
        for i in range(4):
            e('ds_read2_b64 %s, v%d offset0:%d offset1:%d' % (vr(32 + 4 * i), vA, 64 * i, 64 * i + 32))
        e('v_add_u32 v25, 0x800, v%d' % vA)
        for i in range(4):
            e('ds_read2_b64 %s, v25 offset0:%d offset1:%d' % (vr(48 + 4 * i), 64 * i, 64 * i + 32))
        e('v_add_u32 v25, 0x1000, v%d' % vA)
        e('ds_read2_b64 %s, v25 offset0:0 offset1:32' % vr(64))
        e('v_mov_b32 v%d, 0xffffff00' % vMASK)
        e('s_lshl_b32 s59, s%d, 13' % sG)
        e('s_lshl_b32 s60, s%d, 9' % sS)
        e('s_add_u32 s60, s60, s59')
        e('s_add_u32 s60, s60, 0x%x' % WS_QP)
        e('s_add_u32 s59, s59, 0x%x' % WS_QP)
        e('v_lshl_add_u32 v26, v%d, 4, s60' % vL)
        e('v_lshl_add_u32 v27, v%d, 4, s59' % vL)
        e('v_add_u32 v28, 0x1000, v27')
        e('s_waitcnt lgkmcnt(0)')
        n = 18
        regs = [32 + 2 * i for i in range(n)]
        while len(regs) > 1:
            nxt = []
            for i in range(0, len(regs) - 1, 2):
                e('v_pk_add_f32 %s, %s, %s' % (vr(regs[i], 2), vr(regs[i], 2), vr(regs[i + 1], 2)))
                nxt.append(regs[i])
            if len(regs) & 1:
                nxt.append(regs[-1])
            regs = nxt
        e('v_mov_b32 v34, s%d' % sT)
        e('v_mov_b32 v35, s%d' % sT)
        e('s_mov_b32 exec_hi, 0')
        e('global_store_dwordx4 v26, %s, %s sc1' % (vr(32), sr(sWS)))
        e('s_mov_b64 exec, -1')
        self.ts(3)
        self.spin_begin('L_q_poll')
        for r_ in range(4):
            for h in range(2):
                off = (r_ & 1) * 2048 + h * 1024
                e('global_load_dwordx4 %s, v%d, %s offset:%d sc1' % (vr(48 + 8 * r_ + 4 * h), 27 + (r_ >> 1), sr(sWS), off))
        e.wait_vm0()
        e('v_xor_b32 v25, s%d, v50' % sT)
        for k in range(1, 8):
            e('v_bitop3_b32 v25, v25, v%d, s%d bitop3:0xf6' % (50 + 4 * k, sT))
        self.spin_end('L_q_poll', 25, bytemask=False)
        for h in range(2):
            b = 48 + 4 * h
            e('v_pk_add_f32 %s, %s, %s' % (vr(b, 2), vr(b, 2), vr(b + 8, 2)))
            e('v_pk_add_f32 %s, %s, %s' % (vr(b + 16, 2), vr(b + 16, 2), vr(b + 24, 2)))
        for h in range(2):
            b = 48 + 4 * h
            e('v_pk_add_f32 %s, %s, %s' % (vr(b, 2), vr(b, 2), vr(b + 16, 2)))
        e('v_cvt_pk_bf16_f32 v48, v48, v49')
        e('v_cvt_pk_bf16_f32 v52, v52, v53')
        e('v_lshlrev_b32 v22, 2, v%d' % vL)
        e('ds_write2st64_b32 v22, v48, v52 offset0:%d offset1:%d' % (L_QL // 256, L_QL // 256 + 1))
        self.ts(4)
        self.barrier()
        e('v_lshrrev_b32 v24, 5, v%d' % vL)
        e('v_lshlrev_b32 v24, 13, v24')
        e('v_and_b32 v25, 15, v%d' % vL)
        e('v_lshl_add_u32 v24, v25, 9, v24')
        e('v_bfe_u32 v25, v%d, 4, 1' % vL)
        e('v_lshl_add_u32 v24, v25, 8, v24')
        e('s_lshl_b32 s59, s%d, 14' % sG)
        e('s_lshl4_add_u32 s59, s%d, s59' % sS)
        e('s_add_u32 s59, s59, 0x%x' % WS_OP)
        e('v_add_u32 v24, s59, v24')
        e('v_lshlrev_b32 v25, 4, v%d' % vL)
        e('s_lshl_b32 s59, s%d, 8' % sG)
        e('s_lshl4_add_u32 s59, s%d, s59' % sS)
        e('s_add_u32 s59, s59, 0x%x' % WS_ML)
        e('v_mov_b32 v26, s59')
        e('s_barrier')
        e('s_barrier')
        e('ds_read_b32 v33, v22 offset:%d' % L_LP)
        e('v_mov_b32 v27, 0')
        e('ds_read_b64 v[36:37], v27 offset:%d' % L_MX)
        e('s_waitcnt lgkmcnt(0)')
        for d in (X1, X2, HM, MI, 'row_bcast:15 row_mask:0xa bank_mask:0xf'):
            e('v_add_f32_dpp v33, v33, v33 %s' % d)
        e('v_readlane_b32 s59, v33, 31')
        e('v_readlane_b32 s60, v33, 63')
        e('v_mov_b32 v32, v36')
        e('v_mov_b32 v34, v37')
        e('v_mov_b32 v33, s59')
        e('v_mov_b32 v35, s60')
        self.tag(32, vMASK)
        e('s_mov_b64 exec, 1')
        e('global_store_dwordx4 v26, %s, %s sc1' % (vr(32), sr(sWS)))
        e('s_mov_b64 exec, -1')
        self.ts(5)
        e('s_cmp_lt_u32 s%d, 18' % sIDX)
        e('s_cbranch_scc1 L_c_wo')
        e('s_cmp_lt_u32 s%d, 27' % sIDX)
        e('s_cbranch_scc1 L_c_mlp')
        snapC = e.snap()

        def op_publish():
            e('s_barrier')
            self.ts(6)
            for w in range(8):
                e('ds_read_b128 %s, v25 offset:%d' % (vr(32 + 4 * w), L_OPART + 1024 * w))
            for st in (1, 2, 4):
                for w in range(0, 8, 2 * st):
                    if st == 1:
                        e('s_waitcnt lgkmcnt(%d)' % (0 if self.cfg.diag else 6 - w))
                    for hh in (0, 2):
                        e('v_pk_add_f32 %s, %s, %s' % (vr(32 + 4 * w + hh, 2), vr(32 + 4 * w + hh, 2), vr(32 + 4 * (w + st) + hh, 2)))
            self.tag(32, vMASK)
            e('global_store_dwordx4 v24, %s, %s sc1' % (vr(32), sr(sWS)))
            self.ts(7)

        op_publish()
        self.ts_store()
        e('s_endpgm')

        e.restore(snapC)
        e.label('L_c_wo')
        self.wo_ids()
        e('v_and_b32 v27, 15, v%d' % vL)
        e('s_lshl_b32 s59, s%d, 8' % sGP)
        e('s_add_u32 s59, s59, 0x%x' % WS_ML)
        e('v_lshl_add_u32 v26, v27, 4, s59')
        e('v_lshlrev_b32 v27, 2, v27')
        self.spin_begin('L_ml_poll')
        e('global_load_dwordx4 %s, v26, %s sc1' % (vr(40), sr(sWS)))
        e.wait_vm0()
        self.strip(40, 1, 44)
        self.spin_end('L_ml_poll', 44)
        e('v_mov_b32 v44, v40')
        e('v_mov_b32 v45, v42')
        for d in (X1, X2, HM, MI):
            e('v_max_f32_dpp v44, v44, v44 %s' % d)
            e('v_max_f32_dpp v45, v45, v45 %s' % d)
        e('v_sub_f32 v40, v40, v44')
        e('v_sub_f32 v42, v42, v45')
        e('v_mul_f32 v40, s%d, v40' % sLOG2E)
        e('v_mul_f32 v42, s%d, v42' % sLOG2E)
        e('v_exp_f32 v40, v40')
        e('v_exp_f32 v42, v42')
        e('v_mul_f32 v41, v41, v40')
        e('v_mul_f32 v43, v43, v42')
        for d in (X1, X2, HM, MI):
            e('v_add_f32_dpp v41, v41, v41 %s' % d)
            e('v_add_f32_dpp v43, v43, v43 %s' % d)
        e('v_rcp_f32 v41, v41')
        e('v_rcp_f32 v43, v43')
        e('v_mul_f32 v40, v40, v41')
        e('v_mul_f32 v42, v42, v43')
        e('ds_write_b32 v27, v40 offset:%d' % L_F)
        e('ds_write_b32 v27, v42 offset:%d' % (L_F + 64))
        e('v_lshrrev_b32 v26, 2, v%d' % vL)
        e('v_and_b32 v27, 3, v%d' % vL)
        e('v_lshlrev_b32 v28, 4, v26')
        e('v_lshl_add_u32 v28, v27, 8, v28')
        e('s_lshl_b32 s59, s%d, 12' % sC)
        e('s_lshr_b32 s60, s%d, 2' % sGP)
        e('s_lshl_b32 s60, s60, 10')
        e('s_add_u32 s59, s59, s60')
        e('s_and_b32 s60, s%d, 3' % sGP)
        e('s_lshl4_add_u32 s59, s60, s59')
        e('s_add_u32 s59, s59, 0x%x' % WS_HP)
        e('v_lshl_add_u32 v29, v26, 6, s59')
        e('s_lshr_b32 s59, s%d, 4' % sID)
        e('s_lshl_b32 s59, s59, 12')
        e('s_and_b32 s60, s%d, 15' % sID)
        e('s_lshl_b32 s60, s60, 6')
        e('s_add_u32 s59, s59, s60')
        e('s_add_u32 s59, s59, 0x%x' % WS_HP)
        e('v_and_b32 v26, 3, v26')
        e('v_lshlrev_b32 v26, 4, v26')
        e('v_lshl_add_u32 v26, v27, 10, v26')
        e('v_add_u32 v26, s59, v26')
        e('s_mul_i32 s59, s%d, 1152' % sID)
        e('s_add_u32 s59, s59, 0x%x' % WS_FP)
        e('v_add_u32 v27, s59, v25')
        e('v_and_b32 v30, 0x70, v25')
        e('v_add_u32 v30, s59, v30')
        e('v_lshlrev_b32 v%d, 16, v%d' % (vFX, vFX))
        e('v_lshlrev_b32 v%d, 16, v%d' % (vFB, vFB))
        e('s_waitcnt lgkmcnt(0)')
        op_publish()
        e('s_barrier')
        self.ts(8)
        for k in range(4):
            e('ds_read_b128 %s, v28 offset:%d' % (vr(40 + 4 * k), L_QPART + 1024 * k))
        e('s_waitcnt lgkmcnt(%d)' % (0 if self.cfg.diag else 2))
        for hh in (0, 2):
            e('v_pk_add_f32 %s, %s, %s' % (vr(40 + hh, 2), vr(40 + hh, 2), vr(44 + hh, 2)))
        e('s_waitcnt lgkmcnt(0)')
        for hh in (0, 2):
            e('v_pk_add_f32 %s, %s, %s' % (vr(48 + hh, 2), vr(48 + hh, 2), vr(52 + hh, 2)))
        for hh in (0, 2):
            e('v_pk_add_f32 %s, %s, %s' % (vr(40 + hh, 2), vr(40 + hh, 2), vr(48 + hh, 2)))
        for d in (X1, X2):
            for c in range(4):
                e('v_add_f32_dpp v%d, v%d, v%d %s' % (40 + c, 40 + c, 40 + c, d))
        self.tag(40, vMASK)
        e('s_mov_b32 s60, 0x11111111')
        e('s_mov_b32 s61, 0x11111111')
        e('s_mov_b64 exec, s[60:61]')
        e('global_store_dwordx4 v29, %s, %s sc1' % (vr(40), sr(sWS)))
        e('s_mov_b64 exec, -1')
        self.ts(9)
        self.spin_begin('L_fh_poll')
        e('global_load_dwordx4 %s, v26, %s sc1' % (vr(48), sr(sWS)))
        e.wait_vm0()
        self.strip(48, 1, 52)
        self.spin_end('L_fh_poll', 52)
        self.ts(10)
        ident = 'quad_perm:[0,1,2,3] row_mask:0x%x bank_mask:0xf'
        e('v_mov_b32_dpp v48, v50 %s' % (ident % 2))
        e('v_mov_b32_dpp v48, v49 %s' % (ident % 4))
        e('v_mov_b32_dpp v48, v51 %s' % (ident % 8))
        for d in (X1, X2, ROR(8), ROR(4)):
            e('v_add_f32_dpp v48, v48, v48 %s' % d)
        e(self.rnd(48, 48))
        e('v_add_f32 v48, v48, v%d' % vFX)
        e(self.rnd(vFX, 48))
        self.spin_begin('L_ff_poll')
        e('global_load_dwordx4 %s, v27, %s sc1' % (vr(48), sr(sWS)))
        e('global_load_dwordx4 %s, v30, %s offset:1024 sc1' % (vr(52), sr(sWS)))
        e.wait_vm0()
        self.strip(48, 2, 56)
        self.spin_end('L_ff_poll', 56)
        self.ts(11)
        e('s_mov_b32 exec_lo, 0xff')
        e('s_mov_b32 exec_hi, 0')
        for hh in (0, 2):
            e('v_pk_add_f32 %s, %s, %s' % (vr(48 + hh, 2), vr(48 + hh, 2), vr(52 + hh, 2)))
        e('s_mov_b64 exec, -1')
        e('v_permlane32_swap_b32 v48, v49')
        e('v_permlane32_swap_b32 v50, v51')
        e('v_add_f32 v48, v48, v49')
        e('v_add_f32 v50, v50, v51')
        e('v_permlane16_swap_b32 v48, v50')
        e('v_add_f32 v48, v48, v50')
        for d in (X1, X2, HM, MI):
            e('v_add_f32_dpp v48, v48, v48 %s' % d)
        e(self.rnd(48, 48))
        e('v_add_f32 v48, v48, v%d' % vFB)
        e(self.rnd(48, 48))
        e('v_add_f32 v48, v48, v%d' % vFX)
        e('v_cvt_pk_bf16_f32 v48, v48, v48')
        e('s_mov_b32 s60, 0x00010001')
        e('s_mov_b32 s61, 0x00010001')
        e('s_mov_b64 exec, s[60:61]')
        e('global_store_short v19, v48, %s' % sr(sOUT))
        e('s_cmp_lg_u32 s%d, 0' % sID)
        e('s_cbranch_scc1 L_c_wo_done')
        e('s_mov_b64 exec, 1')
        e('v_mov_b32 v49, 0')
        e('v_mov_b32 v50, s%d' % sT)
        e('global_store_dword v49, v50, %s sc1' % sr(sWS))
        e.label('L_c_wo_done')
        e('s_mov_b64 exec, -1')
        self.ts(12)
        self.ts_store()
        e('s_endpgm')

        e.restore(snapC)
        e.label('L_c_mlp')
        self.mlp_setup()
        loads = self.mlp_loads()
        for it in loads[:cfg.cw0]:
            for x in it:
                self.emit_item(x)
        op_publish()
        for it in loads[cfg.cw0:]:
            for x in it:
                self.emit_item(x)

        e.label('L_mlp2')
        e.restore(immediate_unknown(e))
        vP = vVt
        self.spin_begin('L_hp_poll')
        for u in range(4):
            e('global_load_dwordx4 %s, v%d, %s offset:%d sc1' % (vr(vP + 4 * u), vHPA, sr(sWS), 1024 * u))
        e.wait_vm0()
        self.strip(vP, 4, vT)
        self.spin_end('L_hp_poll', vT)
        self.ts(8)
        e('v_and_b32 v%d, 0xffff0000, v%d' % (vHX + 1, vHX))
        e('v_lshlrev_b32 v%d, 16, v%d' % (vHX, vHX))
        for hh in (0, 2):
            e('v_pk_add_f32 %s, %s, %s' % (vr(vP + hh, 2), vr(vP + hh, 2), vr(vP + 4 + hh, 2)))
            e('v_pk_add_f32 %s, %s, %s' % (vr(vP + 8 + hh, 2), vr(vP + 8 + hh, 2), vr(vP + 12 + hh, 2)))
        for hh in (0, 2):
            e('v_pk_add_f32 %s, %s, %s' % (vr(vP + hh, 2), vr(vP + hh, 2), vr(vP + 8 + hh, 2)))
        for c in range(4):
            e('v_add_f32_dpp v%d, v%d, v%d %s' % (vP + c, vP + c, vP + c, X2))
        e('v_cndmask_b32 v%d, v%d, v%d, %s' % (vP, vP, vP + 2, sr(sBIT1)))
        e('v_cndmask_b32 v%d, v%d, v%d, %s' % (vP + 1, vP + 1, vP + 3, sr(sBIT1)))
        y0, y1 = vP, vP + 1
        e('v_add_f32_dpp v%d, v%d, v%d %s' % (y0, y0, y0, X1))
        e('v_add_f32_dpp v%d, v%d, v%d %s' % (y1, y1, y1, X1))
        e(self.rnd(y0, y0))
        e(self.rnd(y1, y1))
        e('v_add_f32 v%d, v%d, v%d' % (y0, y0, vHX))
        e('v_add_f32 v%d, v%d, v%d' % (y1, y1, vHX + 1))
        for ln, lst in ((0, L_ST1), (1, L_ST2)):
            e(self.rnd(y0, y0))
            e(self.rnd(y1, y1))
            z, z2 = vP + 2, vP + 3
            e('v_add_f32 v%d, v%d, v%d' % (z, y0, y1))
            e('v_mul_f32 v%d, v%d, v%d' % (z2, y0, y0))
            e('v_fmac_f32 v%d, v%d, v%d' % (z2, y1, y1))
            e('v_cndmask_b32 v%d, v%d, v%d, %s' % (z, z, z2, sr(sBIT0)))
            for d in (X2, ROR(4), ROR(8)):
                e('v_add_f32_dpp v%d, v%d, v%d %s' % (z, z, z, d))
            e('s_mov_b64 exec, %s' % sr(sL2))
            e('ds_write_b32 v%d, v%d offset:%d' % (vSTW, z, lst))
            e('s_mov_b64 exec, -1')
            self.barrier()
            e('ds_read_b128 %s, v%d offset:%d' % (vr(vP + 4), vSTR, lst))
            e('ds_read_b128 %s, v%d offset:%d' % (vr(vP + 8), vSTR, lst + 16))
            e('s_waitcnt lgkmcnt(0)')
            e('v_pk_add_f32 %s, %s, %s' % (vr(vP + 4, 2), vr(vP + 4, 2), vr(vP + 8, 2)))
            e('v_pk_add_f32 %s, %s, %s' % (vr(vP + 6, 2), vr(vP + 6, 2), vr(vP + 10, 2)))
            e('v_pk_add_f32 %s, %s, %s' % (vr(vP + 4, 2), vr(vP + 4, 2), vr(vP + 6, 2)))
            e('v_add_f32 v%d, v%d, v%d' % (z, vP + 4, vP + 5))
            for d in (X2, ROR(4), ROR(8)):
                e('v_add_f32_dpp v%d, v%d, v%d %s' % (z, z, z, d))
            e('v_mov_b32_dpp v%d, v%d quad_perm:[1,1,3,3] %s' % (z2, z, DPP))
            e('v_mov_b32_dpp v%d, v%d quad_perm:[0,0,2,2] %s' % (z, z, DPP))
            m, sd, r, t = vP + 4, vP + 5, vP + 6, vP + 7
            for x in self.ln_scalars('v%d' % z, 'v%d' % z2, vINVM, m, sd, r, t):
                e(x)
            self.weave(self.ln_apply(y0, m, sd, r, vP + 8), self.ln_apply(y1, m, sd, r, vP + 9))
        e('v_cvt_pk_bf16_f32 v%d, v%d, v%d' % (y0, y0, y0))
        e('v_cvt_pk_bf16_f32 v%d, v%d, v%d' % (y1, y1, y1))
        self.ts(9)
        self.gemv8(y0, y1, vW1)
        e('s_mov_b64 exec, %s' % sr(sVALID))
        e('ds_write_b128 v%d, %s offset:%d' % (vDQ, vr(vD), L_QPART))
        e('s_mov_b64 exec, -1')
        self.barrier()
        self.ts(10)
        e('s_cmp_lg_u32 s%d, 8' % sW)
        e('s_cbranch_scc1 L_mlp3')
        snapG = e.snap()
        e('v_lshlrev_b32 v157, 2, v%d' % vL)
        for i in range(9):
            e('ds_read2st64_b32 %s, v157 offset0:%d offset1:%d' % (vr(vP + 2 * i, 2), 2 * i, 2 * i + 1))
        e('v_lshlrev_b32 v%d, 16, v%d' % (vB1, vB1))
        c1 = -2.0 * LOG2E * 0.7978845608028654
        e('v_mov_b32 v158, %s' % f32(c1 * 0.044715))
        e('s_waitcnt lgkmcnt(0)')
        regs = [vP + 2 * i for i in range(9)]
        while len(regs) > 1:
            nxt = []
            for i in range(0, len(regs) - 1, 2):
                e('v_pk_add_f32 %s, %s, %s' % (vr(regs[i], 2), vr(regs[i], 2), vr(regs[i + 1], 2)))
                nxt.append(regs[i])
            if len(regs) & 1:
                nxt.append(regs[-1])
            regs = nxt
        u = vP
        e('v_add_f32 v%d, v%d, v%d' % (u, vP, vP + 1))
        e(self.rnd(u, u))
        e('v_add_f32 v%d, v%d, v%d' % (u, u, vB1))
        e(self.rnd(u, u))
        e('v_mul_f32 v%d, v%d, v%d' % (u + 1, u, u))
        e('v_fmaak_f32 v%d, v%d, v158, %s' % (u + 1, u + 1, f32(c1)))
        e('v_mul_f32 v%d, v%d, v%d' % (u + 1, u + 1, u))
        e('v_exp_f32 v%d, v%d' % (u + 1, u + 1))
        e('v_add_f32 v%d, 1.0, v%d' % (u + 1, u + 1))
        e('v_rcp_f32 v%d, v%d' % (u + 1, u + 1))
        e('v_mul_f32 v%d, v%d, v%d' % (u, u, u + 1))
        e('v_cvt_pk_bf16_f32 v%d, v%d, v%d' % (u, u, u))
        e('ds_write_b32 v157, v%d offset:%d' % (u, L_H1))
        e('s_waitcnt lgkmcnt(0)')
        e.label('L_mlp3')
        e('s_barrier')
        e('ds_read_b64 %s, v%d offset:%d' % (vr(vP, 2), vH1A, L_H1))
        self.ts(11)
        e('v_mov_b32 v%d, 0xffffff00' % (vP + 8))
        e('s_waitcnt lgkmcnt(0)')
        self.gemv8(vP, vP + 1, vW2)
        for c in range(4):
            e('v_permlane32_swap_b32 v%d, v%d' % (vD + c, vP + 4 + c))
        for c in range(4):
            e('v_add_f32_dpp v%d, v%d, v%d %s' % (vD + c, vP + 4 + c, vD + c, ROR(8)))
        self.tag(vD, vP + 8)
        e('s_mov_b32 exec_lo, 0x00ff00ff')
        e('s_mov_b32 exec_hi, 0')
        e('global_store_dwordx4 v%d, %s, %s sc1' % (vFPA, vr(vD), sr(sWS)))
        e('s_mov_b64 exec, -1')
        self.ts(12)
        self.ts_store()
        e.label('L_end')
        e('s_endpgm')

        e.raw('.section .rodata,"a"')
        e.raw('.p2align 6')
        e.raw('.amdhsa_kernel %s' % K)
        e.raw('  .amdhsa_next_free_vgpr 168')
        e.raw('  .amdhsa_next_free_sgpr 102')
        e.raw('  .amdhsa_accum_offset 168')
        e.raw('  .amdhsa_group_segment_fixed_size 0')
        e.raw('  .amdhsa_kernarg_size 104')
        e.raw('  .amdhsa_user_sgpr_count 2')
        e.raw('  .amdhsa_user_sgpr_kernarg_segment_ptr 1')
        e.raw('  .amdhsa_system_sgpr_workgroup_id_x 1')
        e.raw('.end_amdhsa_kernel')
        return e.text()

    def wo_ids(self):
        e = self.e
        e('s_mul_i32 s%d, s%d, 18' % (sID, sXCD))
        e('s_add_u32 s%d, s%d, s%d' % (sID, sID, sIDX))
        e('s_cmp_ge_u32 s%d, 9' % sIDX)
        e('s_cselect_b32 s59, 1, 0')
        e('s_lshl1_add_u32 s%d, s%d, s59' % (sGP, sXCD))
        e('s_mul_i32 s59, s59, 9')
        e('s_sub_u32 s%d, s%d, s59' % (sC, sIDX))

    def mlp_setup(self):
        e = self.e
        e('s_mul_i32 s%d, s%d, 9' % (sID, sXCD))
        e('s_add_u32 s%d, s%d, s%d' % (sID, sID, sIDX))
        e('s_sub_u32 s%d, s%d, 18' % (sID, sID))
        rho, c16 = vMA, vMA + 1
        e('v_lshrrev_b32 v%d, 3, v%d' % (rho, vL))
        e('v_and_b32 v%d, 0x70, v%d' % (c16, vKV))
        e('v_mov_b32 v%d, %d' % (vW1O, 8 * 9216))
        e('v_mov_b32 v%d, %d' % (vW2O, 8 * 1152))
        e('v_mad_u32_u24 v%d, v%d, v%d, v%d' % (vW1O, rho, vW1O, c16))
        e('v_mad_u32_u24 v%d, v%d, v%d, v%d' % (vW2O, rho, vW2O, c16))
        e('s_mul_i32 s59, s%d, %d' % (sW, 64 * 9216))
        e('s_lshl_b32 s60, s%d, 7' % sID)
        e('s_add_u32 s59, s59, s60')
        self.add64(sA, sW1, 's59')
        e('s_mul_i32 s59, s%d, %d' % (sID, 64 * 1152))
        e('s_lshl_b32 s60, s%d, 7' % sW)
        e('s_add_u32 s59, s59, s60')
        e('s_add_u32 s59, s59, 4032')
        self.add64(sB, sW2, 's59')
        e('v_lshrrev_b32 v%d, 1, v%d' % (vH1A, vL))
        e('v_lshl_add_u32 v%d, v%d, 2, s60' % (vHX + 1, vH1A))
        e('global_load_dword v%d, v%d, %s' % (vHX, vHX + 1, sr(sX)), 'HX')
        e('v_lshlrev_b32 v%d, 3, v%d' % (vH1A, vH1A))
        e('s_lshl_b32 s59, s%d, 12' % sW)
        e('s_add_u32 s59, s59, 0x%x' % WS_HP)
        e('v_lshl_add_u32 v%d, v%d, 4, s59' % (vHPA, vL))
        e('v_and_b32 v%d, 1, v%d' % (vSTW, vL))
        e('v_lshlrev_b32 v%d, 8, v%d' % (vSTW, vSTW))
        e('v_bfe_u32 v%d, v%d, 1, 3' % (vSTR, vL))
        e('v_lshl_add_u32 v%d, v%d, 5, v%d' % (vSTR, vSTR, vSTW))
        e('v_lshrrev_b32 v%d, 4, v%d' % (rho, vL))
        e('v_lshl_add_u32 v%d, v%d, 2, v%d' % (vSTW, rho, vSTW))
        e('s_lshl_b32 s59, s%d, 4' % sW)
        e('v_add_u32 v%d, s59, v%d' % (vSTW, vSTW))
        e('v_and_b32 v%d, 1, v%d' % (rho, rho))
        e('v_lshrrev_b32 v%d, 3, v%d' % (c16, c16))
        e('v_add_u32 v%d, v%d, v%d' % (rho, rho, c16))
        e('s_mul_i32 s59, s%d, %d' % (sW, 16 * 1152))
        e('s_lshl4_add_u32 s59, s%d, s59' % sID)
        e('s_add_u32 s59, s59, 0x%x' % WS_FP)
        e('v_mov_b32 v%d, 1152' % vFPA)
        e('v_mad_u32_u24 v%d, v%d, v%d, s59' % (vFPA, rho, vFPA))
        e('v_mov_b32 v%d, %s' % (vINVM, f32(1.0 / 576)))
        e('s_mov_b32 s%d, 0xaaaaaaaa' % sBIT0)
        e('s_mov_b32 s%d, 0xaaaaaaaa' % (sBIT0 + 1))
        e('s_mov_b32 s%d, 0xcccccccc' % sBIT1)
        e('s_mov_b32 s%d, 0xcccccccc' % (sBIT1 + 1))
        e('s_mov_b32 s%d, 0x00030003' % sL2)
        e('s_mov_b32 s%d, 0x00030003' % (sL2 + 1))

    def mlp_loads(self):
        out = []
        for jj in range(8):
            it = [('load', 'global_load_dwordx4 %s, v%d, %s nt' % (vr(vW1 + 4 * jj), vW1O, sr(sA)), 'A%d' % jj)]
            if jj < 7:
                it.append('s_add_u32 s%d, s%d, 9216' % (sA, sA))
                it.append('s_addc_u32 s%d, s%d, 0' % (sA + 1, sA + 1))
            out.append(it)
        for jj in range(8):
            out.append([('load', 'global_load_dwordx4 %s, v%d, %s offset:%d nt' % (vr(vW2 + 4 * jj), vW2O, sr(sB), 1152 * jj - 4032), 'B%d' % jj)])
        return out


vW1O, vW2O, vHPA, vSTW, vSTR, vFPA, vH1A, vINVM = 144, 145, 146, 147, 148, 149, 150, 151
vHX = 152
vMA = 154
sBIT0, sBIT1, sL2 = 44, 46, 48


def immediate_unknown(e):
    return ([], [])


def main():
    ap = argparse.ArgumentParser()
    ap.add_argument('-o', default='cdna_kernels/%s.s' % NAME)
    ap.add_argument('--diag', type=int, default=0)
    ap.add_argument('--spin', type=int, default=0x2000)
    ap.add_argument('--nka', type=int, default=3)
    ap.add_argument('--nvb', type=int, default=2)
    ap.add_argument('--vq', type=str, default='1,3,5,7')
    ap.add_argument('--vm', type=int, default=1)
    ap.add_argument('--mw0', type=int, default=4)
    ap.add_argument('--cw0', type=int, default=4)
    ap.add_argument('--rorsign', type=int, default=1)
    cfg = ap.parse_args()
    cfg.vq = [int(x) for x in cfg.vq.split(',') if x != '']
    g = Gen(cfg)
    txt = g.build()
    open(cfg.o, 'w').write(txt)
    print('wrote', cfg.o, 'instructions', g.e.nins)


if __name__ == '__main__':
    main()
```

```python
import sys, struct, argparse
sys.path.insert(0, 'dev')
from emit import Em, Ins, need

NAME = 'sequential_preLN__sliding_block_cached__mixer_channel_mlp__decode'


def f32(x):
    return '0x%08x' % struct.unpack('<I', struct.pack('<f', x))[0]


WS_QP = 0x10000
WS_ML = 0x30000
WS_OP = 0x40000
WS_HP = 0x80000
WS_FP = 0x90000
WS_TS = 0x100000

L_QPART = 0x0000
L_QL = 0x1200
L_MX = 0x1400
L_LP = 0x1500
L_F = 0x1600
L_ST1 = 0x1700
L_ST2 = 0x1900
L_H1 = 0x1B00
L_OPART = 0x2000
LDS_SIZE = 0x4000

LOG2E = 1.4426950408889634
SCALE = 128 ** -0.5

DPP = 'row_mask:0xf bank_mask:0xf'
X1 = 'quad_perm:[1,0,3,2] ' + DPP
X2 = 'quad_perm:[2,3,0,1] ' + DPP
HM = 'row_half_mirror ' + DPP
MI = 'row_mirror ' + DPP


def ROR(n):
    return 'row_ror:%d %s' % (n, DPP)


def vr(a, n=4):
    return 'v[%d:%d]' % (a, a + n - 1)


def sr(a, n=2):
    return 's[%d:%d]' % (a, a + n - 1)


sX, sK, sV, sWQ, sWO, sW1, sB1, sW2, sB2, sOUT, sDBG, sWS = 4, 6, 8, 10, 12, 16, 18, 20, 22, 24, 26, 28
sW = 3
sT = 30
sT0 = 31
sLOG2E = 35
sONES = 36
sG, sS, sIDX, sXCD, sID = 39, 40, 41, 42, 43
sKB, sVB, sQ0, sQ1 = 44, 46, 48, 50
sA, sB = 52, 54
sVALID = 56
sSPIN = 58
sTMP = 59
sTS = 64
sGP, sC = 96, 97
sL8 = 98

vL = 1
vM = 2
vKV = 6
vDQ = 7
vD = 8
vT = 12
vKt = 16
vVt = 48
vW1 = 80
vW2 = 112
vQO, vQX = 144, 148
vSC = 152
vU = 160


class Gen:
    def __init__(self, cfg):
        self.cfg = cfg
        self.e = Em()
        self.nts = 0

    def ts(self, k):
        if self.cfg.diag == 1 or (self.cfg.diag == 2 and k == 0):
            self.e('s_memrealtime %s' % sr(sTS + 2 * k))

    def ts_store(self, nslots=16):
        e = self.e
        if not self.cfg.diag:
            return
        e('s_waitcnt lgkmcnt(0)')
        e('s_mul_i32 s59, s2, 9')
        e('s_add_u32 s59, s59, s%d' % sW)
        e('s_lshl_b32 s59, s59, 7')
        e('s_add_u32 s59, s59, 0x%x' % WS_TS)
        e('s_mov_b64 exec, 1')
        if self.cfg.diag == 2:
            e('s_memrealtime s[60:61]')
            e('v_mov_b32 v0, 0')
            e('s_not_b32 s59, s%d' % sTS)
            e('v_mov_b32 v%d, s59' % vU)
            e('s_waitcnt lgkmcnt(0)')
            e('v_mov_b32 v%d, s60' % (vU + 1))
            e('global_atomic_umax v0, v%d, %s' % (vU, sr(sDBG)))
            e('global_atomic_umax v0, v%d, %s offset:4' % (vU + 1, sr(sDBG)))
            e('s_mov_b64 exec, -1')
            return
        e('v_mov_b32 v0, s59')
        for k in range(0, nslots, 4):
            for j in range(4):
                e('v_mov_b32 v%d, s%d' % (vU + j, sTS + 2 * (k + j)))
            e('global_store_dwordx4 v0, %s, %s offset:%d' % (vr(vU), sr(sWS), 4 * k))
            e('s_nop 1')
        e('s_mov_b64 exec, -1')

    def pad_needed(self, text):
        ins = Ins(text)
        dist = 0
        pad = 0
        for p in reversed(self.e.hist):
            n = need(p, ins)
            if n > dist:
                pad = max(pad, n - dist)
            dist += p.ws
            if dist >= 12:
                break
        return pad

    def emit_item(self, it):
        if isinstance(it, str):
            self.e(it)
        elif it[0] == 'wait':
            self.e.wait_vm(it[1])
        elif it[0] == 'load':
            self.e(it[1], it[2])

    def weave(self, *streams):
        streams = [list(s) for s in streams if s]
        while any(streams):
            best = None
            for k, s in enumerate(streams):
                if not s:
                    continue
                it = s[0]
                if isinstance(it, str):
                    p = self.pad_needed(it)
                elif it[0] == 'load':
                    p = self.pad_needed(it[1])
                else:
                    p = 0
                if best is None or p < best[0]:
                    best = (p, k)
                if p == 0:
                    break
            self.emit_item(streams[best[1]].pop(0))

    def barrier(self):
        self.e('s_waitcnt lgkmcnt(0)')
        self.e('s_barrier')

    def add64(self, dst, base, off):
        self.e('s_add_u32 s%d, s%d, %s' % (dst, base, off))
        self.e('s_addc_u32 s%d, s%d, 0' % (dst + 1, base + 1))

    def rnd(self, d, s):
        return 'v_cvt_pk_bf16_f32 v%d, 0, v%d' % (d, s)

    def ln_scalars(self, S, Q, inv, m, sd, r, t):
        return [
            'v_mul_f32 v%d, %s, v%d' % (m, S, inv),
            'v_mul_f32 v%d, %s, v%d' % (t, Q, inv),
            'v_fma_f32 v%d, -v%d, v%d, v%d' % (t, m, m, t),
            self.rnd(m, m),
            self.rnd(t, t),
            'v_add_f32 v%d, %s, v%d' % (t, f32(1e-5), t),
            self.rnd(t, t),
            'v_sqrt_f32 v%d, v%d' % (sd, t),
            self.rnd(sd, sd),
            'v_rcp_f32 v%d, v%d' % (r, sd),
        ]

    def ln_apply(self, x, m, sd, r, t):
        return [
            'v_sub_f32 v%d, v%d, v%d' % (x, x, m),
            self.rnd(x, x),
            'v_mul_f32 v%d, v%d, v%d' % (t, x, r),
            'v_fma_f32 v%d, -v%d, v%d, v%d' % (x, t, sd, x),
            'v_fma_f32 v%d, v%d, v%d, v%d' % (x, x, r, t),
        ]

    def spin_begin(self, name):
        self.e('s_movk_i32 s%d, 0x%x' % (sSPIN, self.cfg.spin))
        self.e.label(name)

    def spin_end(self, name, acc, bytemask=True):
        e = self.e
        if bytemask:
            e('v_and_b32 v%d, 0xff, v%d' % (acc, acc))
        e('v_cmp_ne_u32 vcc, 0, v%d' % acc)
        e('s_sub_u32 s%d, s%d, 1' % (sSPIN, sSPIN))
        e('s_cbranch_scc1 %s_x' % name)
        e('s_cbranch_vccnz %s' % name)
        e.label(name + '_x')

    def strip(self, base, n, acc):
        e = self.e
        regs = []
        for gi in range(n):
            for i in range(4):
                r = base + 4 * gi + i
                e('v_xor_b32 v%d, s%d, v%d' % (r, sT0 + i, r))
                regs.append(r)
        e('v_or3_b32 v%d, v%d, v%d, v%d' % (acc, regs[0], regs[1], regs[2]))
        k = 3
        while k < len(regs):
            if k + 1 < len(regs):
                e('v_or3_b32 v%d, v%d, v%d, v%d' % (acc, acc, regs[k], regs[k + 1]))
                k += 2
            else:
                e('v_or_b32 v%d, v%d, v%d' % (acc, acc, regs[k]))
                k += 1

    def tag(self, base, vmask):
        for i in range(4):
            self.e('v_and_or_b32 v%d, v%d, v%d, s%d' % (base + i, base + i, vmask, sT0 + i))

    def a_ops_plain(self, dst, src):
        return ['v_and_b32 v%d, v%d, v%d' % (dst + p, src, vM + p) for p in range(4)]

    def a_ops_rot(self, dst, src, j):
        out = []
        for p in range(4):
            n = (2 * (p - j) * self.cfg.rorsign) % 16
            if n == 0:
                out.append('v_and_b32 v%d, v%d, v%d' % (dst + p, src, vM + p))
            else:
                out.append('v_and_b32_dpp v%d, v%d, v%d %s' % (dst + p, src, vM + p, ROR(n)))
        return out

    def mfma(self, d, a, b, first):
        return 'v_mfma_f32_16x16x32_bf16 %s, %s, %s, %s' % (vr(d), vr(a), vr(b), '0' if first else vr(d))

    def gemv8(self, ya, yb, wbase):
        e = self.e
        A = lambda jj: self.a_ops_rot(vKt + 4 * jj, yb if (jj & 1) else ya, jj >> 1)
        for x in A(0):
            e(x)
        for jj in range(8):
            if jj + 1 < 8:
                for x in A(jj + 1):
                    e(x)
            e(self.mfma(vD, vKt + 4 * jj, wbase + 4 * jj, jj == 0))

    def kload(self, t):
        return ('load', 'global_load_dwordx4 %s, v%d, %s offset:%d nt' % (vr(vKt + 4 * t), vKV, sr(sKB), 256 * t), 'K%d' % t)

    def vload(self, t):
        return ('load', 'global_load_dwordx4 %s, v%d, %s offset:%d nt' % (vr(vVt + 4 * t), vKV, sr(sVB), 256 * t), 'V%d' % t)

    def build(self):
        e = self.e
        cfg = self.cfg
        K = NAME + '_kernel'
        e.raw('; @launch grid=(256,1,1) block=(576,1,1) lds=%d' % LDS_SIZE)
        e.raw('.amdgcn_target "amdgcn-amd-amdhsa--gfx950"')
        e.raw('.text')
        e.raw('.globl %s' % K)
        e.raw('.p2align 8')
        e.raw('.type %s,@function' % K)
        e.label(K)
        e('s_cmp_ge_u32 s2, 0x100')
        e('s_cbranch_scc1 L_end')
        e('s_load_dwordx16 s[4:19], s[0:1], 0')
        e('s_load_dwordx8 s[20:27], s[0:1], 64')
        e('s_load_dwordx2 s[28:29], s[0:1], 96')
        self.ts(0)
        e('s_getpc_b64 s[60:61]')
        e.label('L_pc')
        e('v_lshlrev_b32 v12, 7, v0')
        e('v_min_u32 v12, L_end-L_pc, v12')
        e('v_mov_b32 v14, s60')
        e('v_mov_b32 v15, s61')
        e('v_add_co_u32 v14, vcc, v14, v12')
        e('v_lshrrev_b32 v13, 6, v0')
        e('v_and_b32 v%d, 63, v0' % vL)
        e('v_addc_co_u32 v15, vcc, 0, v15, vcc')
        e('v_readfirstlane_b32 s%d, v13' % sW)
        e('global_load_dword v%d, v[14:15], off' % (vU + 7), 'PF')
        e('s_and_b32 s%d, s2, 7' % sXCD)
        e('s_lshr_b32 s%d, s2, 3' % sIDX)
        e('s_lshr_b32 s%d, s%d, 4' % (sG, sIDX))
        e('s_lshl1_add_u32 s%d, s%d, s%d' % (sG, sXCD, sG))
        e('s_and_b32 s%d, s%d, 15' % (sS, sIDX))
        e('s_lshr_b32 s59, s%d, 2' % sS)
        e('s_mul_i32 s59, s59, 144')
        e('s_lshl4_add_u32 s59, s%d, s59' % sW)
        e('s_lshl_b32 s60, s59, 13')
        e('s_lshl_b32 s61, s%d, 9' % sG)
        e('s_add_u32 s60, s60, s61')
        e('s_and_b32 s61, s%d, 3' % sS)
        e('s_lshl_b32 s61, s61, 7')
        e('s_add_u32 s60, s60, s61')
        e('s_lshl_b32 s59, s59, 1')
        e('s_lshl_b32 s61, s%d, 24' % sG)
        e('s_lshl_b32 s62, s%d, 16' % sS)
        e('s_add_u32 s61, s61, s62')
        e('s_lshl_b32 s62, s%d, 13' % sW)
        e('s_add_u32 s61, s61, s62')
        e('s_add_u32 s61, s61, 0x%x' % (61440 * 256))
        vRHO, vC16, vXA, vXB, vXC, vQOFF = 12, 13, 14, 15, vU, vU + 1
        e('v_lshrrev_b32 v%d, 3, v%d' % (vRHO, vL))
        e('v_and_b32 v%d, 7, v%d' % (vC16, vL))
        e('v_lshlrev_b32 v%d, 4, v%d' % (vC16, vC16))
        e('v_lshlrev_b32 v%d, 4, v%d' % (vXA, vL))
        e('v_lshlrev_b32 v%d, 1, v%d' % (vXB, vL))
        e('v_lshl_add_u32 v%d, v%d, 2, s59' % (vXC, vRHO))
        e('v_lshl_add_u32 v%d, v%d, 14, v%d' % (vQOFF, vRHO, vC16))
        e('v_lshrrev_b32 v%d, 4, v%d' % (vKV, vL))
        e('v_and_b32 v%d, 0xf0, v%d' % (vU + 2, vXA))
        e('v_lshl_add_u32 v%d, v%d, 11, v%d' % (vKV, vKV, vU + 2))
        e('s_waitcnt lgkmcnt(0)')
        e('s_load_dword s%d, %s, 0' % (sT, sr(sWS)))
        vX = vW2 + 8
        e('global_load_dwordx4 %s, v%d, %s' % (vr(vX), vXA, sr(sX)), 'XA')
        e('global_load_ushort v%d, v%d, %s offset:1024' % (vX + 4, vXB, sr(sX)), 'XB')
        e('global_load_dword v%d, v%d, %s' % (vX + 5, vXC, sr(sX)), 'XC')
        self.add64(sQ0, sWQ, 's60')
        e('global_load_dwordx4 %s, v%d, %s nt' % (vr(vW2), vQOFF, sr(sQ0)), 'Q0')
        self.add64(sQ1, sQ0, '0x2000')
        e('global_load_dwordx4 %s, v%d, %s nt' % (vr(vW2 + 4), vQOFF, sr(sQ1)), 'Q1')
        self.add64(sKB, sK, 's61')
        self.add64(sVB, sV, 's61')
        e('s_cmp_eq_u32 s%d, 8' % sW)
        e('s_cbranch_scc1 L_w8_pre')
        snapA = e.snap()
        for t in range(cfg.nka):
            self.emit_item(self.kload(t))
        e.label('L_pre_join')
        self.ts(1)
        e('v_and_b32 v%d, 3, v%d' % (vU + 2, vL))
        e('v_lshlrev_b32 v%d, 4, v%d' % (vU + 2, vU + 2))
        e('v_mov_b32 v%d, 0xffff' % (vU + 4))
        e('v_mov_b32 v%d, 0' % (vU + 5))
        e('v_lshlrev_b64 %s, v%d, %s' % (vr(vU + 4, 2), vU + 2, vr(vU + 4, 2)))
        e('v_bfe_i32 v%d, v%d, 2, 1' % (vU + 2, vL))
        e('v_and_b32 v%d, v%d, v%d' % (vM + 2, vU + 4, vU + 2))
        e('v_and_b32 v%d, v%d, v%d' % (vM + 3, vU + 5, vU + 2))
        e('v_xor_b32 v%d, v%d, v%d' % (vM + 0, vU + 4, vM + 2))
        e('v_xor_b32 v%d, v%d, v%d' % (vM + 1, vU + 5, vM + 3))
        e('v_lshrrev_b32 v%d, 5, v%d' % (vDQ, vL))
        e('v_lshlrev_b32 v%d, 8, v%d' % (vDQ, vDQ))
        e('v_lshl_add_u32 v%d, v%d, 1, v%d' % (vDQ, vC16, vDQ))
        e('v_and_b32 v%d, 16, v%d' % (vU + 2, vL))
        e('s_lshl_b32 s59, s%d, 9' % sW)
        e('v_add3_u32 v%d, v%d, v%d, s59' % (vDQ, vDQ, vU + 2))
        e('s_mov_b32 s%d, 0x00ff00ff' % sVALID)
        e('s_mov_b32 s%d, 0xff00ff00' % (sVALID + 1))
        e('s_mov_b32 s%d, 0x01010101' % sL8)
        e('s_mov_b32 s%d, 0x01010101' % (sL8 + 1))
        e('s_mov_b32 s%d, %s' % (sLOG2E, f32(LOG2E)))
        e('s_mov_b32 s%d, 0x3f803f80' % sONES)
        vINV = vU + 6
        e('v_mov_b32 v%d, %s' % (vINV, f32(1.0 / 576)))
        e.wait_vm('XB')
        vS, vQ = vU + 2, vU + 3
        for k in range(5):
            e('v_dot2_f32_bf16 v%d, v%d, s%d, %s' % (vS, vX + k, sONES, '0' if k == 0 else 'v%d' % vS))
            e('v_dot2_f32_bf16 v%d, v%d, v%d, %s' % (vQ, vX + k, vX + k, '0' if k == 0 else 'v%d' % vQ))
        for d in (X1, X2, HM, MI):
            e('v_add_f32_dpp v%d, v%d, v%d %s' % (vS, vS, vS, d))
            e('v_add_f32_dpp v%d, v%d, v%d %s' % (vQ, vQ, vQ, d))
        for d in ('row_bcast:15 row_mask:0xa bank_mask:0xf', 'row_bcast:31 row_mask:0xc bank_mask:0xf'):
            e('v_add_f32_dpp v%d, v%d, v%d %s' % (vS, vS, vS, d))
            e('v_add_f32_dpp v%d, v%d, v%d %s' % (vQ, vQ, vQ, d))
        e('v_readlane_b32 s59, v%d, 63' % vS)
        e('v_readlane_b32 s60, v%d, 63' % vQ)
        e.wait_vm('XC')
        y0, y1 = vX, vX + 1
        e('v_lshlrev_b32 v%d, 16, v%d' % (y0, vX + 5))
        e('v_and_b32 v%d, 0xffff0000, v%d' % (y1, vX + 5))
        m, sd, r, t = vU + 2, vU + 3, vU + 4, vU + 5
        for x in self.ln_scalars('s59', 's60', vINV, m, sd, r, t):
            e(x)
        self.weave(self.ln_apply(y0, m, sd, r, vX + 2), self.ln_apply(y1, m, sd, r, vX + 3))
        e('v_cvt_pk_bf16_f32 v%d, v%d, v%d' % (y0, y0, y0))
        e('v_cvt_pk_bf16_f32 v%d, v%d, v%d' % (y1, y1, y1))
        A0, A1 = vT, vX + 4
        for x in self.a_ops_plain(A0, y0):
            e(x)
        for x in self.a_ops_plain(A1, y1):
            e(x)
        e.wait_vm('Q0')
        e(self.mfma(vD, A0, vW2, True))
        e.wait_vm('Q1')
        e(self.mfma(vD, A1, vW2 + 4, False))
        e('s_waitcnt lgkmcnt(0)')
        e('s_add_u32 s%d, s%d, 0x01010101' % (sT, sT))
        e('s_and_b32 s%d, s%d, 0xff' % (sT0, sT))
        e('s_bfe_u32 s%d, s%d, 0x80008' % (sT0 + 1, sT))
        e('s_bfe_u32 s%d, s%d, 0x80010' % (sT0 + 2, sT))
        e('s_lshr_b32 s%d, s%d, 24' % (sT0 + 3, sT))
        e('s_mov_b64 exec, %s' % sr(sVALID))
        e('ds_write_b128 v%d, %s offset:%d' % (vDQ, vr(vD), L_QPART))
        e('s_mov_b64 exec, -1')
        self.ts(2)
        self.barrier()
        e('s_cmp_eq_u32 s%d, 8' % sW)
        e('s_cbranch_scc1 L_comm')
        snapB1 = e.snap()

        for t in range(cfg.nka, 8):
            self.emit_item(self.kload(t))
        for t in range(cfg.nvb):
            self.emit_item(self.vload(t))
        vQA, vMXA, vLPA = vU, vU + 1, vU + 2
        e('v_and_b32 v%d, 8, v%d' % (vMXA, vL))
        e('v_lshlrev_b32 v%d, 5, v%d' % (vQA, vMXA))
        e('v_and_b32 v%d, 0xf0, v%d' % (vU + 3, vKV))
        e('v_add_u32 v%d, v%d, v%d' % (vQA, vQA, vU + 3))
        e('v_xor_b32 v%d, 0x100, v%d' % (vU + 3, vQA))
        e('v_lshlrev_b32 v%d, 4, v%d' % (vLPA, vMXA))
        e('v_lshrrev_b32 v%d, 1, v%d' % (vMXA, vMXA))
        e('v_lshrrev_b32 v%d, 4, v%d' % (vU + 4, vL))
        e('v_lshl_add_u32 v%d, v%d, 2, v%d' % (vLPA, vU + 4, vLPA))
        e('s_lshl_b32 s59, s%d, 4' % sW)
        e('v_add_u32 v%d, s59, v%d' % (vLPA, vLPA))
        vSCL = vU + 4
        e('v_mov_b32 v%d, %s' % (vSCL, f32(SCALE)))
        self.ts(3)
        e('s_barrier')
        e('ds_read_b128 %s, v%d offset:%d' % (vr(vQO), vQA, L_QL))
        e('ds_read_b128 %s, v%d offset:%d' % (vr(vQX), vU + 3, L_QL))
        self.ts(4)
        e('s_waitcnt lgkmcnt(0)')
        vnext = cfg.nvb
        prevR = []
        for t in range(8):
            a, b = vSC + t, (vT + (t & 1))
            D = [('wait', 'K%d' % t)]
            for k in range(4):
                D.append('v_dot2_f32_bf16 v%d, v%d, v%d, %s' % (a, vKt + 4 * t + k, vQO + k, '0' if k == 0 else 'v%d' % a))
                D.append('v_dot2_f32_bf16 v%d, v%d, v%d, %s' % (b, vKt + 4 * t + k, vQX + k, '0' if k == 0 else 'v%d' % b))
            if t in cfg.vq and vnext < 8:
                D.append(self.vload(vnext))
                vnext += 1
            self.weave(prevR, D)
            prevR = [
                'v_add_f32_dpp v%d, v%d, v%d %s' % (a, b, a, ROR(8)),
                'v_add_f32_dpp v%d, v%d, v%d %s' % (a, a, a, X1),
                'v_add_f32_dpp v%d, v%d, v%d %s' % (a, a, a, X2),
                'v_add_f32_dpp v%d, v%d, v%d %s' % (a, a, a, HM),
                self.rnd(a, a),
                'v_mul_f32 v%d, v%d, v%d' % (a, a, vSCL),
                self.rnd(a, a),
            ]
        mx = vT + 2
        pre = ['v_max3_f32 v%d, v%d, v%d, v%d' % (mx, vSC, vSC + 1, vSC + 2),
               'v_max3_f32 v%d, v%d, v%d, v%d' % (mx, mx, vSC + 3, vSC + 4),
               'v_max3_f32 v%d, v%d, v%d, v%d' % (mx, mx, vSC + 5, vSC + 6)]
        self.weave(prevR, pre)
        e('v_max_f32 v%d, v%d, v%d' % (mx, mx, vSC + 7))
        e('s_mov_b64 exec, %s' % sr(sL8))
        e('ds_max_f32 v%d, v%d offset:%d' % (vMXA, mx, L_MX))
        e('s_mov_b64 exec, -1')
        for _ in range(cfg.vm):
            if vnext < 8:
                self.emit_item(self.vload(vnext))
                vnext += 1
        self.ts(5)
        self.barrier()
        e('ds_read_b32 v%d, v%d offset:%d' % (mx, vMXA, L_MX))
        e('s_waitcnt lgkmcnt(0)')
        e('v_mul_f32 v%d, s%d, v%d' % (mx, sLOG2E, mx))
        for t in range(8):
            e('v_fma_f32 v%d, v%d, s%d, -v%d' % (vSC + t, vSC + t, sLOG2E, mx))
        for t in range(8):
            e('v_exp_f32 v%d, v%d' % (vSC + t, vSC + t))
        ls = vT
        e('v_add_f32 v%d, v%d, v%d' % (ls, vSC, vSC + 1))
        e('v_add_f32 v%d, v%d, v%d' % (ls + 1, vSC + 2, vSC + 3))
        e('v_add_f32 v%d, v%d, v%d' % (ls + 2, vSC + 4, vSC + 5))
        e('v_add_f32 v%d, v%d, v%d' % (ls + 3, vSC + 6, vSC + 7))
        e('v_add_f32 v%d, v%d, v%d' % (ls, ls, ls + 1))
        e('v_add_f32 v%d, v%d, v%d' % (ls + 2, ls + 2, ls + 3))
        e('v_add_f32 v%d, v%d, v%d' % (ls, ls, ls + 2))
        e('s_mov_b64 exec, %s' % sr(sL8))
        e('ds_write_b32 v%d, v%d offset:%d' % (vLPA, ls, L_LP))
        e('s_mov_b64 exec, -1')
        while vnext < 8:
            self.emit_item(self.vload(vnext))
            vnext += 1
        self.barrier()
        for t in range(8):
            e('v_cvt_pk_bf16_f32 v%d, v%d, v%d' % (vSC + t, vSC + t, vSC + t))
        for t in range(8):
            for x in self.a_ops_plain(vKt + 4 * t, vSC + t):
                e(x)
        vOPA = vU
        e('s_lshl_b32 s59, s%d, 10' % sW)
        e('v_lshl_add_u32 v%d, v%d, 4, s59' % (vOPA, vL))
        self.ts(6)
        e('s_cmp_lt_u32 s%d, 18' % sIDX)
        e('s_cbranch_scc1 L_wo')
        e('s_cmp_lt_u32 s%d, 27' % sIDX)
        e('s_cbranch_scc1 L_mlp')
        snapR = e.snap()

        def pv(extra=()):
            extra = list(extra)
            for t in range(8):
                e.wait_vm('V%d' % t)
                e(self.mfma(vD, vKt + 4 * t, vVt + 4 * t, t == 0))
                if extra:
                    for it in extra.pop(0):
                        self.emit_item(it)
            for ex in extra:
                for it in ex:
                    self.emit_item(it)
            e('ds_write_b128 v%d, %s offset:%d' % (vOPA, vr(vD), L_OPART))
            self.ts(7)
            self.barrier()

        pv()
        self.ts_store()
        e('s_endpgm')

        e.restore(snapR)
        e.label('L_wo')
        self.wo_ids()
        vWO = vU + 1
        e('v_lshrrev_b32 v%d, 3, v%d' % (vU + 2, vL))
        e('v_and_b32 v%d, 0x70, v%d' % (vWO, vKV))
        e('v_mov_b32 v%d, 4608' % (vU + 3))
        e('v_mad_u32_u24 v%d, v%d, v%d, v%d' % (vWO, vU + 2, vU + 3, vWO))
        e('s_lshl_b32 s59, s%d, 3' % sGP)
        e('s_add_u32 s59, s59, s%d' % sW)
        e('s_mul_i32 s59, s59, %d' % (32 * 1152))
        e('s_lshl_b32 s60, s%d, 7' % sC)
        e('s_add_u32 s59, s59, s60')
        self.add64(sA, sWO, 's59')
        for j in range(4):
            e('global_load_dwordx4 %s, v%d, %s offset:%d nt' % (vr(vW1 + 4 * j), vWO, sr(sA), 1152 * j), 'W%d' % j)
        vP0, vP1, vFA = vU + 1, vU + 2, vU + 3
        e('v_and_b32 v%d, 0xf0, v%d' % (vFA, vKV))
        e('v_lshl_add_u32 v%d, v%d, 8, v%d' % (vU + 2, vU + 2, vFA))
        e('s_lshl_b32 s59, s%d, 14' % sGP)
        e('s_lshl_b32 s60, s%d, 11' % sW)
        e('s_add_u32 s59, s59, s60')
        e('s_add_u32 s59, s59, 0x%x' % WS_OP)
        e('v_add_u32 v%d, s59, v%d' % (vP0, vU + 2))
        e('v_xor_b32 v%d, 0x80, v%d' % (vP1, vP0))
        e('s_lshr_b32 s59, s%d, 2' % sW)
        e('s_lshl_b32 s59, s59, 6')
        e('v_lshrrev_b32 v%d, 2, v%d' % (vFA, vFA))
        e('v_add_u32 v%d, s59, v%d' % (vFA, vFA))
        pv()
        f0, f1 = vU + 4, vU + 5
        e('ds_read_b32 v%d, v%d offset:%d' % (f0, vFA, L_F))
        self.spin_begin('L_wo_poll')
        e('global_load_dwordx4 %s, v%d, %s sc1' % (vr(vVt), vP0, sr(sWS)))
        e('global_load_dwordx4 %s, v%d, %s sc1' % (vr(vVt + 4), vP1, sr(sWS)))
        e('s_waitcnt vmcnt(0) lgkmcnt(0)')
        e.vm = []
        self.strip(vVt, 2, vT)
        self.spin_end('L_wo_poll', vT)
        self.ts(8)
        e('v_mov_b32_dpp v%d, v%d %s' % (f1, f0, ROR(8)))
        for c in range(4):
            e('v_mul_f32 v%d, v%d, v%d' % (vVt + c, vVt + c, f0))
        for c in range(4):
            e('v_fmac_f32 v%d, v%d, v%d' % (vVt + c, vVt + 4 + c, f1))
        for d in (X1, X2, HM):
            for c in range(4):
                e('v_add_f32_dpp v%d, v%d, v%d %s' % (vVt + c, vVt + c, vVt + c, d))
        for c in range(4):
            e('v_cvt_pk_bf16_f32 v%d, v%d, v%d' % (vVt + c, vVt + c, vVt + c))
        for x in self.a_ops_plain(vKt, vVt):
            e(x)
        for j in range(4):
            if j + 1 < 4:
                for x in self.a_ops_plain(vKt + 4 * (j + 1), vVt + j + 1):
                    e(x)
            e(self.mfma(vD, vKt + 4 * j, vW1 + 4 * j, j == 0))
        e('s_mov_b64 exec, %s' % sr(sVALID))
        e('ds_write_b128 v%d, %s offset:%d' % (vDQ, vr(vD), L_QPART))
        e('s_mov_b64 exec, -1')
        self.ts(9)
        self.barrier()
        self.ts_store()
        e('s_endpgm')

        e.restore(snapR)
        e.label('L_mlp')
        self.mlp_setup()
        loads = self.mlp_loads()
        for it in loads[:cfg.mw0]:
            for x in it:
                self.emit_item(x)
        pv(loads[cfg.mw0:])
        e('s_branch L_mlp2')
        snapM = e.snap()

        e.restore(snapA)
        e.label('L_w8_pre')
        vFX, vFB, vB1 = 16, 17, 156
        e('s_mul_i32 s59, s%d, 18' % sXCD)
        e('s_add_u32 s59, s59, s%d' % sIDX)
        e('s_min_u32 s59, s59, 143')
        e('s_lshl_b32 s59, s59, 3')
        e('v_lshrrev_b32 v19, 5, v%d' % vL)
        e('v_bfe_u32 v20, v%d, 4, 1' % vL)
        e('v_lshl_add_u32 v19, v20, 1, v19')
        e('v_lshl_add_u32 v19, v19, 1, s59')
        e('global_load_ushort v%d, v19, %s' % (vFX, sr(sX)), 'K0')
        e('global_load_ushort v%d, v19, %s' % (vFB, sr(sB2)), 'K1')
        e('s_mul_i32 s59, s%d, 9' % sXCD)
        e('s_add_u32 s59, s59, s%d' % sIDX)
        e('s_sub_u32 s59, s59, 18')
        e('s_min_u32 s59, s59, 71')
        e('s_lshl_b32 s59, s59, 7')
        e('v_add_u32 v20, s59, v%d' % vXB)
        e('global_load_ushort v%d, v20, %s' % (vB1, sr(sB1)), 'K2')
        for t in range(3, cfg.nka):
            e('global_load_ushort v21, v20, %s' % sr(sB1), 'K%d' % t)
        e('v_mov_b32 v20, 0')
        e('v_mov_b32 v21, 0xff800000')
        e('v_lshlrev_b32 v22, 2, v%d' % vL)
        e('ds_write2st64_b32 v22, v20, v20 offset0:%d offset1:%d' % (L_ST1 // 256, L_ST1 // 256 + 1))
        e('ds_write2st64_b32 v22, v20, v20 offset0:%d offset1:%d' % (L_ST2 // 256, L_ST2 // 256 + 1))
        e('ds_write_b32 v22, v21 offset:%d' % L_MX)
        e('s_branch L_pre_join')

        e.restore(snapB1)
        e.label('L_comm')
        vA = 24
        vMASK = 23
        e('v_lshlrev_b32 v%d, 3, v%d' % (vA, vL))
        for i in range(4):
            e('ds_read2_b64 %s, v%d offset0:%d offset1:%d' % (vr(32 + 4 * i), vA, 64 * i, 64 * i + 32))
        e('v_add_u32 v25, 0x800, v%d' % vA)
        for i in range(4):
            e('ds_read2_b64 %s, v25 offset0:%d offset1:%d' % (vr(48 + 4 * i), 64 * i, 64 * i + 32))
        e('v_add_u32 v25, 0x1000, v%d' % vA)
        e('ds_read2_b64 %s, v25 offset0:0 offset1:32' % vr(64))
        e('v_mov_b32 v%d, 0xffffff00' % vMASK)
        e('s_lshl_b32 s59, s%d, 13' % sG)
        e('s_lshl_b32 s60, s%d, 9' % sS)
        e('s_add_u32 s60, s60, s59')
        e('s_add_u32 s60, s60, 0x%x' % WS_QP)
        e('s_add_u32 s59, s59, 0x%x' % WS_QP)
        e('v_lshl_add_u32 v26, v%d, 4, s60' % vL)
        e('v_lshl_add_u32 v27, v%d, 4, s59' % vL)
        e('v_add_u32 v28, 0x1000, v27')
        e('s_waitcnt lgkmcnt(0)')
        n = 18
        regs = [32 + 2 * i for i in range(n)]
        while len(regs) > 1:
            nxt = []
            for i in range(0, len(regs) - 1, 2):
                e('v_pk_add_f32 %s, %s, %s' % (vr(regs[i], 2), vr(regs[i], 2), vr(regs[i + 1], 2)))
                nxt.append(regs[i])
            if len(regs) & 1:
                nxt.append(regs[-1])
            regs = nxt
        e('v_mov_b32 v34, s%d' % sT)
        e('v_mov_b32 v35, s%d' % sT)
        e('s_mov_b32 exec_hi, 0')
        e('global_store_dwordx4 v26, %s, %s sc1' % (vr(32), sr(sWS)))
        e('s_mov_b64 exec, -1')
        self.ts(3)
        self.spin_begin('L_q_poll')
        for r_ in range(4):
            for h in range(2):
                off = (r_ & 1) * 2048 + h * 1024
                e('global_load_dwordx4 %s, v%d, %s offset:%d sc1' % (vr(48 + 8 * r_ + 4 * h), 27 + (r_ >> 1), sr(sWS), off))
        e.wait_vm0()
        e('v_xor_b32 v25, s%d, v50' % sT)
        for k in range(1, 8):
            e('v_bitop3_b32 v25, v25, v%d, s%d bitop3:0xf6' % (50 + 4 * k, sT))
        self.spin_end('L_q_poll', 25, bytemask=False)
        for h in range(2):
            b = 48 + 4 * h
            e('v_pk_add_f32 %s, %s, %s' % (vr(b, 2), vr(b, 2), vr(b + 8, 2)))
            e('v_pk_add_f32 %s, %s, %s' % (vr(b + 16, 2), vr(b + 16, 2), vr(b + 24, 2)))
        for h in range(2):
            b = 48 + 4 * h
            e('v_pk_add_f32 %s, %s, %s' % (vr(b, 2), vr(b, 2), vr(b + 16, 2)))
        e('v_cvt_pk_bf16_f32 v48, v48, v49')
        e('v_cvt_pk_bf16_f32 v52, v52, v53')
        e('v_lshlrev_b32 v22, 2, v%d' % vL)
        e('ds_write2st64_b32 v22, v48, v52 offset0:%d offset1:%d' % (L_QL // 256, L_QL // 256 + 1))
        self.ts(4)
        self.barrier()
        e('v_lshrrev_b32 v24, 5, v%d' % vL)
        e('v_lshlrev_b32 v24, 13, v24')
        e('v_and_b32 v25, 15, v%d' % vL)
        e('v_lshl_add_u32 v24, v25, 9, v24')
        e('v_bfe_u32 v25, v%d, 4, 1' % vL)
        e('v_lshl_add_u32 v24, v25, 8, v24')
        e('s_lshl_b32 s59, s%d, 14' % sG)
        e('s_lshl4_add_u32 s59, s%d, s59' % sS)
        e('s_add_u32 s59, s59, 0x%x' % WS_OP)
        e('v_add_u32 v24, s59, v24')
        e('v_lshlrev_b32 v25, 4, v%d' % vL)
        e('s_lshl_b32 s59, s%d, 8' % sG)
        e('s_lshl4_add_u32 s59, s%d, s59' % sS)
        e('s_add_u32 s59, s59, 0x%x' % WS_ML)
        e('v_mov_b32 v26, s59')
        e('s_barrier')
        e('s_barrier')
        e('ds_read_b32 v33, v22 offset:%d' % L_LP)
        e('v_mov_b32 v27, 0')
        e('ds_read_b64 v[36:37], v27 offset:%d' % L_MX)
        e('s_waitcnt lgkmcnt(0)')
        for d in (X1, X2, HM, MI, 'row_bcast:15 row_mask:0xa bank_mask:0xf'):
            e('v_add_f32_dpp v33, v33, v33 %s' % d)
        e('v_readlane_b32 s59, v33, 31')
        e('v_readlane_b32 s60, v33, 63')
        e('v_mov_b32 v32, v36')
        e('v_mov_b32 v34, v37')
        e('v_mov_b32 v33, s59')
        e('v_mov_b32 v35, s60')
        self.tag(32, vMASK)
        e('s_mov_b64 exec, 1')
        e('global_store_dwordx4 v26, %s, %s sc1' % (vr(32), sr(sWS)))
        e('s_mov_b64 exec, -1')
        self.ts(5)
        e('s_cmp_lt_u32 s%d, 18' % sIDX)
        e('s_cbranch_scc1 L_c_wo')
        e('s_cmp_lt_u32 s%d, 27' % sIDX)
        e('s_cbranch_scc1 L_c_mlp')
        snapC = e.snap()

        def op_publish():
            e('s_barrier')
            self.ts(6)
            for w in range(8):
                e('ds_read_b128 %s, v25 offset:%d' % (vr(32 + 4 * w), L_OPART + 1024 * w))
            for st in (1, 2, 4):
                for w in range(0, 8, 2 * st):
                    if st == 1:
                        e('s_waitcnt lgkmcnt(%d)' % (0 if self.cfg.diag else 6 - w))
                    for hh in (0, 2):
                        e('v_pk_add_f32 %s, %s, %s' % (vr(32 + 4 * w + hh, 2), vr(32 + 4 * w + hh, 2), vr(32 + 4 * (w + st) + hh, 2)))
            self.tag(32, vMASK)
            e('global_store_dwordx4 v24, %s, %s sc1' % (vr(32), sr(sWS)))
            self.ts(7)

        op_publish()
        self.ts_store()
        e('s_endpgm')

        e.restore(snapC)
        e.label('L_c_wo')
        self.wo_ids()
        e('v_and_b32 v27, 15, v%d' % vL)
        e('s_lshl_b32 s59, s%d, 8' % sGP)
        e('s_add_u32 s59, s59, 0x%x' % WS_ML)
        e('v_lshl_add_u32 v26, v27, 4, s59')
        e('v_lshlrev_b32 v27, 2, v27')
        self.spin_begin('L_ml_poll')
        e('global_load_dwordx4 %s, v26, %s sc1' % (vr(40), sr(sWS)))
        e.wait_vm0()
        self.strip(40, 1, 44)
        self.spin_end('L_ml_poll', 44)
        e('v_mov_b32 v44, v40')
        e('v_mov_b32 v45, v42')
        for d in (X1, X2, HM, MI):
            e('v_max_f32_dpp v44, v44, v44 %s' % d)
            e('v_max_f32_dpp v45, v45, v45 %s' % d)
        e('v_sub_f32 v40, v40, v44')
        e('v_sub_f32 v42, v42, v45')
        e('v_mul_f32 v40, s%d, v40' % sLOG2E)
        e('v_mul_f32 v42, s%d, v42' % sLOG2E)
        e('v_exp_f32 v40, v40')
        e('v_exp_f32 v42, v42')
        e('v_mul_f32 v41, v41, v40')
        e('v_mul_f32 v43, v43, v42')
        for d in (X1, X2, HM, MI):
            e('v_add_f32_dpp v41, v41, v41 %s' % d)
            e('v_add_f32_dpp v43, v43, v43 %s' % d)
        e('v_rcp_f32 v41, v41')
        e('v_rcp_f32 v43, v43')
        e('v_mul_f32 v40, v40, v41')
        e('v_mul_f32 v42, v42, v43')
        e('ds_write_b32 v27, v40 offset:%d' % L_F)
        e('ds_write_b32 v27, v42 offset:%d' % (L_F + 64))
        e('v_lshrrev_b32 v26, 2, v%d' % vL)
        e('v_and_b32 v27, 3, v%d' % vL)
        e('v_lshlrev_b32 v28, 4, v26')
        e('v_lshl_add_u32 v28, v27, 8, v28')
        e('s_lshl_b32 s59, s%d, 12' % sC)
        e('s_lshr_b32 s60, s%d, 2' % sGP)
        e('s_lshl_b32 s60, s60, 10')
        e('s_add_u32 s59, s59, s60')
        e('s_and_b32 s60, s%d, 3' % sGP)
        e('s_lshl4_add_u32 s59, s60, s59')
        e('s_add_u32 s59, s59, 0x%x' % WS_HP)
        e('v_lshl_add_u32 v29, v26, 6, s59')
        e('s_lshr_b32 s59, s%d, 4' % sID)
        e('s_lshl_b32 s59, s59, 12')
        e('s_and_b32 s60, s%d, 15' % sID)
        e('s_lshl_b32 s60, s60, 6')
        e('s_add_u32 s59, s59, s60')
        e('s_add_u32 s59, s59, 0x%x' % WS_HP)
        e('v_and_b32 v26, 3, v26')
        e('v_lshlrev_b32 v26, 4, v26')
        e('v_lshl_add_u32 v26, v27, 10, v26')
        e('v_add_u32 v26, s59, v26')
        e('s_mul_i32 s59, s%d, 1152' % sID)
        e('s_add_u32 s59, s59, 0x%x' % WS_FP)
        e('v_add_u32 v27, s59, v25')
        e('v_and_b32 v30, 0x70, v25')
        e('v_add_u32 v30, s59, v30')
        e('v_lshlrev_b32 v%d, 16, v%d' % (vFX, vFX))
        e('v_lshlrev_b32 v%d, 16, v%d' % (vFB, vFB))
        e('s_waitcnt lgkmcnt(0)')
        op_publish()
        e('s_barrier')
        self.ts(8)
        for k in range(4):
            e('ds_read_b128 %s, v28 offset:%d' % (vr(40 + 4 * k), L_QPART + 1024 * k))
        e('s_waitcnt lgkmcnt(%d)' % (0 if self.cfg.diag else 2))
        for hh in (0, 2):
            e('v_pk_add_f32 %s, %s, %s' % (vr(40 + hh, 2), vr(40 + hh, 2), vr(44 + hh, 2)))
        e('s_waitcnt lgkmcnt(0)')
        for hh in (0, 2):
            e('v_pk_add_f32 %s, %s, %s' % (vr(48 + hh, 2), vr(48 + hh, 2), vr(52 + hh, 2)))
        for hh in (0, 2):
            e('v_pk_add_f32 %s, %s, %s' % (vr(40 + hh, 2), vr(40 + hh, 2), vr(48 + hh, 2)))
        for d in (X1, X2):
            for c in range(4):
                e('v_add_f32_dpp v%d, v%d, v%d %s' % (40 + c, 40 + c, 40 + c, d))
        self.tag(40, vMASK)
        e('s_mov_b32 s60, 0x11111111')
        e('s_mov_b32 s61, 0x11111111')
        e('s_mov_b64 exec, s[60:61]')
        e('global_store_dwordx4 v29, %s, %s sc1' % (vr(40), sr(sWS)))
        e('s_mov_b64 exec, -1')
        self.ts(9)
        self.spin_begin('L_fh_poll')
        e('global_load_dwordx4 %s, v26, %s sc1' % (vr(48), sr(sWS)))
        e.wait_vm0()
        self.strip(48, 1, 52)
        self.spin_end('L_fh_poll', 52)
        self.ts(10)
        ident = 'quad_perm:[0,1,2,3] row_mask:0x%x bank_mask:0xf'
        e('v_mov_b32_dpp v48, v50 %s' % (ident % 2))
        e('v_mov_b32_dpp v48, v49 %s' % (ident % 4))
        e('v_mov_b32_dpp v48, v51 %s' % (ident % 8))
        for d in (X1, X2, ROR(8), ROR(4)):
            e('v_add_f32_dpp v48, v48, v48 %s' % d)
        e(self.rnd(48, 48))
        e('v_add_f32 v48, v48, v%d' % vFX)
        e(self.rnd(vFX, 48))
        self.spin_begin('L_ff_poll')
        e('global_load_dwordx4 %s, v27, %s sc1' % (vr(48), sr(sWS)))
        e('global_load_dwordx4 %s, v30, %s offset:1024 sc1' % (vr(52), sr(sWS)))
        e.wait_vm0()
        self.strip(48, 2, 56)
        self.spin_end('L_ff_poll', 56)
        self.ts(11)
        e('s_mov_b32 exec_lo, 0xff')
        e('s_mov_b32 exec_hi, 0')
        for hh in (0, 2):
            e('v_pk_add_f32 %s, %s, %s' % (vr(48 + hh, 2), vr(48 + hh, 2), vr(52 + hh, 2)))
        e('s_mov_b64 exec, -1')
        e('v_permlane32_swap_b32 v48, v49')
        e('v_permlane32_swap_b32 v50, v51')
        e('v_add_f32 v48, v48, v49')
        e('v_add_f32 v50, v50, v51')
        e('v_permlane16_swap_b32 v48, v50')
        e('v_add_f32 v48, v48, v50')
        for d in (X1, X2, HM, MI):
            e('v_add_f32_dpp v48, v48, v48 %s' % d)
        e(self.rnd(48, 48))
        e('v_add_f32 v48, v48, v%d' % vFB)
        e(self.rnd(48, 48))
        e('v_add_f32 v48, v48, v%d' % vFX)
        e('v_cvt_pk_bf16_f32 v48, v48, v48')
        e('s_mov_b32 s60, 0x00010001')
        e('s_mov_b32 s61, 0x00010001')
        e('s_mov_b64 exec, s[60:61]')
        e('global_store_short v19, v48, %s' % sr(sOUT))
        e('s_cmp_lg_u32 s%d, 0' % sID)
        e('s_cbranch_scc1 L_c_wo_done')
        e('s_mov_b64 exec, 1')
        e('v_mov_b32 v49, 0')
        e('v_mov_b32 v50, s%d' % sT)
        e('global_store_dword v49, v50, %s sc1' % sr(sWS))
        e.label('L_c_wo_done')
        e('s_mov_b64 exec, -1')
        self.ts(12)
        self.ts_store()
        e('s_endpgm')

        e.restore(snapC)
        e.label('L_c_mlp')
        self.mlp_setup()
        loads = self.mlp_loads()
        for it in loads[:cfg.cw0]:
            for x in it:
                self.emit_item(x)
        op_publish()
        for it in loads[cfg.cw0:]:
            for x in it:
                self.emit_item(x)

        e.label('L_mlp2')
        e.restore(immediate_unknown(e))
        vP = vVt
        self.spin_begin('L_hp_poll')
        for u in range(4):
            e('global_load_dwordx4 %s, v%d, %s offset:%d sc1' % (vr(vP + 4 * u), vHPA, sr(sWS), 1024 * u))
        e.wait_vm0()
        self.strip(vP, 4, vT)
        self.spin_end('L_hp_poll', vT)
        self.ts(8)
        e('v_and_b32 v%d, 0xffff0000, v%d' % (vHX + 1, vHX))
        e('v_lshlrev_b32 v%d, 16, v%d' % (vHX, vHX))
        for hh in (0, 2):
            e('v_pk_add_f32 %s, %s, %s' % (vr(vP + hh, 2), vr(vP + hh, 2), vr(vP + 4 + hh, 2)))
            e('v_pk_add_f32 %s, %s, %s' % (vr(vP + 8 + hh, 2), vr(vP + 8 + hh, 2), vr(vP + 12 + hh, 2)))
        for hh in (0, 2):
            e('v_pk_add_f32 %s, %s, %s' % (vr(vP + hh, 2), vr(vP + hh, 2), vr(vP + 8 + hh, 2)))
        for c in range(4):
            e('v_add_f32_dpp v%d, v%d, v%d %s' % (vP + c, vP + c, vP + c, X2))
        e('v_cndmask_b32 v%d, v%d, v%d, %s' % (vP, vP, vP + 2, sr(sBIT1)))
        e('v_cndmask_b32 v%d, v%d, v%d, %s' % (vP + 1, vP + 1, vP + 3, sr(sBIT1)))
        y0, y1 = vP, vP + 1
        e('v_add_f32_dpp v%d, v%d, v%d %s' % (y0, y0, y0, X1))
        e('v_add_f32_dpp v%d, v%d, v%d %s' % (y1, y1, y1, X1))
        e(self.rnd(y0, y0))
        e(self.rnd(y1, y1))
        e('v_add_f32 v%d, v%d, v%d' % (y0, y0, vHX))
        e('v_add_f32 v%d, v%d, v%d' % (y1, y1, vHX + 1))
        for ln, lst in ((0, L_ST1), (1, L_ST2)):
            e(self.rnd(y0, y0))
            e(self.rnd(y1, y1))
            z, z2 = vP + 2, vP + 3
            e('v_add_f32 v%d, v%d, v%d' % (z, y0, y1))
            e('v_mul_f32 v%d, v%d, v%d' % (z2, y0, y0))
            e('v_fmac_f32 v%d, v%d, v%d' % (z2, y1, y1))
            e('v_cndmask_b32 v%d, v%d, v%d, %s' % (z, z, z2, sr(sBIT0)))
            for d in (X2, ROR(4), ROR(8)):
                e('v_add_f32_dpp v%d, v%d, v%d %s' % (z, z, z, d))
            e('s_mov_b64 exec, %s' % sr(sL2))
            e('ds_write_b32 v%d, v%d offset:%d' % (vSTW, z, lst))
            e('s_mov_b64 exec, -1')
            self.barrier()
            e('ds_read_b128 %s, v%d offset:%d' % (vr(vP + 4), vSTR, lst))
            e('ds_read_b128 %s, v%d offset:%d' % (vr(vP + 8), vSTR, lst + 16))
            e('s_waitcnt lgkmcnt(0)')
            e('v_pk_add_f32 %s, %s, %s' % (vr(vP + 4, 2), vr(vP + 4, 2), vr(vP + 8, 2)))
            e('v_pk_add_f32 %s, %s, %s' % (vr(vP + 6, 2), vr(vP + 6, 2), vr(vP + 10, 2)))
            e('v_pk_add_f32 %s, %s, %s' % (vr(vP + 4, 2), vr(vP + 4, 2), vr(vP + 6, 2)))
            e('v_add_f32 v%d, v%d, v%d' % (z, vP + 4, vP + 5))
            for d in (X2, ROR(4), ROR(8)):
                e('v_add_f32_dpp v%d, v%d, v%d %s' % (z, z, z, d))
            e('v_mov_b32_dpp v%d, v%d quad_perm:[1,1,3,3] %s' % (z2, z, DPP))
            e('v_mov_b32_dpp v%d, v%d quad_perm:[0,0,2,2] %s' % (z, z, DPP))
            m, sd, r, t = vP + 4, vP + 5, vP + 6, vP + 7
            for x in self.ln_scalars('v%d' % z, 'v%d' % z2, vINVM, m, sd, r, t):
                e(x)
            self.weave(self.ln_apply(y0, m, sd, r, vP + 8), self.ln_apply(y1, m, sd, r, vP + 9))
        e('v_cvt_pk_bf16_f32 v%d, v%d, v%d' % (y0, y0, y0))
        e('v_cvt_pk_bf16_f32 v%d, v%d, v%d' % (y1, y1, y1))
        self.ts(9)
        self.gemv8(y0, y1, vW1)
        e('s_mov_b64 exec, %s' % sr(sVALID))
        e('ds_write_b128 v%d, %s offset:%d' % (vDQ, vr(vD), L_QPART))
        e('s_mov_b64 exec, -1')
        self.barrier()
        self.ts(10)
        e('s_cmp_lg_u32 s%d, 8' % sW)
        e('s_cbranch_scc1 L_mlp3')
        snapG = e.snap()
        e('v_lshlrev_b32 v157, 2, v%d' % vL)
        for i in range(9):
            e('ds_read2st64_b32 %s, v157 offset0:%d offset1:%d' % (vr(vP + 2 * i, 2), 2 * i, 2 * i + 1))
        e('v_lshlrev_b32 v%d, 16, v%d' % (vB1, vB1))
        c1 = -2.0 * LOG2E * 0.7978845608028654
        e('v_mov_b32 v158, %s' % f32(c1 * 0.044715))
        e('s_waitcnt lgkmcnt(0)')
        regs = [vP + 2 * i for i in range(9)]
        while len(regs) > 1:
            nxt = []
            for i in range(0, len(regs) - 1, 2):
                e('v_pk_add_f32 %s, %s, %s' % (vr(regs[i], 2), vr(regs[i], 2), vr(regs[i + 1], 2)))
                nxt.append(regs[i])
            if len(regs) & 1:
                nxt.append(regs[-1])
            regs = nxt
        u = vP
        e('v_add_f32 v%d, v%d, v%d' % (u, vP, vP + 1))
        e(self.rnd(u, u))
        e('v_add_f32 v%d, v%d, v%d' % (u, u, vB1))
        e(self.rnd(u, u))
        e('v_mul_f32 v%d, v%d, v%d' % (u + 1, u, u))
        e('v_fmaak_f32 v%d, v%d, v158, %s' % (u + 1, u + 1, f32(c1)))
        e('v_mul_f32 v%d, v%d, v%d' % (u + 1, u + 1, u))
        e('v_exp_f32 v%d, v%d' % (u + 1, u + 1))
        e('v_add_f32 v%d, 1.0, v%d' % (u + 1, u + 1))
        e('v_rcp_f32 v%d, v%d' % (u + 1, u + 1))
        e('v_mul_f32 v%d, v%d, v%d' % (u, u, u + 1))
        e('v_cvt_pk_bf16_f32 v%d, v%d, v%d' % (u, u, u))
        e('ds_write_b32 v157, v%d offset:%d' % (u, L_H1))
        e('s_waitcnt lgkmcnt(0)')
        e.label('L_mlp3')
        e('s_barrier')
        e('ds_read_b64 %s, v%d offset:%d' % (vr(vP, 2), vH1A, L_H1))
        self.ts(11)
        e('v_mov_b32 v%d, 0xffffff00' % (vP + 8))
        e('s_waitcnt lgkmcnt(0)')
        self.gemv8(vP, vP + 1, vW2)
        for c in range(4):
            e('v_permlane32_swap_b32 v%d, v%d' % (vD + c, vP + 4 + c))
        for c in range(4):
            e('v_add_f32_dpp v%d, v%d, v%d %s' % (vD + c, vP + 4 + c, vD + c, ROR(8)))
        self.tag(vD, vP + 8)
        e('s_mov_b32 exec_lo, 0x00ff00ff')
        e('s_mov_b32 exec_hi, 0')
        e('global_store_dwordx4 v%d, %s, %s sc1' % (vFPA, vr(vD), sr(sWS)))
        e('s_mov_b64 exec, -1')
        self.ts(12)
        self.ts_store()
        e.label('L_end')
        e('s_endpgm')

        e.raw('.section .rodata,"a"')
        e.raw('.p2align 6')
        e.raw('.amdhsa_kernel %s' % K)
        e.raw('  .amdhsa_next_free_vgpr 168')
        e.raw('  .amdhsa_next_free_sgpr 102')
        e.raw('  .amdhsa_accum_offset 168')
        e.raw('  .amdhsa_group_segment_fixed_size 0')
        e.raw('  .amdhsa_kernarg_size 104')
        e.raw('  .amdhsa_user_sgpr_count 2')
        e.raw('  .amdhsa_user_sgpr_kernarg_segment_ptr 1')
        e.raw('  .amdhsa_system_sgpr_workgroup_id_x 1')
        e.raw('.end_amdhsa_kernel')
        return e.text()

    def wo_ids(self):
        e = self.e
        e('s_mul_i32 s%d, s%d, 18' % (sID, sXCD))
        e('s_add_u32 s%d, s%d, s%d' % (sID, sID, sIDX))
        e('s_cmp_ge_u32 s%d, 9' % sIDX)
        e('s_cselect_b32 s59, 1, 0')
        e('s_lshl1_add_u32 s%d, s%d, s59' % (sGP, sXCD))
        e('s_mul_i32 s59, s59, 9')
        e('s_sub_u32 s%d, s%d, s59' % (sC, sIDX))

    def mlp_setup(self):
        e = self.e
        e('s_mul_i32 s%d, s%d, 9' % (sID, sXCD))
        e('s_add_u32 s%d, s%d, s%d' % (sID, sID, sIDX))
        e('s_sub_u32 s%d, s%d, 18' % (sID, sID))
        rho, c16 = vMA, vMA + 1
        e('v_lshrrev_b32 v%d, 3, v%d' % (rho, vL))
        e('v_and_b32 v%d, 0x70, v%d' % (c16, vKV))
        e('v_mov_b32 v%d, %d' % (vW1O, 8 * 9216))
        e('v_mov_b32 v%d, %d' % (vW2O, 8 * 1152))
        e('v_mad_u32_u24 v%d, v%d, v%d, v%d' % (vW1O, rho, vW1O, c16))
        e('v_mad_u32_u24 v%d, v%d, v%d, v%d' % (vW2O, rho, vW2O, c16))
        e('s_mul_i32 s59, s%d, %d' % (sW, 64 * 9216))
        e('s_lshl_b32 s60, s%d, 7' % sID)
        e('s_add_u32 s59, s59, s60')
        self.add64(sA, sW1, 's59')
        e('s_mul_i32 s59, s%d, %d' % (sID, 64 * 1152))
        e('s_lshl_b32 s60, s%d, 7' % sW)
        e('s_add_u32 s59, s59, s60')
        e('s_add_u32 s59, s59, 4032')
        self.add64(sB, sW2, 's59')
        e('v_lshrrev_b32 v%d, 1, v%d' % (vH1A, vL))
        e('v_lshl_add_u32 v%d, v%d, 2, s60' % (vHX + 1, vH1A))
        e('global_load_dword v%d, v%d, %s' % (vHX, vHX + 1, sr(sX)), 'HX')
        e('v_lshlrev_b32 v%d, 3, v%d' % (vH1A, vH1A))
        e('s_lshl_b32 s59, s%d, 12' % sW)
        e('s_add_u32 s59, s59, 0x%x' % WS_HP)
        e('v_lshl_add_u32 v%d, v%d, 4, s59' % (vHPA, vL))
        e('v_and_b32 v%d, 1, v%d' % (vSTW, vL))
        e('v_lshlrev_b32 v%d, 8, v%d' % (vSTW, vSTW))
        e('v_bfe_u32 v%d, v%d, 1, 3' % (vSTR, vL))
        e('v_lshl_add_u32 v%d, v%d, 5, v%d' % (vSTR, vSTR, vSTW))
        e('v_lshrrev_b32 v%d, 4, v%d' % (rho, vL))
        e('v_lshl_add_u32 v%d, v%d, 2, v%d' % (vSTW, rho, vSTW))
        e('s_lshl_b32 s59, s%d, 4' % sW)
        e('v_add_u32 v%d, s59, v%d' % (vSTW, vSTW))
        e('v_and_b32 v%d, 1, v%d' % (rho, rho))
        e('v_lshrrev_b32 v%d, 3, v%d' % (c16, c16))
        e('v_add_u32 v%d, v%d, v%d' % (rho, rho, c16))
        e('s_mul_i32 s59, s%d, %d' % (sW, 16 * 1152))
        e('s_lshl4_add_u32 s59, s%d, s59' % sID)
        e('s_add_u32 s59, s59, 0x%x' % WS_FP)
        e('v_mov_b32 v%d, 1152' % vFPA)
        e('v_mad_u32_u24 v%d, v%d, v%d, s59' % (vFPA, rho, vFPA))
        e('v_mov_b32 v%d, %s' % (vINVM, f32(1.0 / 576)))
        e('s_mov_b32 s%d, 0xaaaaaaaa' % sBIT0)
        e('s_mov_b32 s%d, 0xaaaaaaaa' % (sBIT0 + 1))
        e('s_mov_b32 s%d, 0xcccccccc' % sBIT1)
        e('s_mov_b32 s%d, 0xcccccccc' % (sBIT1 + 1))
        e('s_mov_b32 s%d, 0x00030003' % sL2)
        e('s_mov_b32 s%d, 0x00030003' % (sL2 + 1))

    def mlp_loads(self):
        out = []
        for jj in range(8):
            it = [('load', 'global_load_dwordx4 %s, v%d, %s nt' % (vr(vW1 + 4 * jj), vW1O, sr(sA)), 'A%d' % jj)]
            if jj < 7:
                it.append('s_add_u32 s%d, s%d, 9216' % (sA, sA))
                it.append('s_addc_u32 s%d, s%d, 0' % (sA + 1, sA + 1))
            out.append(it)
        for jj in range(8):
            out.append([('load', 'global_load_dwordx4 %s, v%d, %s offset:%d nt' % (vr(vW2 + 4 * jj), vW2O, sr(sB), 1152 * jj - 4032), 'B%d' % jj)])
        return out


vW1O, vW2O, vHPA, vSTW, vSTR, vFPA, vH1A, vINVM = 144, 145, 146, 147, 148, 149, 150, 151
vHX = 152
vMA = 154
sBIT0, sBIT1, sL2 = 44, 46, 48


def immediate_unknown(e):
    return ([], [])


def main():
    ap = argparse.ArgumentParser()
    ap.add_argument('-o', default='cdna_kernels/%s.s' % NAME)
    ap.add_argument('--diag', type=int, default=0)
    ap.add_argument('--spin', type=int, default=0x2000)
    ap.add_argument('--nka', type=int, default=3)
    ap.add_argument('--nvb', type=int, default=2)
    ap.add_argument('--vq', type=str, default='1,3,5,7')
    ap.add_argument('--vm', type=int, default=1)
    ap.add_argument('--mw0', type=int, default=4)
    ap.add_argument('--cw0', type=int, default=4)
    ap.add_argument('--rorsign', type=int, default=1)
    cfg = ap.parse_args()
    cfg.vq = [int(x) for x in cfg.vq.split(',') if x != '']
    g = Gen(cfg)
    txt = g.build()
    open(cfg.o, 'w').write(txt)
    print('wrote', cfg.o, 'instructions', g.e.nins)


if __name__ == '__main__':
    main()
```

```python
import sys, struct, argparse
sys.path.insert(0, 'dev')
from emit import Em, Ins, need

NAME = 'sequential_preLN__sliding_block_cached__mixer_channel_mlp__decode'


def f32(x):
    return '0x%08x' % struct.unpack('<I', struct.pack('<f', x))[0]


WS_QP = 0x10000
WS_ML = 0x30000
WS_OP = 0x40000
WS_HP = 0x80000
WS_FP = 0x90000
WS_TS = 0x100000

L_QPART = 0x0000
L_QL = 0x1200
L_MX = 0x1400
L_LP = 0x1500
L_F = 0x1600
L_ST1 = 0x1700
L_ST2 = 0x1900
L_H1 = 0x1B00
L_OPART = 0x2000
LDS_SIZE = 0x4000

LOG2E = 1.4426950408889634
SCALE = 128 ** -0.5

DPP = 'row_mask:0xf bank_mask:0xf'
X1 = 'quad_perm:[1,0,3,2] ' + DPP
X2 = 'quad_perm:[2,3,0,1] ' + DPP
HM = 'row_half_mirror ' + DPP
MI = 'row_mirror ' + DPP


def ROR(n):
    return 'row_ror:%d %s' % (n, DPP)


def vr(a, n=4):
    return 'v[%d:%d]' % (a, a + n - 1)


def sr(a, n=2):
    return 's[%d:%d]' % (a, a + n - 1)


sX, sK, sV, sWQ, sWO, sW1, sB1, sW2, sB2, sOUT, sDBG, sWS = 4, 6, 8, 10, 12, 16, 18, 20, 22, 24, 26, 28
sW = 3
sT = 30
sT0 = 31
sLOG2E = 35
sONES = 36
sG, sS, sIDX, sXCD, sID = 39, 40, 41, 42, 43
sKB, sVB, sQ0, sQ1 = 44, 46, 48, 50
sA, sB = 52, 54
sVALID = 56
sSPIN = 58
sTMP = 59
sTS = 64
sGP, sC = 96, 97
sL8 = 98

vL = 1
vM = 2
vKV = 6
vDQ = 7
vD = 8
vT = 12
vKt = 16
vVt = 48
vW1 = 80
vW2 = 112
vQO, vQX = 144, 148
vSC = 152
vU = 160


class Gen:
    def __init__(self, cfg):
        self.cfg = cfg
        self.e = Em()
        self.nts = 0

    def ts(self, k):
        if self.cfg.diag == 1 or (self.cfg.diag >= 2 and k == 0):
            self.e('s_memrealtime %s' % sr(sTS + 2 * k))

    def ts_store(self, nslots=16):
        e = self.e
        if self.cfg.diag not in (1, 2):
            return
        e('s_waitcnt lgkmcnt(0)')
        e('s_mul_i32 s59, s2, 9')
        e('s_add_u32 s59, s59, s%d' % sW)
        e('s_lshl_b32 s59, s59, 7')
        e('s_add_u32 s59, s59, 0x%x' % WS_TS)
        e('s_mov_b64 exec, 1')
        if self.cfg.diag == 2:
            e('s_memrealtime s[60:61]')
            e('v_mov_b32 v0, 0')
            e('s_not_b32 s59, s%d' % sTS)
            e('v_mov_b32 v%d, s59' % vU)
            e('s_waitcnt lgkmcnt(0)')
            e('v_mov_b32 v%d, s60' % (vU + 1))
            e('global_atomic_umax v0, v%d, %s' % (vU, sr(sDBG)))
            e('global_atomic_umax v0, v%d, %s offset:4' % (vU + 1, sr(sDBG)))
            e('s_mov_b64 exec, -1')
            return
        e('v_mov_b32 v0, s59')
        for k in range(0, nslots, 4):
            for j in range(4):
                e('v_mov_b32 v%d, s%d' % (vU + j, sTS + 2 * (k + j)))
            e('global_store_dwordx4 v0, %s, %s offset:%d' % (vr(vU), sr(sWS), 4 * k))
            e('s_nop 1')
        e('s_mov_b64 exec, -1')

    def pad_needed(self, text):
        ins = Ins(text)
        dist = 0
        pad = 0
        for p in reversed(self.e.hist):
            n = need(p, ins)
            if n > dist:
                pad = max(pad, n - dist)
            dist += p.ws
            if dist >= 12:
                break
        return pad

    def emit_item(self, it):
        if isinstance(it, str):
            self.e(it)
        elif it[0] == 'wait':
            self.e.wait_vm(it[1])
        elif it[0] == 'load':
            self.e(it[1], it[2])

    def weave(self, *streams):
        streams = [list(s) for s in streams if s]
        while any(streams):
            best = None
            for k, s in enumerate(streams):
                if not s:
                    continue
                it = s[0]
                if isinstance(it, str):
                    p = self.pad_needed(it)
                elif it[0] == 'load':
                    p = self.pad_needed(it[1])
                else:
                    p = 0
                if best is None or p < best[0]:
                    best = (p, k)
                if p == 0:
                    break
            self.emit_item(streams[best[1]].pop(0))

    def barrier(self):
        self.e('s_waitcnt lgkmcnt(0)')
        self.e('s_barrier')

    def add64(self, dst, base, off):
        self.e('s_add_u32 s%d, s%d, %s' % (dst, base, off))
        self.e('s_addc_u32 s%d, s%d, 0' % (dst + 1, base + 1))

    def rnd(self, d, s):
        return 'v_cvt_pk_bf16_f32 v%d, 0, v%d' % (d, s)

    def ln_scalars(self, S, Q, inv, m, sd, r, t):
        return [
            'v_mul_f32 v%d, %s, v%d' % (m, S, inv),
            'v_mul_f32 v%d, %s, v%d' % (t, Q, inv),
            'v_fma_f32 v%d, -v%d, v%d, v%d' % (t, m, m, t),
            self.rnd(m, m),
            self.rnd(t, t),
            'v_add_f32 v%d, %s, v%d' % (t, f32(1e-5), t),
            self.rnd(t, t),
            'v_sqrt_f32 v%d, v%d' % (sd, t),
            self.rnd(sd, sd),
            'v_rcp_f32 v%d, v%d' % (r, sd),
        ]

    def ln_apply(self, x, m, sd, r, t):
        return [
            'v_sub_f32 v%d, v%d, v%d' % (x, x, m),
            self.rnd(x, x),
            'v_mul_f32 v%d, v%d, v%d' % (t, x, r),
            'v_fma_f32 v%d, -v%d, v%d, v%d' % (x, t, sd, x),
            'v_fma_f32 v%d, v%d, v%d, v%d' % (x, x, r, t),
        ]

    def spin_begin(self, name):
        self.e('s_movk_i32 s%d, 0x%x' % (sSPIN, self.cfg.spin))
        self.e.label(name)

    def spin_end(self, name, acc, bytemask=True):
        e = self.e
        if bytemask:
            e('v_and_b32 v%d, 0xff, v%d' % (acc, acc))
        e('v_cmp_ne_u32 vcc, 0, v%d' % acc)
        e('s_sub_u32 s%d, s%d, 1' % (sSPIN, sSPIN))
        e('s_cbranch_scc1 %s_x' % name)
        e('s_cbranch_vccnz %s' % name)
        e.label(name + '_x')

    def strip(self, base, n, acc):
        e = self.e
        regs = []
        for gi in range(n):
            for i in range(4):
                r = base + 4 * gi + i
                e('v_xor_b32 v%d, s%d, v%d' % (r, sT0 + i, r))
                regs.append(r)
        e('v_or3_b32 v%d, v%d, v%d, v%d' % (acc, regs[0], regs[1], regs[2]))
        k = 3
        while k < len(regs):
            if k + 1 < len(regs):
                e('v_or3_b32 v%d, v%d, v%d, v%d' % (acc, acc, regs[k], regs[k + 1]))
                k += 2
            else:
                e('v_or_b32 v%d, v%d, v%d' % (acc, acc, regs[k]))
                k += 1

    def tag(self, base, vmask):
        for i in range(4):
            self.e('v_and_or_b32 v%d, v%d, v%d, s%d' % (base + i, base + i, vmask, sT0 + i))

    def a_ops_plain(self, dst, src):
        return ['v_and_b32 v%d, v%d, v%d' % (dst + p, src, vM + p) for p in range(4)]

    def a_ops_rot(self, dst, src, j):
        out = []
        for p in range(4):
            n = (2 * (p - j) * self.cfg.rorsign) % 16
            if n == 0:
                out.append('v_and_b32 v%d, v%d, v%d' % (dst + p, src, vM + p))
            else:
                out.append('v_and_b32_dpp v%d, v%d, v%d %s' % (dst + p, src, vM + p, ROR(n)))
        return out

    def mfma(self, d, a, b, first):
        return 'v_mfma_f32_16x16x32_bf16 %s, %s, %s, %s' % (vr(d), vr(a), vr(b), '0' if first else vr(d))

    def gemv8(self, ya, yb, wbase):
        e = self.e
        A = lambda jj: self.a_ops_rot(vKt + 4 * jj, yb if (jj & 1) else ya, jj >> 1)
        for x in A(0):
            e(x)
        for jj in range(8):
            if jj + 1 < 8:
                for x in A(jj + 1):
                    e(x)
            e(self.mfma(vD, vKt + 4 * jj, wbase + 4 * jj, jj == 0))

    def kload(self, t):
        return ('load', 'global_load_dwordx4 %s, v%d, %s offset:%d nt' % (vr(vKt + 4 * t), vKV, sr(sKB), 256 * t), 'K%d' % t)

    def vload(self, t):
        return ('load', 'global_load_dwordx4 %s, v%d, %s offset:%d nt' % (vr(vVt + 4 * t), vKV, sr(sVB), 256 * t), 'V%d' % t)

    def build(self):
        e = self.e
        cfg = self.cfg
        K = NAME + '_kernel'
        e.raw('; @launch grid=(256,1,1) block=(576,1,1) lds=%d' % LDS_SIZE)
        e.raw('.amdgcn_target "amdgcn-amd-amdhsa--gfx950"')
        e.raw('.text')
        e.raw('.globl %s' % K)
        e.raw('.p2align 8')
        e.raw('.type %s,@function' % K)
        e.label(K)
        e('s_cmp_ge_u32 s2, 0x100')
        e('s_cbranch_scc1 L_end')
        e('s_load_dwordx16 s[4:19], s[0:1], 0')
        e('s_load_dwordx8 s[20:27], s[0:1], 64')
        e('s_load_dwordx2 s[28:29], s[0:1], 96')
        self.ts(0)
        e('s_getpc_b64 s[60:61]')
        e.label('L_pc')
        e('v_lshlrev_b32 v12, 7, v0')
        e('v_min_u32 v12, L_end-L_pc, v12')
        e('v_mov_b32 v14, s60')
        e('v_mov_b32 v15, s61')
        e('v_add_co_u32 v14, vcc, v14, v12')
        e('v_lshrrev_b32 v13, 6, v0')
        e('v_and_b32 v%d, 63, v0' % vL)
        e('v_addc_co_u32 v15, vcc, 0, v15, vcc')
        e('v_readfirstlane_b32 s%d, v13' % sW)
        e('global_load_dword v%d, v[14:15], off' % (vU + 7), 'PF')
        e('s_and_b32 s%d, s2, 7' % sXCD)
        e('s_lshr_b32 s%d, s2, 3' % sIDX)
        e('s_lshr_b32 s%d, s%d, 4' % (sG, sIDX))
        e('s_lshl1_add_u32 s%d, s%d, s%d' % (sG, sXCD, sG))
        e('s_and_b32 s%d, s%d, 15' % (sS, sIDX))
        e('s_lshr_b32 s59, s%d, 2' % sS)
        e('s_mul_i32 s59, s59, 144')
        e('s_lshl4_add_u32 s59, s%d, s59' % sW)
        e('s_lshl_b32 s60, s59, 13')
        e('s_lshl_b32 s61, s%d, 9' % sG)
        e('s_add_u32 s60, s60, s61')
        e('s_and_b32 s61, s%d, 3' % sS)
        e('s_lshl_b32 s61, s61, 7')
        e('s_add_u32 s60, s60, s61')
        e('s_lshl_b32 s59, s59, 1')
        e('s_lshl_b32 s61, s%d, 24' % sG)
        e('s_lshl_b32 s62, s%d, 16' % sS)
        e('s_add_u32 s61, s61, s62')
        e('s_lshl_b32 s62, s%d, 13' % sW)
        e('s_add_u32 s61, s61, s62')
        e('s_add_u32 s61, s61, 0x%x' % (61440 * 256))
        vRHO, vC16, vXA, vXB, vXC, vQOFF = 12, 13, 14, 15, vU, vU + 1
        e('v_lshrrev_b32 v%d, 3, v%d' % (vRHO, vL))
        e('v_and_b32 v%d, 7, v%d' % (vC16, vL))
        e('v_lshlrev_b32 v%d, 4, v%d' % (vC16, vC16))
        e('v_lshlrev_b32 v%d, 4, v%d' % (vXA, vL))
        e('v_lshlrev_b32 v%d, 1, v%d' % (vXB, vL))
        e('v_lshl_add_u32 v%d, v%d, 2, s59' % (vXC, vRHO))
        e('v_lshl_add_u32 v%d, v%d, 14, v%d' % (vQOFF, vRHO, vC16))
        e('v_lshrrev_b32 v%d, 4, v%d' % (vKV, vL))
        e('v_and_b32 v%d, 0xf0, v%d' % (vU + 2, vXA))
        e('v_lshl_add_u32 v%d, v%d, 11, v%d' % (vKV, vKV, vU + 2))
        e('s_waitcnt lgkmcnt(0)')
        e('s_load_dword s%d, %s, 0' % (sT, sr(sWS)))
        vX = vW2 + 8
        e('global_load_dwordx4 %s, v%d, %s' % (vr(vX), vXA, sr(sX)), 'XA')
        e('global_load_ushort v%d, v%d, %s offset:1024' % (vX + 4, vXB, sr(sX)), 'XB')
        e('global_load_dword v%d, v%d, %s' % (vX + 5, vXC, sr(sX)), 'XC')
        self.add64(sQ0, sWQ, 's60')
        e('global_load_dwordx4 %s, v%d, %s nt' % (vr(vW2), vQOFF, sr(sQ0)), 'Q0')
        self.add64(sQ1, sQ0, '0x2000')
        e('global_load_dwordx4 %s, v%d, %s nt' % (vr(vW2 + 4), vQOFF, sr(sQ1)), 'Q1')
        self.add64(sKB, sK, 's61')
        self.add64(sVB, sV, 's61')
        e('s_cmp_eq_u32 s%d, 8' % sW)
        e('s_cbranch_scc1 L_w8_pre')
        snapA = e.snap()
        for t in range(cfg.nka):
            self.emit_item(self.kload(t))
        e.label('L_pre_join')
        self.ts(1)
        e('v_and_b32 v%d, 3, v%d' % (vU + 2, vL))
        e('v_lshlrev_b32 v%d, 4, v%d' % (vU + 2, vU + 2))
        e('v_mov_b32 v%d, 0xffff' % (vU + 4))
        e('v_mov_b32 v%d, 0' % (vU + 5))
        e('v_lshlrev_b64 %s, v%d, %s' % (vr(vU + 4, 2), vU + 2, vr(vU + 4, 2)))
        e('v_bfe_i32 v%d, v%d, 2, 1' % (vU + 2, vL))
        e('v_and_b32 v%d, v%d, v%d' % (vM + 2, vU + 4, vU + 2))
        e('v_and_b32 v%d, v%d, v%d' % (vM + 3, vU + 5, vU + 2))
        e('v_xor_b32 v%d, v%d, v%d' % (vM + 0, vU + 4, vM + 2))
        e('v_xor_b32 v%d, v%d, v%d' % (vM + 1, vU + 5, vM + 3))
        e('v_lshrrev_b32 v%d, 5, v%d' % (vDQ, vL))
        e('v_lshlrev_b32 v%d, 8, v%d' % (vDQ, vDQ))
        e('v_lshl_add_u32 v%d, v%d, 1, v%d' % (vDQ, vC16, vDQ))
        e('v_and_b32 v%d, 16, v%d' % (vU + 2, vL))
        e('s_lshl_b32 s59, s%d, 9' % sW)
        e('v_add3_u32 v%d, v%d, v%d, s59' % (vDQ, vDQ, vU + 2))
        e('s_mov_b32 s%d, 0x00ff00ff' % sVALID)
        e('s_mov_b32 s%d, 0xff00ff00' % (sVALID + 1))
        e('s_mov_b32 s%d, 0x01010101' % sL8)
        e('s_mov_b32 s%d, 0x01010101' % (sL8 + 1))
        e('s_mov_b32 s%d, %s' % (sLOG2E, f32(LOG2E)))
        e('s_mov_b32 s%d, 0x3f803f80' % sONES)
        vINV = vU + 6
        e('v_mov_b32 v%d, %s' % (vINV, f32(1.0 / 576)))
        e.wait_vm('XB')
        vS, vQ = vU + 2, vU + 3
        for k in range(5):
            e('v_dot2_f32_bf16 v%d, v%d, s%d, %s' % (vS, vX + k, sONES, '0' if k == 0 else 'v%d' % vS))
            e('v_dot2_f32_bf16 v%d, v%d, v%d, %s' % (vQ, vX + k, vX + k, '0' if k == 0 else 'v%d' % vQ))
        for d in (X1, X2, HM, MI):
            e('v_add_f32_dpp v%d, v%d, v%d %s' % (vS, vS, vS, d))
            e('v_add_f32_dpp v%d, v%d, v%d %s' % (vQ, vQ, vQ, d))
        for d in ('row_bcast:15 row_mask:0xa bank_mask:0xf', 'row_bcast:31 row_mask:0xc bank_mask:0xf'):
            e('v_add_f32_dpp v%d, v%d, v%d %s' % (vS, vS, vS, d))
            e('v_add_f32_dpp v%d, v%d, v%d %s' % (vQ, vQ, vQ, d))
        e('v_readlane_b32 s59, v%d, 63' % vS)
        e('v_readlane_b32 s60, v%d, 63' % vQ)
        e.wait_vm('XC')
        y0, y1 = vX, vX + 1
        e('v_lshlrev_b32 v%d, 16, v%d' % (y0, vX + 5))
        e('v_and_b32 v%d, 0xffff0000, v%d' % (y1, vX + 5))
        m, sd, r, t = vU + 2, vU + 3, vU + 4, vU + 5
        for x in self.ln_scalars('s59', 's60', vINV, m, sd, r, t):
            e(x)
        self.weave(self.ln_apply(y0, m, sd, r, vX + 2), self.ln_apply(y1, m, sd, r, vX + 3))
        e('v_cvt_pk_bf16_f32 v%d, v%d, v%d' % (y0, y0, y0))
        e('v_cvt_pk_bf16_f32 v%d, v%d, v%d' % (y1, y1, y1))
        A0, A1 = vT, vX + 4
        for x in self.a_ops_plain(A0, y0):
            e(x)
        for x in self.a_ops_plain(A1, y1):
            e(x)
        e.wait_vm('Q0')
        e(self.mfma(vD, A0, vW2, True))
        e.wait_vm('Q1')
        e(self.mfma(vD, A1, vW2 + 4, False))
        e('s_waitcnt lgkmcnt(0)')
        e('s_add_u32 s%d, s%d, 0x01010101' % (sT, sT))
        e('s_and_b32 s%d, s%d, 0xff' % (sT0, sT))
        e('s_bfe_u32 s%d, s%d, 0x80008' % (sT0 + 1, sT))
        e('s_bfe_u32 s%d, s%d, 0x80010' % (sT0 + 2, sT))
        e('s_lshr_b32 s%d, s%d, 24' % (sT0 + 3, sT))
        e('s_mov_b64 exec, %s' % sr(sVALID))
        e('ds_write_b128 v%d, %s offset:%d' % (vDQ, vr(vD), L_QPART))
        e('s_mov_b64 exec, -1')
        self.ts(2)
        self.barrier()
        e('s_cmp_eq_u32 s%d, 8' % sW)
        e('s_cbranch_scc1 L_comm')
        snapB1 = e.snap()

        for t in range(cfg.nka, 8):
            self.emit_item(self.kload(t))
        for t in range(cfg.nvb):
            self.emit_item(self.vload(t))
        vQA, vMXA, vLPA = vU, vU + 1, vU + 2
        e('v_and_b32 v%d, 8, v%d' % (vMXA, vL))
        e('v_lshlrev_b32 v%d, 5, v%d' % (vQA, vMXA))
        e('v_and_b32 v%d, 0xf0, v%d' % (vU + 3, vKV))
        e('v_add_u32 v%d, v%d, v%d' % (vQA, vQA, vU + 3))
        e('v_xor_b32 v%d, 0x100, v%d' % (vU + 3, vQA))
        e('v_lshlrev_b32 v%d, 4, v%d' % (vLPA, vMXA))
        e('v_lshrrev_b32 v%d, 1, v%d' % (vMXA, vMXA))
        e('v_lshrrev_b32 v%d, 4, v%d' % (vU + 4, vL))
        e('v_lshl_add_u32 v%d, v%d, 2, v%d' % (vLPA, vU + 4, vLPA))
        e('s_lshl_b32 s59, s%d, 4' % sW)
        e('v_add_u32 v%d, s59, v%d' % (vLPA, vLPA))
        vSCL = vU + 4
        e('v_mov_b32 v%d, %s' % (vSCL, f32(SCALE)))
        self.ts(3)
        e('s_barrier')
        e('ds_read_b128 %s, v%d offset:%d' % (vr(vQO), vQA, L_QL))
        e('ds_read_b128 %s, v%d offset:%d' % (vr(vQX), vU + 3, L_QL))
        self.ts(4)
        e('s_waitcnt lgkmcnt(0)')
        vnext = cfg.nvb
        prevR = []
        for t in range(8):
            a, b = vSC + t, (vT + (t & 1))
            D = [('wait', 'K%d' % t)]
            for k in range(4):
                D.append('v_dot2_f32_bf16 v%d, v%d, v%d, %s' % (a, vKt + 4 * t + k, vQO + k, '0' if k == 0 else 'v%d' % a))
                D.append('v_dot2_f32_bf16 v%d, v%d, v%d, %s' % (b, vKt + 4 * t + k, vQX + k, '0' if k == 0 else 'v%d' % b))
            if t in cfg.vq and vnext < 8:
                D.append(self.vload(vnext))
                vnext += 1
            self.weave(prevR, D)
            prevR = [
                'v_add_f32_dpp v%d, v%d, v%d %s' % (a, b, a, ROR(8)),
                'v_add_f32_dpp v%d, v%d, v%d %s' % (a, a, a, X1),
                'v_add_f32_dpp v%d, v%d, v%d %s' % (a, a, a, X2),
                'v_add_f32_dpp v%d, v%d, v%d %s' % (a, a, a, HM),
                self.rnd(a, a),
                'v_mul_f32 v%d, v%d, v%d' % (a, a, vSCL),
                self.rnd(a, a),
            ]
        mx = vT + 2
        pre = ['v_max3_f32 v%d, v%d, v%d, v%d' % (mx, vSC, vSC + 1, vSC + 2),
               'v_max3_f32 v%d, v%d, v%d, v%d' % (mx, mx, vSC + 3, vSC + 4),
               'v_max3_f32 v%d, v%d, v%d, v%d' % (mx, mx, vSC + 5, vSC + 6)]
        self.weave(prevR, pre)
        e('v_max_f32 v%d, v%d, v%d' % (mx, mx, vSC + 7))
        e('s_mov_b64 exec, %s' % sr(sL8))
        e('ds_max_f32 v%d, v%d offset:%d' % (vMXA, mx, L_MX))
        e('s_mov_b64 exec, -1')
        for _ in range(cfg.vm):
            if vnext < 8:
                self.emit_item(self.vload(vnext))
                vnext += 1
        self.ts(5)
        self.barrier()
        e('ds_read_b32 v%d, v%d offset:%d' % (mx, vMXA, L_MX))
        e('s_waitcnt lgkmcnt(0)')
        e('v_mul_f32 v%d, s%d, v%d' % (mx, sLOG2E, mx))
        for t in range(8):
            e('v_fma_f32 v%d, v%d, s%d, -v%d' % (vSC + t, vSC + t, sLOG2E, mx))
        for t in range(8):
            e('v_exp_f32 v%d, v%d' % (vSC + t, vSC + t))
        ls = vT
        e('v_add_f32 v%d, v%d, v%d' % (ls, vSC, vSC + 1))
        e('v_add_f32 v%d, v%d, v%d' % (ls + 1, vSC + 2, vSC + 3))
        e('v_add_f32 v%d, v%d, v%d' % (ls + 2, vSC + 4, vSC + 5))
        e('v_add_f32 v%d, v%d, v%d' % (ls + 3, vSC + 6, vSC + 7))
        e('v_add_f32 v%d, v%d, v%d' % (ls, ls, ls + 1))
        e('v_add_f32 v%d, v%d, v%d' % (ls + 2, ls + 2, ls + 3))
        e('v_add_f32 v%d, v%d, v%d' % (ls, ls, ls + 2))
        e('s_mov_b64 exec, %s' % sr(sL8))
        e('ds_write_b32 v%d, v%d offset:%d' % (vLPA, ls, L_LP))
        e('s_mov_b64 exec, -1')
        while vnext < 8:
            self.emit_item(self.vload(vnext))
            vnext += 1
        self.barrier()
        for t in range(8):
            e('v_cvt_pk_bf16_f32 v%d, v%d, v%d' % (vSC + t, vSC + t, vSC + t))
        for t in range(8):
            for x in self.a_ops_plain(vKt + 4 * t, vSC + t):
                e(x)
        vOPA = vU
        e('s_lshl_b32 s59, s%d, 10' % sW)
        e('v_lshl_add_u32 v%d, v%d, 4, s59' % (vOPA, vL))
        self.ts(6)
        e('s_cmp_lt_u32 s%d, 18' % sIDX)
        e('s_cbranch_scc1 L_wo')
        e('s_cmp_lt_u32 s%d, 27' % sIDX)
        e('s_cbranch_scc1 L_mlp')
        snapR = e.snap()

        def pv(extra=()):
            extra = list(extra)
            for t in range(8):
                e.wait_vm('V%d' % t)
                e(self.mfma(vD, vKt + 4 * t, vVt + 4 * t, t == 0))
                if extra:
                    for it in extra.pop(0):
                        self.emit_item(it)
            for ex in extra:
                for it in ex:
                    self.emit_item(it)
            e('ds_write_b128 v%d, %s offset:%d' % (vOPA, vr(vD), L_OPART))
            self.ts(7)
            self.barrier()

        pv()
        self.ts_store()
        e('s_endpgm')

        e.restore(snapR)
        e.label('L_wo')
        self.wo_ids()
        vWO = vU + 1
        e('v_lshrrev_b32 v%d, 3, v%d' % (vU + 2, vL))
        e('v_and_b32 v%d, 0x70, v%d' % (vWO, vKV))
        e('v_mov_b32 v%d, 4608' % (vU + 3))
        e('v_mad_u32_u24 v%d, v%d, v%d, v%d' % (vWO, vU + 2, vU + 3, vWO))
        e('s_lshl_b32 s59, s%d, 3' % sGP)
        e('s_add_u32 s59, s59, s%d' % sW)
        e('s_mul_i32 s59, s59, %d' % (32 * 1152))
        e('s_lshl_b32 s60, s%d, 7' % sC)
        e('s_add_u32 s59, s59, s60')
        self.add64(sA, sWO, 's59')
        for j in range(4):
            e('global_load_dwordx4 %s, v%d, %s offset:%d nt' % (vr(vW1 + 4 * j), vWO, sr(sA), 1152 * j), 'W%d' % j)
        vP0, vP1, vFA = vU + 1, vU + 2, vU + 3
        e('v_and_b32 v%d, 0xf0, v%d' % (vFA, vKV))
        e('v_lshl_add_u32 v%d, v%d, 8, v%d' % (vU + 2, vU + 2, vFA))
        e('s_lshl_b32 s59, s%d, 14' % sGP)
        e('s_lshl_b32 s60, s%d, 11' % sW)
        e('s_add_u32 s59, s59, s60')
        e('s_add_u32 s59, s59, 0x%x' % WS_OP)
        e('v_add_u32 v%d, s59, v%d' % (vP0, vU + 2))
        e('v_xor_b32 v%d, 0x80, v%d' % (vP1, vP0))
        e('s_lshr_b32 s59, s%d, 2' % sW)
        e('s_lshl_b32 s59, s59, 6')
        e('v_lshrrev_b32 v%d, 2, v%d' % (vFA, vFA))
        e('v_add_u32 v%d, s59, v%d' % (vFA, vFA))
        pv()
        f0, f1 = vU + 4, vU + 5
        e('ds_read_b32 v%d, v%d offset:%d' % (f0, vFA, L_F))
        self.spin_begin('L_wo_poll')
        e('global_load_dwordx4 %s, v%d, %s sc1' % (vr(vVt), vP0, sr(sWS)))
        e('global_load_dwordx4 %s, v%d, %s sc1' % (vr(vVt + 4), vP1, sr(sWS)))
        e('s_waitcnt vmcnt(0) lgkmcnt(0)')
        e.vm = []
        self.strip(vVt, 2, vT)
        self.spin_end('L_wo_poll', vT)
        self.ts(8)
        e('v_mov_b32_dpp v%d, v%d %s' % (f1, f0, ROR(8)))
        for c in range(4):
            e('v_mul_f32 v%d, v%d, v%d' % (vVt + c, vVt + c, f0))
        for c in range(4):
            e('v_fmac_f32 v%d, v%d, v%d' % (vVt + c, vVt + 4 + c, f1))
        for d in (X1, X2, HM):
            for c in range(4):
                e('v_add_f32_dpp v%d, v%d, v%d %s' % (vVt + c, vVt + c, vVt + c, d))
        for c in range(4):
            e('v_cvt_pk_bf16_f32 v%d, v%d, v%d' % (vVt + c, vVt + c, vVt + c))
        for x in self.a_ops_plain(vKt, vVt):
            e(x)
        for j in range(4):
            if j + 1 < 4:
                for x in self.a_ops_plain(vKt + 4 * (j + 1), vVt + j + 1):
                    e(x)
            e(self.mfma(vD, vKt + 4 * j, vW1 + 4 * j, j == 0))
        e('s_mov_b64 exec, %s' % sr(sVALID))
        e('ds_write_b128 v%d, %s offset:%d' % (vDQ, vr(vD), L_QPART))
        e('s_mov_b64 exec, -1')
        self.ts(9)
        self.barrier()
        self.ts_store()
        e('s_endpgm')

        e.restore(snapR)
        e.label('L_mlp')
        self.mlp_setup()
        loads = self.mlp_loads()
        for it in loads[:cfg.mw0]:
            for x in it:
                self.emit_item(x)
        pv(loads[cfg.mw0:])
        e('s_branch L_mlp2')
        snapM = e.snap()

        e.restore(snapA)
        e.label('L_w8_pre')
        vFX, vFB, vB1 = 16, 17, 156
        e('s_mul_i32 s59, s%d, 18' % sXCD)
        e('s_add_u32 s59, s59, s%d' % sIDX)
        e('s_min_u32 s59, s59, 143')
        e('s_lshl_b32 s59, s59, 3')
        e('v_lshrrev_b32 v19, 5, v%d' % vL)
        e('v_bfe_u32 v20, v%d, 4, 1' % vL)
        e('v_lshl_add_u32 v19, v20, 1, v19')
        e('v_lshl_add_u32 v19, v19, 1, s59')
        e('global_load_ushort v%d, v19, %s' % (vFX, sr(sX)), 'K0')
        e('global_load_ushort v%d, v19, %s' % (vFB, sr(sB2)), 'K1')
        e('s_mul_i32 s59, s%d, 9' % sXCD)
        e('s_add_u32 s59, s59, s%d' % sIDX)
        e('s_sub_u32 s59, s59, 18')
        e('s_min_u32 s59, s59, 71')
        e('s_lshl_b32 s59, s59, 7')
        e('v_add_u32 v20, s59, v%d' % vXB)
        e('global_load_ushort v%d, v20, %s' % (vB1, sr(sB1)), 'K2')
        for t in range(3, cfg.nka):
            e('global_load_ushort v21, v20, %s' % sr(sB1), 'K%d' % t)
        e('v_mov_b32 v20, 0')
        e('v_mov_b32 v21, 0xff800000')
        e('v_lshlrev_b32 v22, 2, v%d' % vL)
        e('ds_write2st64_b32 v22, v20, v20 offset0:%d offset1:%d' % (L_ST1 // 256, L_ST1 // 256 + 1))
        e('ds_write2st64_b32 v22, v20, v20 offset0:%d offset1:%d' % (L_ST2 // 256, L_ST2 // 256 + 1))
        e('ds_write_b32 v22, v21 offset:%d' % L_MX)
        e('s_branch L_pre_join')

        e.restore(snapB1)
        e.label('L_comm')
        vA = 24
        vMASK = 23
        e('v_lshlrev_b32 v%d, 3, v%d' % (vA, vL))
        for i in range(4):
            e('ds_read2_b64 %s, v%d offset0:%d offset1:%d' % (vr(32 + 4 * i), vA, 64 * i, 64 * i + 32))
        e('v_add_u32 v25, 0x800, v%d' % vA)
        for i in range(4):
            e('ds_read2_b64 %s, v25 offset0:%d offset1:%d' % (vr(48 + 4 * i), 64 * i, 64 * i + 32))
        e('v_add_u32 v25, 0x1000, v%d' % vA)
        e('ds_read2_b64 %s, v25 offset0:0 offset1:32' % vr(64))
        e('v_mov_b32 v%d, 0xffffff00' % vMASK)
        e('s_lshl_b32 s59, s%d, 13' % sG)
        e('s_lshl_b32 s60, s%d, 9' % sS)
        e('s_add_u32 s60, s60, s59')
        e('s_add_u32 s60, s60, 0x%x' % WS_QP)
        e('s_add_u32 s59, s59, 0x%x' % WS_QP)
        e('v_lshl_add_u32 v26, v%d, 4, s60' % vL)
        e('v_lshl_add_u32 v27, v%d, 4, s59' % vL)
        e('v_add_u32 v28, 0x1000, v27')
        e('s_waitcnt lgkmcnt(0)')
        n = 18
        regs = [32 + 2 * i for i in range(n)]
        while len(regs) > 1:
            nxt = []
            for i in range(0, len(regs) - 1, 2):
                e('v_pk_add_f32 %s, %s, %s' % (vr(regs[i], 2), vr(regs[i], 2), vr(regs[i + 1], 2)))
                nxt.append(regs[i])
            if len(regs) & 1:
                nxt.append(regs[-1])
            regs = nxt
        e('v_mov_b32 v34, s%d' % sT)
        e('v_mov_b32 v35, s%d' % sT)
        e('s_mov_b32 exec_hi, 0')
        e('global_store_dwordx4 v26, %s, %s sc1' % (vr(32), sr(sWS)))
        e('s_mov_b64 exec, -1')
        self.ts(3)
        self.spin_begin('L_q_poll')
        for r_ in range(4):
            for h in range(2):
                off = (r_ & 1) * 2048 + h * 1024
                e('global_load_dwordx4 %s, v%d, %s offset:%d sc1' % (vr(48 + 8 * r_ + 4 * h), 27 + (r_ >> 1), sr(sWS), off))
        e.wait_vm0()
        e('v_xor_b32 v25, s%d, v50' % sT)
        for k in range(1, 8):
            e('v_bitop3_b32 v25, v25, v%d, s%d bitop3:0xf6' % (50 + 4 * k, sT))
        self.spin_end('L_q_poll', 25, bytemask=False)
        for h in range(2):
            b = 48 + 4 * h
            e('v_pk_add_f32 %s, %s, %s' % (vr(b, 2), vr(b, 2), vr(b + 8, 2)))
            e('v_pk_add_f32 %s, %s, %s' % (vr(b + 16, 2), vr(b + 16, 2), vr(b + 24, 2)))
        for h in range(2):
            b = 48 + 4 * h
            e('v_pk_add_f32 %s, %s, %s' % (vr(b, 2), vr(b, 2), vr(b + 16, 2)))
        e('v_cvt_pk_bf16_f32 v48, v48, v49')
        e('v_cvt_pk_bf16_f32 v52, v52, v53')
        e('v_lshlrev_b32 v22, 2, v%d' % vL)
        e('ds_write2st64_b32 v22, v48, v52 offset0:%d offset1:%d' % (L_QL // 256, L_QL // 256 + 1))
        self.ts(4)
        self.barrier()
        e('v_lshrrev_b32 v24, 5, v%d' % vL)
        e('v_lshlrev_b32 v24, 13, v24')
        e('v_and_b32 v25, 15, v%d' % vL)
        e('v_lshl_add_u32 v24, v25, 9, v24')
        e('v_bfe_u32 v25, v%d, 4, 1' % vL)
        e('v_lshl_add_u32 v24, v25, 8, v24')
        e('s_lshl_b32 s59, s%d, 14' % sG)
        e('s_lshl4_add_u32 s59, s%d, s59' % sS)
        e('s_add_u32 s59, s59, 0x%x' % WS_OP)
        e('v_add_u32 v24, s59, v24')
        e('v_lshlrev_b32 v25, 4, v%d' % vL)
        e('s_lshl_b32 s59, s%d, 8' % sG)
        e('s_lshl4_add_u32 s59, s%d, s59' % sS)
        e('s_add_u32 s59, s59, 0x%x' % WS_ML)
        e('v_mov_b32 v26, s59')
        e('s_barrier')
        e('s_barrier')
        e('ds_read_b32 v33, v22 offset:%d' % L_LP)
        e('v_mov_b32 v27, 0')
        e('ds_read_b64 v[36:37], v27 offset:%d' % L_MX)
        e('s_waitcnt lgkmcnt(0)')
        for d in (X1, X2, HM, MI, 'row_bcast:15 row_mask:0xa bank_mask:0xf'):
            e('v_add_f32_dpp v33, v33, v33 %s' % d)
        e('v_readlane_b32 s59, v33, 31')
        e('v_readlane_b32 s60, v33, 63')
        e('v_mov_b32 v32, v36')
        e('v_mov_b32 v34, v37')
        e('v_mov_b32 v33, s59')
        e('v_mov_b32 v35, s60')
        self.tag(32, vMASK)
        e('s_mov_b64 exec, 1')
        e('global_store_dwordx4 v26, %s, %s sc1' % (vr(32), sr(sWS)))
        e('s_mov_b64 exec, -1')
        self.ts(5)
        e('s_cmp_lt_u32 s%d, 18' % sIDX)
        e('s_cbranch_scc1 L_c_wo')
        e('s_cmp_lt_u32 s%d, 27' % sIDX)
        e('s_cbranch_scc1 L_c_mlp')
        snapC = e.snap()

        def op_publish():
            e('s_barrier')
            self.ts(6)
            for w in range(8):
                e('ds_read_b128 %s, v25 offset:%d' % (vr(32 + 4 * w), L_OPART + 1024 * w))
            for st in (1, 2, 4):
                for w in range(0, 8, 2 * st):
                    if st == 1:
                        e('s_waitcnt lgkmcnt(%d)' % (0 if self.cfg.diag else 6 - w))
                    for hh in (0, 2):
                        e('v_pk_add_f32 %s, %s, %s' % (vr(32 + 4 * w + hh, 2), vr(32 + 4 * w + hh, 2), vr(32 + 4 * (w + st) + hh, 2)))
            self.tag(32, vMASK)
            e('global_store_dwordx4 v24, %s, %s sc1' % (vr(32), sr(sWS)))
            self.ts(7)

        op_publish()
        self.ts_store()
        e('s_endpgm')

        e.restore(snapC)
        e.label('L_c_wo')
        self.wo_ids()
        e('v_and_b32 v27, 15, v%d' % vL)
        e('s_lshl_b32 s59, s%d, 8' % sGP)
        e('s_add_u32 s59, s59, 0x%x' % WS_ML)
        e('v_lshl_add_u32 v26, v27, 4, s59')
        e('v_lshlrev_b32 v27, 2, v27')
        self.spin_begin('L_ml_poll')
        e('global_load_dwordx4 %s, v26, %s sc1' % (vr(40), sr(sWS)))
        e.wait_vm0()
        self.strip(40, 1, 44)
        self.spin_end('L_ml_poll', 44)
        e('v_mov_b32 v44, v40')
        e('v_mov_b32 v45, v42')
        for d in (X1, X2, HM, MI):
            e('v_max_f32_dpp v44, v44, v44 %s' % d)
            e('v_max_f32_dpp v45, v45, v45 %s' % d)
        e('v_sub_f32 v40, v40, v44')
        e('v_sub_f32 v42, v42, v45')
        e('v_mul_f32 v40, s%d, v40' % sLOG2E)
        e('v_mul_f32 v42, s%d, v42' % sLOG2E)
        e('v_exp_f32 v40, v40')
        e('v_exp_f32 v42, v42')
        e('v_mul_f32 v41, v41, v40')
        e('v_mul_f32 v43, v43, v42')
        for d in (X1, X2, HM, MI):
            e('v_add_f32_dpp v41, v41, v41 %s' % d)
            e('v_add_f32_dpp v43, v43, v43 %s' % d)
        e('v_rcp_f32 v41, v41')
        e('v_rcp_f32 v43, v43')
        e('v_mul_f32 v40, v40, v41')
        e('v_mul_f32 v42, v42, v43')
        e('ds_write_b32 v27, v40 offset:%d' % L_F)
        e('ds_write_b32 v27, v42 offset:%d' % (L_F + 64))
        e('v_lshrrev_b32 v26, 2, v%d' % vL)
        e('v_and_b32 v27, 3, v%d' % vL)
        e('v_lshlrev_b32 v28, 4, v26')
        e('v_lshl_add_u32 v28, v27, 8, v28')
        e('s_lshl_b32 s59, s%d, 12' % sC)
        e('s_lshr_b32 s60, s%d, 2' % sGP)
        e('s_lshl_b32 s60, s60, 10')
        e('s_add_u32 s59, s59, s60')
        e('s_and_b32 s60, s%d, 3' % sGP)
        e('s_lshl4_add_u32 s59, s60, s59')
        e('s_add_u32 s59, s59, 0x%x' % WS_HP)
        e('v_lshl_add_u32 v29, v26, 6, s59')
        e('s_lshr_b32 s59, s%d, 4' % sID)
        e('s_lshl_b32 s59, s59, 12')
        e('s_and_b32 s60, s%d, 15' % sID)
        e('s_lshl_b32 s60, s60, 6')
        e('s_add_u32 s59, s59, s60')
        e('s_add_u32 s59, s59, 0x%x' % WS_HP)
        e('v_and_b32 v26, 3, v26')
        e('v_lshlrev_b32 v26, 4, v26')
        e('v_lshl_add_u32 v26, v27, 10, v26')
        e('v_add_u32 v26, s59, v26')
        e('s_mul_i32 s59, s%d, 1152' % sID)
        e('s_add_u32 s59, s59, 0x%x' % WS_FP)
        e('v_add_u32 v27, s59, v25')
        e('v_and_b32 v30, 0x70, v25')
        e('v_add_u32 v30, s59, v30')
        e('v_lshlrev_b32 v%d, 16, v%d' % (vFX, vFX))
        e('v_lshlrev_b32 v%d, 16, v%d' % (vFB, vFB))
        e('s_waitcnt lgkmcnt(0)')
        op_publish()
        e('s_barrier')
        self.ts(8)
        for k in range(4):
            e('ds_read_b128 %s, v28 offset:%d' % (vr(40 + 4 * k), L_QPART + 1024 * k))
        e('s_waitcnt lgkmcnt(%d)' % (0 if self.cfg.diag else 2))
        for hh in (0, 2):
            e('v_pk_add_f32 %s, %s, %s' % (vr(40 + hh, 2), vr(40 + hh, 2), vr(44 + hh, 2)))
        e('s_waitcnt lgkmcnt(0)')
        for hh in (0, 2):
            e('v_pk_add_f32 %s, %s, %s' % (vr(48 + hh, 2), vr(48 + hh, 2), vr(52 + hh, 2)))
        for hh in (0, 2):
            e('v_pk_add_f32 %s, %s, %s' % (vr(40 + hh, 2), vr(40 + hh, 2), vr(48 + hh, 2)))
        for d in (X1, X2):
            for c in range(4):
                e('v_add_f32_dpp v%d, v%d, v%d %s' % (40 + c, 40 + c, 40 + c, d))
        self.tag(40, vMASK)
        e('s_mov_b32 s60, 0x11111111')
        e('s_mov_b32 s61, 0x11111111')
        e('s_mov_b64 exec, s[60:61]')
        e('global_store_dwordx4 v29, %s, %s sc1' % (vr(40), sr(sWS)))
        e('s_mov_b64 exec, -1')
        self.ts(9)
        self.spin_begin('L_fh_poll')
        e('global_load_dwordx4 %s, v26, %s sc1' % (vr(48), sr(sWS)))
        e.wait_vm0()
        self.strip(48, 1, 52)
        self.spin_end('L_fh_poll', 52)
        self.ts(10)
        ident = 'quad_perm:[0,1,2,3] row_mask:0x%x bank_mask:0xf'
        e('v_mov_b32_dpp v48, v50 %s' % (ident % 2))
        e('v_mov_b32_dpp v48, v49 %s' % (ident % 4))
        e('v_mov_b32_dpp v48, v51 %s' % (ident % 8))
        for d in (X1, X2, ROR(8), ROR(4)):
            e('v_add_f32_dpp v48, v48, v48 %s' % d)
        e(self.rnd(48, 48))
        e('v_add_f32 v48, v48, v%d' % vFX)
        e(self.rnd(vFX, 48))
        self.spin_begin('L_ff_poll')
        e('global_load_dwordx4 %s, v27, %s sc1' % (vr(48), sr(sWS)))
        e('global_load_dwordx4 %s, v30, %s offset:1024 sc1' % (vr(52), sr(sWS)))
        e.wait_vm0()
        self.strip(48, 2, 56)
        self.spin_end('L_ff_poll', 56)
        self.ts(11)
        e('s_mov_b32 exec_lo, 0xff')
        e('s_mov_b32 exec_hi, 0')
        for hh in (0, 2):
            e('v_pk_add_f32 %s, %s, %s' % (vr(48 + hh, 2), vr(48 + hh, 2), vr(52 + hh, 2)))
        e('s_mov_b64 exec, -1')
        e('v_permlane32_swap_b32 v48, v49')
        e('v_permlane32_swap_b32 v50, v51')
        e('v_add_f32 v48, v48, v49')
        e('v_add_f32 v50, v50, v51')
        e('v_permlane16_swap_b32 v48, v50')
        e('v_add_f32 v48, v48, v50')
        for d in (X1, X2, HM, MI):
            e('v_add_f32_dpp v48, v48, v48 %s' % d)
        e(self.rnd(48, 48))
        e('v_add_f32 v48, v48, v%d' % vFB)
        e(self.rnd(48, 48))
        e('v_add_f32 v48, v48, v%d' % vFX)
        e('v_cvt_pk_bf16_f32 v48, v48, v48')
        e('s_mov_b32 s60, 0x00010001')
        e('s_mov_b32 s61, 0x00010001')
        e('s_mov_b64 exec, s[60:61]')
        e('global_store_short v19, v48, %s' % sr(sOUT))
        e('s_cmp_lg_u32 s%d, 0' % sID)
        e('s_cbranch_scc1 L_c_wo_done')
        e('s_mov_b64 exec, 1')
        e('v_mov_b32 v49, 0')
        e('v_mov_b32 v50, s%d' % sT)
        e('global_store_dword v49, v50, %s sc1' % sr(sWS))
        if cfg.diag == 3:
            e('s_memrealtime s[60:61]')
            e('s_waitcnt lgkmcnt(0)')
            e('s_sub_u32 s60, s60, s%d' % sTS)
            e('v_mov_b32 v50, s60')
            e('global_store_dword v49, v50, %s' % sr(sDBG))
        e.label('L_c_wo_done')
        e('s_mov_b64 exec, -1')
        self.ts(12)
        self.ts_store()
        e('s_endpgm')

        e.restore(snapC)
        e.label('L_c_mlp')
        self.mlp_setup()
        loads = self.mlp_loads()
        for it in loads[:cfg.cw0]:
            for x in it:
                self.emit_item(x)
        op_publish()
        for it in loads[cfg.cw0:]:
            for x in it:
                self.emit_item(x)

        e.label('L_mlp2')
        e.restore(immediate_unknown(e))
        vP = vVt
        self.spin_begin('L_hp_poll')
        for u in range(4):
            e('global_load_dwordx4 %s, v%d, %s offset:%d sc1' % (vr(vP + 4 * u), vHPA, sr(sWS), 1024 * u))
        e.wait_vm0()
        self.strip(vP, 4, vT)
        self.spin_end('L_hp_poll', vT)
        self.ts(8)
        e('v_and_b32 v%d, 0xffff0000, v%d' % (vHX + 1, vHX))
        e('v_lshlrev_b32 v%d, 16, v%d' % (vHX, vHX))
        for hh in (0, 2):
            e('v_pk_add_f32 %s, %s, %s' % (vr(vP + hh, 2), vr(vP + hh, 2), vr(vP + 4 + hh, 2)))
            e('v_pk_add_f32 %s, %s, %s' % (vr(vP + 8 + hh, 2), vr(vP + 8 + hh, 2), vr(vP + 12 + hh, 2)))
        for hh in (0, 2):
            e('v_pk_add_f32 %s, %s, %s' % (vr(vP + hh, 2), vr(vP + hh, 2), vr(vP + 8 + hh, 2)))
        for c in range(4):
            e('v_add_f32_dpp v%d, v%d, v%d %s' % (vP + c, vP + c, vP + c, X2))
        e('v_cndmask_b32 v%d, v%d, v%d, %s' % (vP, vP, vP + 2, sr(sBIT1)))
        e('v_cndmask_b32 v%d, v%d, v%d, %s' % (vP + 1, vP + 1, vP + 3, sr(sBIT1)))
        y0, y1 = vP, vP + 1
        e('v_add_f32_dpp v%d, v%d, v%d %s' % (y0, y0, y0, X1))
        e('v_add_f32_dpp v%d, v%d, v%d %s' % (y1, y1, y1, X1))
        e(self.rnd(y0, y0))
        e(self.rnd(y1, y1))
        e('v_add_f32 v%d, v%d, v%d' % (y0, y0, vHX))
        e('v_add_f32 v%d, v%d, v%d' % (y1, y1, vHX + 1))
        for ln, lst in ((0, L_ST1), (1, L_ST2)):
            e(self.rnd(y0, y0))
            e(self.rnd(y1, y1))
            z, z2 = vP + 2, vP + 3
            e('v_add_f32 v%d, v%d, v%d' % (z, y0, y1))
            e('v_mul_f32 v%d, v%d, v%d' % (z2, y0, y0))
            e('v_fmac_f32 v%d, v%d, v%d' % (z2, y1, y1))
            e('v_cndmask_b32 v%d, v%d, v%d, %s' % (z, z, z2, sr(sBIT0)))
            for d in (X2, ROR(4), ROR(8)):
                e('v_add_f32_dpp v%d, v%d, v%d %s' % (z, z, z, d))
            e('s_mov_b64 exec, %s' % sr(sL2))
            e('ds_write_b32 v%d, v%d offset:%d' % (vSTW, z, lst))
            e('s_mov_b64 exec, -1')
            self.barrier()
            e('ds_read_b128 %s, v%d offset:%d' % (vr(vP + 4), vSTR, lst))
            e('ds_read_b128 %s, v%d offset:%d' % (vr(vP + 8), vSTR, lst + 16))
            e('s_waitcnt lgkmcnt(0)')
            e('v_pk_add_f32 %s, %s, %s' % (vr(vP + 4, 2), vr(vP + 4, 2), vr(vP + 8, 2)))
            e('v_pk_add_f32 %s, %s, %s' % (vr(vP + 6, 2), vr(vP + 6, 2), vr(vP + 10, 2)))
            e('v_pk_add_f32 %s, %s, %s' % (vr(vP + 4, 2), vr(vP + 4, 2), vr(vP + 6, 2)))
            e('v_add_f32 v%d, v%d, v%d' % (z, vP + 4, vP + 5))
            for d in (X2, ROR(4), ROR(8)):
                e('v_add_f32_dpp v%d, v%d, v%d %s' % (z, z, z, d))
            e('v_mov_b32_dpp v%d, v%d quad_perm:[1,1,3,3] %s' % (z2, z, DPP))
            e('v_mov_b32_dpp v%d, v%d quad_perm:[0,0,2,2] %s' % (z, z, DPP))
            m, sd, r, t = vP + 4, vP + 5, vP + 6, vP + 7
            for x in self.ln_scalars('v%d' % z, 'v%d' % z2, vINVM, m, sd, r, t):
                e(x)
            self.weave(self.ln_apply(y0, m, sd, r, vP + 8), self.ln_apply(y1, m, sd, r, vP + 9))
        e('v_cvt_pk_bf16_f32 v%d, v%d, v%d' % (y0, y0, y0))
        e('v_cvt_pk_bf16_f32 v%d, v%d, v%d' % (y1, y1, y1))
        self.ts(9)
        self.gemv8(y0, y1, vW1)
        e('s_mov_b64 exec, %s' % sr(sVALID))
        e('ds_write_b128 v%d, %s offset:%d' % (vDQ, vr(vD), L_QPART))
        e('s_mov_b64 exec, -1')
        self.barrier()
        self.ts(10)
        e('s_cmp_lg_u32 s%d, 8' % sW)
        e('s_cbranch_scc1 L_mlp3')
        snapG = e.snap()
        e('v_lshlrev_b32 v157, 2, v%d' % vL)
        for i in range(9):
            e('ds_read2st64_b32 %s, v157 offset0:%d offset1:%d' % (vr(vP + 2 * i, 2), 2 * i, 2 * i + 1))
        e('v_lshlrev_b32 v%d, 16, v%d' % (vB1, vB1))
        c1 = -2.0 * LOG2E * 0.7978845608028654
        e('v_mov_b32 v158, %s' % f32(c1 * 0.044715))
        e('s_waitcnt lgkmcnt(0)')
        regs = [vP + 2 * i for i in range(9)]
        while len(regs) > 1:
            nxt = []
            for i in range(0, len(regs) - 1, 2):
                e('v_pk_add_f32 %s, %s, %s' % (vr(regs[i], 2), vr(regs[i], 2), vr(regs[i + 1], 2)))
                nxt.append(regs[i])
            if len(regs) & 1:
                nxt.append(regs[-1])
            regs = nxt
        u = vP
        e('v_add_f32 v%d, v%d, v%d' % (u, vP, vP + 1))
        e(self.rnd(u, u))
        e('v_add_f32 v%d, v%d, v%d' % (u, u, vB1))
        e(self.rnd(u, u))
        e('v_mul_f32 v%d, v%d, v%d' % (u + 1, u, u))
        e('v_fmaak_f32 v%d, v%d, v158, %s' % (u + 1, u + 1, f32(c1)))
        e('v_mul_f32 v%d, v%d, v%d' % (u + 1, u + 1, u))
        e('v_exp_f32 v%d, v%d' % (u + 1, u + 1))
        e('v_add_f32 v%d, 1.0, v%d' % (u + 1, u + 1))
        e('v_rcp_f32 v%d, v%d' % (u + 1, u + 1))
        e('v_mul_f32 v%d, v%d, v%d' % (u, u, u + 1))
        e('v_cvt_pk_bf16_f32 v%d, v%d, v%d' % (u, u, u))
        e('ds_write_b32 v157, v%d offset:%d' % (u, L_H1))
        e('s_waitcnt lgkmcnt(0)')
        e.label('L_mlp3')
        e('s_barrier')
        e('ds_read_b64 %s, v%d offset:%d' % (vr(vP, 2), vH1A, L_H1))
        self.ts(11)
        e('v_mov_b32 v%d, 0xffffff00' % (vP + 8))
        e('s_waitcnt lgkmcnt(0)')
        self.gemv8(vP, vP + 1, vW2)
        for c in range(4):
            e('v_permlane32_swap_b32 v%d, v%d' % (vD + c, vP + 4 + c))
        for c in range(4):
            e('v_add_f32_dpp v%d, v%d, v%d %s' % (vD + c, vP + 4 + c, vD + c, ROR(8)))
        self.tag(vD, vP + 8)
        e('s_mov_b32 exec_lo, 0x00ff00ff')
        e('s_mov_b32 exec_hi, 0')
        e('global_store_dwordx4 v%d, %s, %s sc1' % (vFPA, vr(vD), sr(sWS)))
        e('s_mov_b64 exec, -1')
        self.ts(12)
        self.ts_store()
        e.label('L_end')
        e('s_endpgm')

        e.raw('.section .rodata,"a"')
        e.raw('.p2align 6')
        e.raw('.amdhsa_kernel %s' % K)
        e.raw('  .amdhsa_next_free_vgpr 168')
        e.raw('  .amdhsa_next_free_sgpr 102')
        e.raw('  .amdhsa_accum_offset 168')
        e.raw('  .amdhsa_group_segment_fixed_size 0')
        e.raw('  .amdhsa_kernarg_size 104')
        e.raw('  .amdhsa_user_sgpr_count 2')
        e.raw('  .amdhsa_user_sgpr_kernarg_segment_ptr 1')
        e.raw('  .amdhsa_system_sgpr_workgroup_id_x 1')
        e.raw('.end_amdhsa_kernel')
        return e.text()

    def wo_ids(self):
        e = self.e
        e('s_mul_i32 s%d, s%d, 18' % (sID, sXCD))
        e('s_add_u32 s%d, s%d, s%d' % (sID, sID, sIDX))
        e('s_cmp_ge_u32 s%d, 9' % sIDX)
        e('s_cselect_b32 s59, 1, 0')
        e('s_lshl1_add_u32 s%d, s%d, s59' % (sGP, sXCD))
        e('s_mul_i32 s59, s59, 9')
        e('s_sub_u32 s%d, s%d, s59' % (sC, sIDX))

    def mlp_setup(self):
        e = self.e
        e('s_mul_i32 s%d, s%d, 9' % (sID, sXCD))
        e('s_add_u32 s%d, s%d, s%d' % (sID, sID, sIDX))
        e('s_sub_u32 s%d, s%d, 18' % (sID, sID))
        rho, c16 = vMA, vMA + 1
        e('v_lshrrev_b32 v%d, 3, v%d' % (rho, vL))
        e('v_and_b32 v%d, 0x70, v%d' % (c16, vKV))
        e('v_mov_b32 v%d, %d' % (vW1O, 8 * 9216))
        e('v_mov_b32 v%d, %d' % (vW2O, 8 * 1152))
        e('v_mad_u32_u24 v%d, v%d, v%d, v%d' % (vW1O, rho, vW1O, c16))
        e('v_mad_u32_u24 v%d, v%d, v%d, v%d' % (vW2O, rho, vW2O, c16))
        e('s_mul_i32 s59, s%d, %d' % (sW, 64 * 9216))
        e('s_lshl_b32 s60, s%d, 7' % sID)
        e('s_add_u32 s59, s59, s60')
        self.add64(sA, sW1, 's59')
        e('s_mul_i32 s59, s%d, %d' % (sID, 64 * 1152))
        e('s_lshl_b32 s60, s%d, 7' % sW)
        e('s_add_u32 s59, s59, s60')
        e('s_add_u32 s59, s59, 4032')
        self.add64(sB, sW2, 's59')
        e('v_lshrrev_b32 v%d, 1, v%d' % (vH1A, vL))
        e('v_lshl_add_u32 v%d, v%d, 2, s60' % (vHX + 1, vH1A))
        e('global_load_dword v%d, v%d, %s' % (vHX, vHX + 1, sr(sX)), 'HX')
        e('v_lshlrev_b32 v%d, 3, v%d' % (vH1A, vH1A))
        e('s_lshl_b32 s59, s%d, 12' % sW)
        e('s_add_u32 s59, s59, 0x%x' % WS_HP)
        e('v_lshl_add_u32 v%d, v%d, 4, s59' % (vHPA, vL))
        e('v_and_b32 v%d, 1, v%d' % (vSTW, vL))
        e('v_lshlrev_b32 v%d, 8, v%d' % (vSTW, vSTW))
        e('v_bfe_u32 v%d, v%d, 1, 3' % (vSTR, vL))
        e('v_lshl_add_u32 v%d, v%d, 5, v%d' % (vSTR, vSTR, vSTW))
        e('v_lshrrev_b32 v%d, 4, v%d' % (rho, vL))
        e('v_lshl_add_u32 v%d, v%d, 2, v%d' % (vSTW, rho, vSTW))
        e('s_lshl_b32 s59, s%d, 4' % sW)
        e('v_add_u32 v%d, s59, v%d' % (vSTW, vSTW))
        e('v_and_b32 v%d, 1, v%d' % (rho, rho))
        e('v_lshrrev_b32 v%d, 3, v%d' % (c16, c16))
        e('v_add_u32 v%d, v%d, v%d' % (rho, rho, c16))
        e('s_mul_i32 s59, s%d, %d' % (sW, 16 * 1152))
        e('s_lshl4_add_u32 s59, s%d, s59' % sID)
        e('s_add_u32 s59, s59, 0x%x' % WS_FP)
        e('v_mov_b32 v%d, 1152' % vFPA)
        e('v_mad_u32_u24 v%d, v%d, v%d, s59' % (vFPA, rho, vFPA))
        e('v_mov_b32 v%d, %s' % (vINVM, f32(1.0 / 576)))
        e('s_mov_b32 s%d, 0xaaaaaaaa' % sBIT0)
        e('s_mov_b32 s%d, 0xaaaaaaaa' % (sBIT0 + 1))
        e('s_mov_b32 s%d, 0xcccccccc' % sBIT1)
        e('s_mov_b32 s%d, 0xcccccccc' % (sBIT1 + 1))
        e('s_mov_b32 s%d, 0x00030003' % sL2)
        e('s_mov_b32 s%d, 0x00030003' % (sL2 + 1))

    def mlp_loads(self):
        out = []
        for jj in range(8):
            it = [('load', 'global_load_dwordx4 %s, v%d, %s nt' % (vr(vW1 + 4 * jj), vW1O, sr(sA)), 'A%d' % jj)]
            if jj < 7:
                it.append('s_add_u32 s%d, s%d, 9216' % (sA, sA))
                it.append('s_addc_u32 s%d, s%d, 0' % (sA + 1, sA + 1))
            out.append(it)
        for jj in range(8):
            out.append([('load', 'global_load_dwordx4 %s, v%d, %s offset:%d nt' % (vr(vW2 + 4 * jj), vW2O, sr(sB), 1152 * jj - 4032), 'B%d' % jj)])
        return out


vW1O, vW2O, vHPA, vSTW, vSTR, vFPA, vH1A, vINVM = 144, 145, 146, 147, 148, 149, 150, 151
vHX = 152
vMA = 154
sBIT0, sBIT1, sL2 = 44, 46, 48


def immediate_unknown(e):
    return ([], [])


def main():
    ap = argparse.ArgumentParser()
    ap.add_argument('-o', default='cdna_kernels/%s.s' % NAME)
    ap.add_argument('--diag', type=int, default=0)
    ap.add_argument('--spin', type=int, default=0x2000)
    ap.add_argument('--nka', type=int, default=3)
    ap.add_argument('--nvb', type=int, default=2)
    ap.add_argument('--vq', type=str, default='1,3,5,7')
    ap.add_argument('--vm', type=int, default=1)
    ap.add_argument('--mw0', type=int, default=4)
    ap.add_argument('--cw0', type=int, default=4)
    ap.add_argument('--rorsign', type=int, default=1)
    cfg = ap.parse_args()
    cfg.vq = [int(x) for x in cfg.vq.split(',') if x != '']
    g = Gen(cfg)
    txt = g.build()
    open(cfg.o, 'w').write(txt)
    print('wrote', cfg.o, 'instructions', g.e.nins)


if __name__ == '__main__':
    main()
```

```python
import sys, struct, argparse
sys.path.insert(0, 'dev')
from emit import Em, Ins, need

NAME = 'sequential_preLN__sliding_block_cached__mixer_channel_mlp__decode'


def f32(x):
    return '0x%08x' % struct.unpack('<I', struct.pack('<f', x))[0]


WS_QP = 0x10000
WS_ML = 0x30000
WS_OP = 0x40000
WS_HP = 0x80000
WS_FP = 0x90000
WS_TS = 0x100000

L_QPART = 0x0000
L_QL = 0x1200
L_MX = 0x1400
L_LP = 0x1500
L_F = 0x1600
L_ST1 = 0x1700
L_ST2 = 0x1900
L_H1 = 0x1B00
L_OPART = 0x2000
LDS_SIZE = 0x4000

LOG2E = 1.4426950408889634
SCALE = 128 ** -0.5

DPP = 'row_mask:0xf bank_mask:0xf'
X1 = 'quad_perm:[1,0,3,2] ' + DPP
X2 = 'quad_perm:[2,3,0,1] ' + DPP
HM = 'row_half_mirror ' + DPP
MI = 'row_mirror ' + DPP


def ROR(n):
    return 'row_ror:%d %s' % (n, DPP)


def vr(a, n=4):
    return 'v[%d:%d]' % (a, a + n - 1)


def sr(a, n=2):
    return 's[%d:%d]' % (a, a + n - 1)


sX, sK, sV, sWQ, sWO, sW1, sB1, sW2, sB2, sOUT, sDBG, sWS = 4, 6, 8, 10, 12, 16, 18, 20, 22, 24, 26, 28
sW = 3
sT = 30
sT0 = 31
sLOG2E = 35
sONES = 36
sG, sS, sIDX, sXCD, sID = 39, 40, 41, 42, 43
sKB, sVB, sQ0, sQ1 = 44, 46, 48, 50
sA, sB = 52, 54
sVALID = 56
sSPIN = 58
sTMP = 59
sTS = 64
sGP, sC = 96, 97
sL8 = 98

vL = 1
vM = 2
vKV = 6
vDQ = 7
vD = 8
vT = 12
vKt = 16
vVt = 48
vW1 = 80
vW2 = 112
vQO, vQX = 144, 148
vSC = 152
vU = 160


class Gen:
    def __init__(self, cfg):
        self.cfg = cfg
        self.e = Em()
        self.nts = 0

    def ts(self, k):
        if self.cfg.diag == 1 or (self.cfg.diag >= 2 and k == 0):
            self.e('s_memrealtime %s' % sr(sTS + 2 * k))

    def ts_store(self, nslots=16):
        e = self.e
        if self.cfg.diag not in (1, 2):
            return
        e('s_waitcnt lgkmcnt(0)')
        e('s_mul_i32 s59, s2, 9')
        e('s_add_u32 s59, s59, s%d' % sW)
        e('s_lshl_b32 s59, s59, 7')
        e('s_add_u32 s59, s59, 0x%x' % WS_TS)
        e('s_mov_b64 exec, 1')
        if self.cfg.diag == 2:
            e('s_memrealtime s[60:61]')
            e('v_mov_b32 v0, 0')
            e('s_not_b32 s59, s%d' % sTS)
            e('v_mov_b32 v%d, s59' % vU)
            e('s_waitcnt lgkmcnt(0)')
            e('v_mov_b32 v%d, s60' % (vU + 1))
            e('global_atomic_umax v0, v%d, %s' % (vU, sr(sDBG)))
            e('global_atomic_umax v0, v%d, %s offset:4' % (vU + 1, sr(sDBG)))
            e('s_mov_b64 exec, -1')
            return
        e('v_mov_b32 v0, s59')
        for k in range(0, nslots, 4):
            for j in range(4):
                e('v_mov_b32 v%d, s%d' % (vU + j, sTS + 2 * (k + j)))
            e('global_store_dwordx4 v0, %s, %s offset:%d' % (vr(vU), sr(sWS), 4 * k))
            e('s_nop 1')
        e('s_mov_b64 exec, -1')

    def pad_needed(self, text):
        ins = Ins(text)
        dist = 0
        pad = 0
        for p in reversed(self.e.hist):
            n = need(p, ins)
            if n > dist:
                pad = max(pad, n - dist)
            dist += p.ws
            if dist >= 12:
                break
        return pad

    def emit_item(self, it):
        if isinstance(it, str):
            self.e(it)
        elif it[0] == 'wait':
            self.e.wait_vm(it[1])
        elif it[0] == 'load':
            self.e(it[1], it[2])

    def weave(self, *streams):
        streams = [list(s) for s in streams if s]
        while any(streams):
            best = None
            for k, s in enumerate(streams):
                if not s:
                    continue
                it = s[0]
                if isinstance(it, str):
                    p = self.pad_needed(it)
                elif it[0] == 'load':
                    p = self.pad_needed(it[1])
                else:
                    p = 0
                if best is None or p < best[0]:
                    best = (p, k)
                if p == 0:
                    break
            self.emit_item(streams[best[1]].pop(0))

    def barrier(self):
        self.e('s_waitcnt lgkmcnt(0)')
        self.e('s_barrier')

    def add64(self, dst, base, off):
        self.e('s_add_u32 s%d, s%d, %s' % (dst, base, off))
        self.e('s_addc_u32 s%d, s%d, 0' % (dst + 1, base + 1))

    def rnd(self, d, s):
        return 'v_cvt_pk_bf16_f32 v%d, 0, v%d' % (d, s)

    def ln_scalars(self, S, Q, inv, m, sd, r, t):
        return [
            'v_mul_f32 v%d, %s, v%d' % (m, S, inv),
            'v_mul_f32 v%d, %s, v%d' % (t, Q, inv),
            'v_fma_f32 v%d, -v%d, v%d, v%d' % (t, m, m, t),
            self.rnd(m, m),
            self.rnd(t, t),
            'v_add_f32 v%d, %s, v%d' % (t, f32(1e-5), t),
            self.rnd(t, t),
            'v_sqrt_f32 v%d, v%d' % (sd, t),
            self.rnd(sd, sd),
            'v_rcp_f32 v%d, v%d' % (r, sd),
        ]

    def ln_apply(self, x, m, sd, r, t):
        return [
            'v_sub_f32 v%d, v%d, v%d' % (x, x, m),
            self.rnd(x, x),
            'v_mul_f32 v%d, v%d, v%d' % (t, x, r),
            'v_fma_f32 v%d, -v%d, v%d, v%d' % (x, t, sd, x),
            'v_fma_f32 v%d, v%d, v%d, v%d' % (x, x, r, t),
        ]

    def spin_begin(self, name):
        self.e('s_movk_i32 s%d, 0x%x' % (sSPIN, self.cfg.spin))
        self.e.label(name)

    def spin_end(self, name, acc, bytemask=True):
        e = self.e
        if bytemask:
            e('v_and_b32 v%d, 0xff, v%d' % (acc, acc))
        e('v_cmp_ne_u32 vcc, 0, v%d' % acc)
        e('s_sub_u32 s%d, s%d, 1' % (sSPIN, sSPIN))
        e('s_cbranch_scc1 %s_x' % name)
        e('s_cbranch_vccnz %s' % name)
        e.label(name + '_x')

    def strip(self, base, n, acc):
        e = self.e
        regs = []
        for gi in range(n):
            for i in range(4):
                r = base + 4 * gi + i
                e('v_xor_b32 v%d, s%d, v%d' % (r, sT0 + i, r))
                regs.append(r)
        e('v_or3_b32 v%d, v%d, v%d, v%d' % (acc, regs[0], regs[1], regs[2]))
        k = 3
        while k < len(regs):
            if k + 1 < len(regs):
                e('v_or3_b32 v%d, v%d, v%d, v%d' % (acc, acc, regs[k], regs[k + 1]))
                k += 2
            else:
                e('v_or_b32 v%d, v%d, v%d' % (acc, acc, regs[k]))
                k += 1

    def tag(self, base, vmask):
        for i in range(4):
            self.e('v_and_or_b32 v%d, v%d, v%d, s%d' % (base + i, base + i, vmask, sT0 + i))

    def a_ops_plain(self, dst, src):
        return ['v_and_b32 v%d, v%d, v%d' % (dst + p, src, vM + p) for p in range(4)]

    def a_ops_rot(self, dst, src, j):
        out = []
        for p in range(4):
            n = (2 * (p - j) * self.cfg.rorsign) % 16
            if n == 0:
                out.append('v_and_b32 v%d, v%d, v%d' % (dst + p, src, vM + p))
            else:
                out.append('v_and_b32_dpp v%d, v%d, v%d %s' % (dst + p, src, vM + p, ROR(n)))
        return out

    def mfma(self, d, a, b, first):
        return 'v_mfma_f32_16x16x32_bf16 %s, %s, %s, %s' % (vr(d), vr(a), vr(b), '0' if first else vr(d))

    def gemv8(self, ya, yb, wbase):
        e = self.e
        A = lambda jj: self.a_ops_rot(vKt + 4 * jj, yb if (jj & 1) else ya, jj >> 1)
        for x in A(0):
            e(x)
        for jj in range(8):
            if jj + 1 < 8:
                for x in A(jj + 1):
                    e(x)
            e(self.mfma(vD, vKt + 4 * jj, wbase + 4 * jj, jj == 0))

    def kload(self, t):
        return ('load', 'global_load_dwordx4 %s, v%d, %s offset:%d nt' % (vr(vKt + 4 * t), vKV, sr(sKB), 256 * t), 'K%d' % t)

    def vload(self, t):
        return ('load', 'global_load_dwordx4 %s, v%d, %s offset:%d nt' % (vr(vVt + 4 * t), vKV, sr(sVB), 256 * t), 'V%d' % t)

    def build(self):
        e = self.e
        cfg = self.cfg
        K = NAME + '_kernel'
        e.raw('; @launch grid=(256,1,1) block=(576,1,1) lds=%d' % LDS_SIZE)
        e.raw('.amdgcn_target "amdgcn-amd-amdhsa--gfx950"')
        e.raw('.text')
        e.raw('.globl %s' % K)
        e.raw('.p2align 8')
        e.raw('.type %s,@function' % K)
        e.label(K)
        e('s_cmp_ge_u32 s2, 0x100')
        e('s_cbranch_scc1 L_end')
        e('s_load_dwordx16 s[4:19], s[0:1], 0')
        e('s_load_dwordx8 s[20:27], s[0:1], 64')
        e('s_load_dwordx2 s[28:29], s[0:1], 96')
        self.ts(0)
        e('s_getpc_b64 s[60:61]')
        e.label('L_pc')
        e('v_lshlrev_b32 v12, 7, v0')
        e('v_min_u32 v12, L_end-L_pc, v12')
        e('v_mov_b32 v14, s60')
        e('v_mov_b32 v15, s61')
        e('v_add_co_u32 v14, vcc, v14, v12')
        e('v_lshrrev_b32 v13, 6, v0')
        e('v_and_b32 v%d, 63, v0' % vL)
        e('v_addc_co_u32 v15, vcc, 0, v15, vcc')
        e('v_readfirstlane_b32 s%d, v13' % sW)
        e('global_load_dword v%d, v[14:15], off' % (vU + 7), 'PF')
        e('s_and_b32 s%d, s2, 7' % sXCD)
        e('s_lshr_b32 s%d, s2, 3' % sIDX)
        e('s_lshr_b32 s%d, s%d, 4' % (sG, sIDX))
        e('s_lshl1_add_u32 s%d, s%d, s%d' % (sG, sXCD, sG))
        e('s_and_b32 s%d, s%d, 15' % (sS, sIDX))
        e('s_lshr_b32 s59, s%d, 2' % sS)
        e('s_mul_i32 s59, s59, 144')
        e('s_lshl4_add_u32 s59, s%d, s59' % sW)
        e('s_lshl_b32 s60, s59, 13')
        e('s_lshl_b32 s61, s%d, 9' % sG)
        e('s_add_u32 s60, s60, s61')
        e('s_and_b32 s61, s%d, 3' % sS)
        e('s_lshl_b32 s61, s61, 7')
        e('s_add_u32 s60, s60, s61')
        e('s_lshl_b32 s59, s59, 1')
        e('s_lshl_b32 s61, s%d, 24' % sG)
        e('s_lshl_b32 s62, s%d, 16' % sS)
        e('s_add_u32 s61, s61, s62')
        e('s_lshl_b32 s62, s%d, 13' % sW)
        e('s_add_u32 s61, s61, s62')
        e('s_add_u32 s61, s61, 0x%x' % (61440 * 256))
        vRHO, vC16, vXA, vXB, vXC, vQOFF = 12, 13, 14, 15, vU, vU + 1
        e('v_lshrrev_b32 v%d, 3, v%d' % (vRHO, vL))
        e('v_and_b32 v%d, 7, v%d' % (vC16, vL))
        e('v_lshlrev_b32 v%d, 4, v%d' % (vC16, vC16))
        e('v_lshlrev_b32 v%d, 4, v%d' % (vXA, vL))
        e('v_lshlrev_b32 v%d, 1, v%d' % (vXB, vL))
        e('v_lshl_add_u32 v%d, v%d, 2, s59' % (vXC, vRHO))
        e('v_lshl_add_u32 v%d, v%d, 14, v%d' % (vQOFF, vRHO, vC16))
        e('v_lshrrev_b32 v%d, 4, v%d' % (vKV, vL))
        e('v_and_b32 v%d, 0xf0, v%d' % (vU + 2, vXA))
        e('v_lshl_add_u32 v%d, v%d, 11, v%d' % (vKV, vKV, vU + 2))
        e('s_waitcnt lgkmcnt(0)')
        e('s_load_dword s%d, %s, 0' % (sT, sr(sWS)))
        vX = vW2 + 8
        e('global_load_dwordx4 %s, v%d, %s' % (vr(vX), vXA, sr(sX)), 'XA')
        e('global_load_ushort v%d, v%d, %s offset:1024' % (vX + 4, vXB, sr(sX)), 'XB')
        e('global_load_dword v%d, v%d, %s' % (vX + 5, vXC, sr(sX)), 'XC')
        self.add64(sQ0, sWQ, 's60')
        e('global_load_dwordx4 %s, v%d, %s nt' % (vr(vW2), vQOFF, sr(sQ0)), 'Q0')
        self.add64(sQ1, sQ0, '0x2000')
        e('global_load_dwordx4 %s, v%d, %s nt' % (vr(vW2 + 4), vQOFF, sr(sQ1)), 'Q1')
        self.add64(sKB, sK, 's61')
        self.add64(sVB, sV, 's61')
        e('s_cmp_eq_u32 s%d, 8' % sW)
        e('s_cbranch_scc1 L_w8_pre')
        snapA = e.snap()
        for t in range(cfg.nka):
            self.emit_item(self.kload(t))
        e.label('L_pre_join')
        self.ts(1)
        e('v_and_b32 v%d, 3, v%d' % (vU + 2, vL))
        e('v_lshlrev_b32 v%d, 4, v%d' % (vU + 2, vU + 2))
        e('v_mov_b32 v%d, 0xffff' % (vU + 4))
        e('v_mov_b32 v%d, 0' % (vU + 5))
        e('v_lshlrev_b64 %s, v%d, %s' % (vr(vU + 4, 2), vU + 2, vr(vU + 4, 2)))
        e('v_bfe_i32 v%d, v%d, 2, 1' % (vU + 2, vL))
        e('v_and_b32 v%d, v%d, v%d' % (vM + 2, vU + 4, vU + 2))
        e('v_and_b32 v%d, v%d, v%d' % (vM + 3, vU + 5, vU + 2))
        e('v_xor_b32 v%d, v%d, v%d' % (vM + 0, vU + 4, vM + 2))
        e('v_xor_b32 v%d, v%d, v%d' % (vM + 1, vU + 5, vM + 3))
        e('v_lshrrev_b32 v%d, 5, v%d' % (vDQ, vL))
        e('v_lshlrev_b32 v%d, 8, v%d' % (vDQ, vDQ))
        e('v_lshl_add_u32 v%d, v%d, 1, v%d' % (vDQ, vC16, vDQ))
        e('v_and_b32 v%d, 16, v%d' % (vU + 2, vL))
        e('s_lshl_b32 s59, s%d, 9' % sW)
        e('v_add3_u32 v%d, v%d, v%d, s59' % (vDQ, vDQ, vU + 2))
        e('s_mov_b32 s%d, 0x00ff00ff' % sVALID)
        e('s_mov_b32 s%d, 0xff00ff00' % (sVALID + 1))
        e('s_mov_b32 s%d, 0x01010101' % sL8)
        e('s_mov_b32 s%d, 0x01010101' % (sL8 + 1))
        e('s_mov_b32 s%d, %s' % (sLOG2E, f32(LOG2E)))
        e('s_mov_b32 s%d, 0x3f803f80' % sONES)
        vINV = vU + 6
        e('v_mov_b32 v%d, %s' % (vINV, f32(1.0 / 576)))
        e.wait_vm('XB')
        vS, vQ = vU + 2, vU + 3
        for k in range(5):
            e('v_dot2_f32_bf16 v%d, v%d, s%d, %s' % (vS, vX + k, sONES, '0' if k == 0 else 'v%d' % vS))
            e('v_dot2_f32_bf16 v%d, v%d, v%d, %s' % (vQ, vX + k, vX + k, '0' if k == 0 else 'v%d' % vQ))
        for d in (X1, X2, HM, MI):
            e('v_add_f32_dpp v%d, v%d, v%d %s' % (vS, vS, vS, d))
            e('v_add_f32_dpp v%d, v%d, v%d %s' % (vQ, vQ, vQ, d))
        for d in ('row_bcast:15 row_mask:0xa bank_mask:0xf', 'row_bcast:31 row_mask:0xc bank_mask:0xf'):
            e('v_add_f32_dpp v%d, v%d, v%d %s' % (vS, vS, vS, d))
            e('v_add_f32_dpp v%d, v%d, v%d %s' % (vQ, vQ, vQ, d))
        e('v_readlane_b32 s59, v%d, 63' % vS)
        e('v_readlane_b32 s60, v%d, 63' % vQ)
        e.wait_vm('XC')
        y0, y1 = vX, vX + 1
        e('v_lshlrev_b32 v%d, 16, v%d' % (y0, vX + 5))
        e('v_and_b32 v%d, 0xffff0000, v%d' % (y1, vX + 5))
        m, sd, r, t = vU + 2, vU + 3, vU + 4, vU + 5
        for x in self.ln_scalars('s59', 's60', vINV, m, sd, r, t):
            e(x)
        self.weave(self.ln_apply(y0, m, sd, r, vX + 2), self.ln_apply(y1, m, sd, r, vX + 3))
        e('v_cvt_pk_bf16_f32 v%d, v%d, v%d' % (y0, y0, y0))
        e('v_cvt_pk_bf16_f32 v%d, v%d, v%d' % (y1, y1, y1))
        A0, A1 = vT, vX + 4
        for x in self.a_ops_plain(A0, y0):
            e(x)
        for x in self.a_ops_plain(A1, y1):
            e(x)
        e.wait_vm('Q0')
        e(self.mfma(vD, A0, vW2, True))
        e.wait_vm('Q1')
        e(self.mfma(vD, A1, vW2 + 4, False))
        e('s_waitcnt lgkmcnt(0)')
        e('s_add_u32 s%d, s%d, 0x01010101' % (sT, sT))
        e('s_and_b32 s%d, s%d, 0xff' % (sT0, sT))
        e('s_bfe_u32 s%d, s%d, 0x80008' % (sT0 + 1, sT))
        e('s_bfe_u32 s%d, s%d, 0x80010' % (sT0 + 2, sT))
        e('s_lshr_b32 s%d, s%d, 24' % (sT0 + 3, sT))
        e('s_mov_b64 exec, %s' % sr(sVALID))
        e('ds_write_b128 v%d, %s offset:%d' % (vDQ, vr(vD), L_QPART))
        e('s_mov_b64 exec, -1')
        self.ts(2)
        self.barrier()
        e('s_cmp_eq_u32 s%d, 8' % sW)
        e('s_cbranch_scc1 L_comm')
        snapB1 = e.snap()

        for t in range(cfg.nka, 8):
            self.emit_item(self.kload(t))
        for t in range(cfg.nvb):
            self.emit_item(self.vload(t))
        vQA, vMXA, vLPA = vU, vU + 1, vU + 2
        e('v_and_b32 v%d, 8, v%d' % (vMXA, vL))
        e('v_lshlrev_b32 v%d, 5, v%d' % (vQA, vMXA))
        e('v_and_b32 v%d, 0xf0, v%d' % (vU + 3, vKV))
        e('v_add_u32 v%d, v%d, v%d' % (vQA, vQA, vU + 3))
        e('v_xor_b32 v%d, 0x100, v%d' % (vU + 3, vQA))
        e('v_lshlrev_b32 v%d, 4, v%d' % (vLPA, vMXA))
        e('v_lshrrev_b32 v%d, 1, v%d' % (vMXA, vMXA))
        e('v_lshrrev_b32 v%d, 4, v%d' % (vU + 4, vL))
        e('v_lshl_add_u32 v%d, v%d, 2, v%d' % (vLPA, vU + 4, vLPA))
        e('s_lshl_b32 s59, s%d, 4' % sW)
        e('v_add_u32 v%d, s59, v%d' % (vLPA, vLPA))
        vSCL = vU + 4
        e('v_mov_b32 v%d, %s' % (vSCL, f32(SCALE)))
        self.ts(3)
        e('s_barrier')
        e('ds_read_b128 %s, v%d offset:%d' % (vr(vQO), vQA, L_QL))
        e('ds_read_b128 %s, v%d offset:%d' % (vr(vQX), vU + 3, L_QL))
        self.ts(4)
        e('s_waitcnt lgkmcnt(0)')
        vnext = cfg.nvb
        prevR = []
        for t in range(8):
            a, b = vSC + t, (vT + (t & 1))
            D = [('wait', 'K%d' % t)]
            for k in range(4):
                D.append('v_dot2_f32_bf16 v%d, v%d, v%d, %s' % (a, vKt + 4 * t + k, vQO + k, '0' if k == 0 else 'v%d' % a))
                D.append('v_dot2_f32_bf16 v%d, v%d, v%d, %s' % (b, vKt + 4 * t + k, vQX + k, '0' if k == 0 else 'v%d' % b))
            if t in cfg.vq and vnext < 8:
                D.append(self.vload(vnext))
                vnext += 1
            self.weave(prevR, D)
            prevR = [
                'v_add_f32_dpp v%d, v%d, v%d %s' % (a, b, a, ROR(8)),
                'v_add_f32_dpp v%d, v%d, v%d %s' % (a, a, a, X1),
                'v_add_f32_dpp v%d, v%d, v%d %s' % (a, a, a, X2),
                'v_add_f32_dpp v%d, v%d, v%d %s' % (a, a, a, HM),
                self.rnd(a, a),
                'v_mul_f32 v%d, v%d, v%d' % (a, a, vSCL),
                self.rnd(a, a),
            ]
        mx = vT + 2
        pre = ['v_max3_f32 v%d, v%d, v%d, v%d' % (mx, vSC, vSC + 1, vSC + 2),
               'v_max3_f32 v%d, v%d, v%d, v%d' % (mx, mx, vSC + 3, vSC + 4),
               'v_max3_f32 v%d, v%d, v%d, v%d' % (mx, mx, vSC + 5, vSC + 6)]
        self.weave(prevR, pre)
        e('v_max_f32 v%d, v%d, v%d' % (mx, mx, vSC + 7))
        e('s_mov_b64 exec, %s' % sr(sL8))
        e('ds_max_f32 v%d, v%d offset:%d' % (vMXA, mx, L_MX))
        e('s_mov_b64 exec, -1')
        for _ in range(cfg.vm):
            if vnext < 8:
                self.emit_item(self.vload(vnext))
                vnext += 1
        self.ts(5)
        self.barrier()
        e('ds_read_b32 v%d, v%d offset:%d' % (mx, vMXA, L_MX))
        e('s_waitcnt lgkmcnt(0)')
        e('v_mul_f32 v%d, s%d, v%d' % (mx, sLOG2E, mx))
        for t in range(8):
            e('v_fma_f32 v%d, v%d, s%d, -v%d' % (vSC + t, vSC + t, sLOG2E, mx))
        for t in range(8):
            e('v_exp_f32 v%d, v%d' % (vSC + t, vSC + t))
        ls = vT
        e('v_add_f32 v%d, v%d, v%d' % (ls, vSC, vSC + 1))
        e('v_add_f32 v%d, v%d, v%d' % (ls + 1, vSC + 2, vSC + 3))
        e('v_add_f32 v%d, v%d, v%d' % (ls + 2, vSC + 4, vSC + 5))
        e('v_add_f32 v%d, v%d, v%d' % (ls + 3, vSC + 6, vSC + 7))
        e('v_add_f32 v%d, v%d, v%d' % (ls, ls, ls + 1))
        e('v_add_f32 v%d, v%d, v%d' % (ls + 2, ls + 2, ls + 3))
        e('v_add_f32 v%d, v%d, v%d' % (ls, ls, ls + 2))
        e('s_mov_b64 exec, %s' % sr(sL8))
        e('ds_write_b32 v%d, v%d offset:%d' % (vLPA, ls, L_LP))
        e('s_mov_b64 exec, -1')
        while vnext < 8:
            self.emit_item(self.vload(vnext))
            vnext += 1
        self.barrier()
        for t in range(8):
            e('v_cvt_pk_bf16_f32 v%d, v%d, v%d' % (vSC + t, vSC + t, vSC + t))
        for t in range(8):
            for x in self.a_ops_plain(vKt + 4 * t, vSC + t):
                e(x)
        vOPA = vU
        e('s_lshl_b32 s59, s%d, 10' % sW)
        e('v_lshl_add_u32 v%d, v%d, 4, s59' % (vOPA, vL))
        self.ts(6)
        e('s_cmp_lt_u32 s%d, 18' % sIDX)
        e('s_cbranch_scc1 L_wo')
        e('s_cmp_lt_u32 s%d, 27' % sIDX)
        e('s_cbranch_scc1 L_mlp')
        snapR = e.snap()

        def pv(extra=()):
            extra = list(extra)
            for t in range(8):
                e.wait_vm('V%d' % t)
                e(self.mfma(vD, vKt + 4 * t, vVt + 4 * t, t == 0))
                if extra:
                    for it in extra.pop(0):
                        self.emit_item(it)
            for ex in extra:
                for it in ex:
                    self.emit_item(it)
            e('ds_write_b128 v%d, %s offset:%d' % (vOPA, vr(vD), L_OPART))
            self.ts(7)
            self.barrier()

        pv()
        self.ts_store()
        e('s_endpgm')

        e.restore(snapR)
        e.label('L_wo')
        self.wo_ids()
        vWO = vU + 1
        e('v_lshrrev_b32 v%d, 3, v%d' % (vU + 2, vL))
        e('v_and_b32 v%d, 0x70, v%d' % (vWO, vKV))
        e('v_mov_b32 v%d, 4608' % (vU + 3))
        e('v_mad_u32_u24 v%d, v%d, v%d, v%d' % (vWO, vU + 2, vU + 3, vWO))
        e('s_lshl_b32 s59, s%d, 3' % sGP)
        e('s_add_u32 s59, s59, s%d' % sW)
        e('s_mul_i32 s59, s59, %d' % (32 * 1152))
        e('s_lshl_b32 s60, s%d, 7' % sC)
        e('s_add_u32 s59, s59, s60')
        self.add64(sA, sWO, 's59')
        for j in range(4):
            e('global_load_dwordx4 %s, v%d, %s offset:%d nt' % (vr(vW1 + 4 * j), vWO, sr(sA), 1152 * j), 'W%d' % j)
        vP0, vP1, vFA = vU + 1, vU + 2, vU + 3
        e('v_and_b32 v%d, 0xf0, v%d' % (vFA, vKV))
        e('v_lshl_add_u32 v%d, v%d, 8, v%d' % (vU + 2, vU + 2, vFA))
        e('s_lshl_b32 s59, s%d, 14' % sGP)
        e('s_lshl_b32 s60, s%d, 11' % sW)
        e('s_add_u32 s59, s59, s60')
        e('s_add_u32 s59, s59, 0x%x' % WS_OP)
        e('v_add_u32 v%d, s59, v%d' % (vP0, vU + 2))
        e('v_xor_b32 v%d, 0x80, v%d' % (vP1, vP0))
        e('s_lshr_b32 s59, s%d, 2' % sW)
        e('s_lshl_b32 s59, s59, 6')
        e('v_lshrrev_b32 v%d, 2, v%d' % (vFA, vFA))
        e('v_add_u32 v%d, s59, v%d' % (vFA, vFA))
        pv()
        f0, f1 = vU + 4, vU + 5
        e('ds_read_b32 v%d, v%d offset:%d' % (f0, vFA, L_F))
        self.spin_begin('L_wo_poll')
        e('global_load_dwordx4 %s, v%d, %s sc1' % (vr(vVt), vP0, sr(sWS)))
        e('global_load_dwordx4 %s, v%d, %s sc1' % (vr(vVt + 4), vP1, sr(sWS)))
        e('s_waitcnt vmcnt(0) lgkmcnt(0)')
        e.vm = []
        self.strip(vVt, 2, vT)
        self.spin_end('L_wo_poll', vT)
        self.ts(8)
        e('v_mov_b32_dpp v%d, v%d %s' % (f1, f0, ROR(8)))
        for c in range(4):
            e('v_mul_f32 v%d, v%d, v%d' % (vVt + c, vVt + c, f0))
        for c in range(4):
            e('v_fmac_f32 v%d, v%d, v%d' % (vVt + c, vVt + 4 + c, f1))
        for d in (X1, X2, HM):
            for c in range(4):
                e('v_add_f32_dpp v%d, v%d, v%d %s' % (vVt + c, vVt + c, vVt + c, d))
        for c in range(4):
            e('v_cvt_pk_bf16_f32 v%d, v%d, v%d' % (vVt + c, vVt + c, vVt + c))
        for x in self.a_ops_plain(vKt, vVt):
            e(x)
        for j in range(4):
            if j + 1 < 4:
                for x in self.a_ops_plain(vKt + 4 * (j + 1), vVt + j + 1):
                    e(x)
            e(self.mfma(vD, vKt + 4 * j, vW1 + 4 * j, j == 0))
        e('s_mov_b64 exec, %s' % sr(sVALID))
        e('ds_write_b128 v%d, %s offset:%d' % (vDQ, vr(vD), L_QPART))
        e('s_mov_b64 exec, -1')
        self.ts(9)
        self.barrier()
        self.ts_store()
        e('s_endpgm')

        e.restore(snapR)
        e.label('L_mlp')
        self.mlp_setup()
        loads = self.mlp_loads()
        for it in loads[:cfg.mw0]:
            for x in it:
                self.emit_item(x)
        pv(loads[cfg.mw0:])
        e('s_branch L_mlp2')
        snapM = e.snap()

        e.restore(snapA)
        e.label('L_w8_pre')
        vFX, vFB, vB1 = 16, 17, 156
        e('s_mul_i32 s59, s%d, 18' % sXCD)
        e('s_add_u32 s59, s59, s%d' % sIDX)
        e('s_min_u32 s59, s59, 143')
        e('s_lshl_b32 s59, s59, 3')
        e('v_lshrrev_b32 v19, 5, v%d' % vL)
        e('v_bfe_u32 v20, v%d, 4, 1' % vL)
        e('v_lshl_add_u32 v19, v20, 1, v19')
        e('v_lshl_add_u32 v19, v19, 1, s59')
        e('global_load_ushort v%d, v19, %s' % (vFX, sr(sX)), 'K0')
        e('global_load_ushort v%d, v19, %s' % (vFB, sr(sB2)), 'K1')
        e('s_mul_i32 s59, s%d, 9' % sXCD)
        e('s_add_u32 s59, s59, s%d' % sIDX)
        e('s_sub_u32 s59, s59, 18')
        e('s_min_u32 s59, s59, 71')
        e('s_lshl_b32 s59, s59, 7')
        e('v_add_u32 v20, s59, v%d' % vXB)
        e('global_load_ushort v%d, v20, %s' % (vB1, sr(sB1)), 'K2')
        for t in range(3, cfg.nka):
            e('global_load_ushort v21, v20, %s' % sr(sB1), 'K%d' % t)
        e('v_mov_b32 v20, 0')
        e('v_mov_b32 v21, 0xff800000')
        e('v_lshlrev_b32 v22, 2, v%d' % vL)
        e('ds_write2st64_b32 v22, v20, v20 offset0:%d offset1:%d' % (L_ST1 // 256, L_ST1 // 256 + 1))
        e('ds_write2st64_b32 v22, v20, v20 offset0:%d offset1:%d' % (L_ST2 // 256, L_ST2 // 256 + 1))
        e('ds_write_b32 v22, v21 offset:%d' % L_MX)
        e('s_branch L_pre_join')

        e.restore(snapB1)
        e.label('L_comm')
        vA = 24
        vMASK = 23
        e('v_lshlrev_b32 v%d, 3, v%d' % (vA, vL))
        for i in range(4):
            e('ds_read2_b64 %s, v%d offset0:%d offset1:%d' % (vr(32 + 4 * i), vA, 64 * i, 64 * i + 32))
        e('v_add_u32 v25, 0x800, v%d' % vA)
        for i in range(4):
            e('ds_read2_b64 %s, v25 offset0:%d offset1:%d' % (vr(48 + 4 * i), 64 * i, 64 * i + 32))
        e('v_add_u32 v25, 0x1000, v%d' % vA)
        e('ds_read2_b64 %s, v25 offset0:0 offset1:32' % vr(64))
        e('v_mov_b32 v%d, 0xffffff00' % vMASK)
        e('s_lshl_b32 s59, s%d, 13' % sG)
        e('s_lshl_b32 s60, s%d, 9' % sS)
        e('s_add_u32 s60, s60, s59')
        e('s_add_u32 s60, s60, 0x%x' % WS_QP)
        e('s_add_u32 s59, s59, 0x%x' % WS_QP)
        e('v_lshl_add_u32 v26, v%d, 4, s60' % vL)
        e('v_lshl_add_u32 v27, v%d, 4, s59' % vL)
        e('v_add_u32 v28, 0x1000, v27')
        e('s_waitcnt lgkmcnt(0)')
        n = 18
        regs = [32 + 2 * i for i in range(n)]
        while len(regs) > 1:
            nxt = []
            for i in range(0, len(regs) - 1, 2):
                e('v_pk_add_f32 %s, %s, %s' % (vr(regs[i], 2), vr(regs[i], 2), vr(regs[i + 1], 2)))
                nxt.append(regs[i])
            if len(regs) & 1:
                nxt.append(regs[-1])
            regs = nxt
        e('v_mov_b32 v34, s%d' % sT)
        e('v_mov_b32 v35, s%d' % sT)
        e('s_mov_b32 exec_hi, 0')
        e('global_store_dwordx4 v26, %s, %s sc1' % (vr(32), sr(sWS)))
        e('s_mov_b64 exec, -1')
        self.ts(3)
        self.spin_begin('L_q_poll')
        for r_ in range(4):
            for h in range(2):
                off = (r_ & 1) * 2048 + h * 1024
                e('global_load_dwordx4 %s, v%d, %s offset:%d sc1' % (vr(48 + 8 * r_ + 4 * h), 27 + (r_ >> 1), sr(sWS), off))
        e.wait_vm0()
        e('v_xor_b32 v25, s%d, v50' % sT)
        for k in range(1, 8):
            e('v_bitop3_b32 v25, v25, v%d, s%d bitop3:0xf6' % (50 + 4 * k, sT))
        self.spin_end('L_q_poll', 25, bytemask=False)
        for h in range(2):
            b = 48 + 4 * h
            e('v_pk_add_f32 %s, %s, %s' % (vr(b, 2), vr(b, 2), vr(b + 8, 2)))
            e('v_pk_add_f32 %s, %s, %s' % (vr(b + 16, 2), vr(b + 16, 2), vr(b + 24, 2)))
        for h in range(2):
            b = 48 + 4 * h
            e('v_pk_add_f32 %s, %s, %s' % (vr(b, 2), vr(b, 2), vr(b + 16, 2)))
        e('v_cvt_pk_bf16_f32 v48, v48, v49')
        e('v_cvt_pk_bf16_f32 v52, v52, v53')
        e('v_lshlrev_b32 v22, 2, v%d' % vL)
        e('ds_write2st64_b32 v22, v48, v52 offset0:%d offset1:%d' % (L_QL // 256, L_QL // 256 + 1))
        self.ts(4)
        self.barrier()
        e('v_lshrrev_b32 v24, 5, v%d' % vL)
        e('v_lshlrev_b32 v24, 13, v24')
        e('v_and_b32 v25, 15, v%d' % vL)
        e('v_lshl_add_u32 v24, v25, 9, v24')
        e('v_bfe_u32 v25, v%d, 4, 1' % vL)
        e('v_lshl_add_u32 v24, v25, 8, v24')
        e('s_lshl_b32 s59, s%d, 14' % sG)
        e('s_lshl4_add_u32 s59, s%d, s59' % sS)
        e('s_add_u32 s59, s59, 0x%x' % WS_OP)
        e('v_add_u32 v24, s59, v24')
        e('v_lshlrev_b32 v25, 4, v%d' % vL)
        e('s_lshl_b32 s59, s%d, 8' % sG)
        e('s_lshl4_add_u32 s59, s%d, s59' % sS)
        e('s_add_u32 s59, s59, 0x%x' % WS_ML)
        e('v_mov_b32 v26, s59')
        e('s_barrier')
        e('s_barrier')
        e('ds_read_b32 v33, v22 offset:%d' % L_LP)
        e('v_mov_b32 v27, 0')
        e('ds_read_b64 v[36:37], v27 offset:%d' % L_MX)
        e('s_waitcnt lgkmcnt(0)')
        for d in (X1, X2, HM, MI, 'row_bcast:15 row_mask:0xa bank_mask:0xf'):
            e('v_add_f32_dpp v33, v33, v33 %s' % d)
        e('v_readlane_b32 s59, v33, 31')
        e('v_readlane_b32 s60, v33, 63')
        e('v_mov_b32 v32, v36')
        e('v_mov_b32 v34, v37')
        e('v_mov_b32 v33, s59')
        e('v_mov_b32 v35, s60')
        self.tag(32, vMASK)
        e('s_mov_b64 exec, 1')
        e('global_store_dwordx4 v26, %s, %s sc1' % (vr(32), sr(sWS)))
        e('s_mov_b64 exec, -1')
        self.ts(5)
        e('s_cmp_lt_u32 s%d, 18' % sIDX)
        e('s_cbranch_scc1 L_c_wo')
        e('s_cmp_lt_u32 s%d, 27' % sIDX)
        e('s_cbranch_scc1 L_c_mlp')
        snapC = e.snap()

        def op_publish():
            e('s_barrier')
            self.ts(6)
            for w in range(8):
                e('ds_read_b128 %s, v25 offset:%d' % (vr(32 + 4 * w), L_OPART + 1024 * w))
            for st in (1, 2, 4):
                for w in range(0, 8, 2 * st):
                    if st == 1:
                        e('s_waitcnt lgkmcnt(%d)' % (0 if self.cfg.diag else 6 - w))
                    for hh in (0, 2):
                        e('v_pk_add_f32 %s, %s, %s' % (vr(32 + 4 * w + hh, 2), vr(32 + 4 * w + hh, 2), vr(32 + 4 * (w + st) + hh, 2)))
            self.tag(32, vMASK)
            e('global_store_dwordx4 v24, %s, %s sc1' % (vr(32), sr(sWS)))
            self.ts(7)

        op_publish()
        self.ts_store()
        e('s_endpgm')

        e.restore(snapC)
        e.label('L_c_wo')
        self.wo_ids()
        e('v_and_b32 v27, 15, v%d' % vL)
        e('s_lshl_b32 s59, s%d, 8' % sGP)
        e('s_add_u32 s59, s59, 0x%x' % WS_ML)
        e('v_lshl_add_u32 v26, v27, 4, s59')
        e('v_lshlrev_b32 v27, 2, v27')
        self.spin_begin('L_ml_poll')
        e('global_load_dwordx4 %s, v26, %s sc1' % (vr(40), sr(sWS)))
        e.wait_vm0()
        self.strip(40, 1, 44)
        self.spin_end('L_ml_poll', 44)
        e('v_mov_b32 v44, v40')
        e('v_mov_b32 v45, v42')
        for d in (X1, X2, HM, MI):
            e('v_max_f32_dpp v44, v44, v44 %s' % d)
            e('v_max_f32_dpp v45, v45, v45 %s' % d)
        e('v_sub_f32 v40, v40, v44')
        e('v_sub_f32 v42, v42, v45')
        e('v_mul_f32 v40, s%d, v40' % sLOG2E)
        e('v_mul_f32 v42, s%d, v42' % sLOG2E)
        e('v_exp_f32 v40, v40')
        e('v_exp_f32 v42, v42')
        e('v_mul_f32 v41, v41, v40')
        e('v_mul_f32 v43, v43, v42')
        for d in (X1, X2, HM, MI):
            e('v_add_f32_dpp v41, v41, v41 %s' % d)
            e('v_add_f32_dpp v43, v43, v43 %s' % d)
        e('v_rcp_f32 v41, v41')
        e('v_rcp_f32 v43, v43')
        e('v_mul_f32 v40, v40, v41')
        e('v_mul_f32 v42, v42, v43')
        e('ds_write_b32 v27, v40 offset:%d' % L_F)
        e('ds_write_b32 v27, v42 offset:%d' % (L_F + 64))
        e('v_lshrrev_b32 v26, 2, v%d' % vL)
        e('v_and_b32 v27, 3, v%d' % vL)
        e('v_lshlrev_b32 v28, 4, v26')
        e('v_lshl_add_u32 v28, v27, 8, v28')
        e('s_lshl_b32 s59, s%d, 12' % sC)
        e('s_lshr_b32 s60, s%d, 2' % sGP)
        e('s_lshl_b32 s60, s60, 10')
        e('s_add_u32 s59, s59, s60')
        e('s_and_b32 s60, s%d, 3' % sGP)
        e('s_lshl4_add_u32 s59, s60, s59')
        e('s_add_u32 s59, s59, 0x%x' % WS_HP)
        e('v_lshl_add_u32 v29, v26, 6, s59')
        e('s_lshr_b32 s59, s%d, 4' % sID)
        e('s_lshl_b32 s59, s59, 12')
        e('s_and_b32 s60, s%d, 15' % sID)
        e('s_lshl_b32 s60, s60, 6')
        e('s_add_u32 s59, s59, s60')
        e('s_add_u32 s59, s59, 0x%x' % WS_HP)
        e('v_and_b32 v26, 3, v26')
        e('v_lshlrev_b32 v26, 4, v26')
        e('v_lshl_add_u32 v26, v27, 10, v26')
        e('v_add_u32 v26, s59, v26')
        e('s_mul_i32 s59, s%d, 1152' % sID)
        e('s_add_u32 s59, s59, 0x%x' % WS_FP)
        e('v_add_u32 v27, s59, v25')
        e('v_and_b32 v30, 0x70, v25')
        e('v_add_u32 v30, s59, v30')
        e('v_lshlrev_b32 v%d, 16, v%d' % (vFX, vFX))
        e('v_lshlrev_b32 v%d, 16, v%d' % (vFB, vFB))
        e('s_waitcnt lgkmcnt(0)')
        op_publish()
        e('s_barrier')
        self.ts(8)
        for k in range(4):
            e('ds_read_b128 %s, v28 offset:%d' % (vr(40 + 4 * k), L_QPART + 1024 * k))
        e('s_waitcnt lgkmcnt(%d)' % (0 if self.cfg.diag else 2))
        for hh in (0, 2):
            e('v_pk_add_f32 %s, %s, %s' % (vr(40 + hh, 2), vr(40 + hh, 2), vr(44 + hh, 2)))
        e('s_waitcnt lgkmcnt(0)')
        for hh in (0, 2):
            e('v_pk_add_f32 %s, %s, %s' % (vr(48 + hh, 2), vr(48 + hh, 2), vr(52 + hh, 2)))
        for hh in (0, 2):
            e('v_pk_add_f32 %s, %s, %s' % (vr(40 + hh, 2), vr(40 + hh, 2), vr(48 + hh, 2)))
        for d in (X1, X2):
            for c in range(4):
                e('v_add_f32_dpp v%d, v%d, v%d %s' % (40 + c, 40 + c, 40 + c, d))
        self.tag(40, vMASK)
        e('s_mov_b32 s60, 0x11111111')
        e('s_mov_b32 s61, 0x11111111')
        e('s_mov_b64 exec, s[60:61]')
        e('global_store_dwordx4 v29, %s, %s sc1' % (vr(40), sr(sWS)))
        e('s_mov_b64 exec, -1')
        self.ts(9)
        self.spin_begin('L_fh_poll')
        e('global_load_dwordx4 %s, v26, %s sc1' % (vr(48), sr(sWS)))
        e.wait_vm0()
        self.strip(48, 1, 52)
        self.spin_end('L_fh_poll', 52)
        self.ts(10)
        ident = 'quad_perm:[0,1,2,3] row_mask:0x%x bank_mask:0xf'
        e('v_mov_b32_dpp v48, v50 %s' % (ident % 2))
        e('v_mov_b32_dpp v48, v49 %s' % (ident % 4))
        e('v_mov_b32_dpp v48, v51 %s' % (ident % 8))
        for d in (X1, X2, ROR(8), ROR(4)):
            e('v_add_f32_dpp v48, v48, v48 %s' % d)
        e(self.rnd(48, 48))
        e('v_add_f32 v48, v48, v%d' % vFX)
        e(self.rnd(vFX, 48))
        self.spin_begin('L_ff_poll')
        e('global_load_dwordx4 %s, v27, %s sc1' % (vr(48), sr(sWS)))
        e('global_load_dwordx4 %s, v30, %s offset:1024 sc1' % (vr(52), sr(sWS)))
        e.wait_vm0()
        self.strip(48, 2, 56)
        self.spin_end('L_ff_poll', 56)
        self.ts(11)
        e('s_mov_b32 exec_lo, 0xff')
        e('s_mov_b32 exec_hi, 0')
        for hh in (0, 2):
            e('v_pk_add_f32 %s, %s, %s' % (vr(48 + hh, 2), vr(48 + hh, 2), vr(52 + hh, 2)))
        e('s_mov_b64 exec, -1')
        e('v_permlane32_swap_b32 v48, v49')
        e('v_permlane32_swap_b32 v50, v51')
        e('v_add_f32 v48, v48, v49')
        e('v_add_f32 v50, v50, v51')
        e('v_permlane16_swap_b32 v48, v50')
        e('v_add_f32 v48, v48, v50')
        for d in (X1, X2, HM, MI):
            e('v_add_f32_dpp v48, v48, v48 %s' % d)
        e(self.rnd(48, 48))
        e('v_add_f32 v48, v48, v%d' % vFB)
        e(self.rnd(48, 48))
        e('v_add_f32 v48, v48, v%d' % vFX)
        e('v_cvt_pk_bf16_f32 v48, v48, v48')
        if cfg.diag == 3 and cfg.thr:
            e('s_memrealtime s[60:61]')
            e('s_waitcnt lgkmcnt(0)')
            e('s_sub_u32 s60, s60, s%d' % sTS)
            e('s_cmp_gt_u32 s60, %d' % cfg.thr)
            e('s_cselect_b32 s60, 0x7fc0, 0')
            e('v_or_b32 v48, s60, v48')
        e('s_mov_b32 s60, 0x00010001')
        e('s_mov_b32 s61, 0x00010001')
        e('s_mov_b64 exec, s[60:61]')
        e('global_store_short v19, v48, %s' % sr(sOUT))
        e('s_cmp_lg_u32 s%d, 0' % sID)
        e('s_cbranch_scc1 L_c_wo_done')
        e('s_mov_b64 exec, 1')
        e('v_mov_b32 v49, 0')
        e('v_mov_b32 v50, s%d' % sT)
        e('global_store_dword v49, v50, %s sc1' % sr(sWS))
        if cfg.diag == 3:
            e('s_memrealtime s[60:61]')
            e('s_waitcnt lgkmcnt(0)')
            e('s_sub_u32 s60, s60, s%d' % sTS)
            e('v_mov_b32 v50, s60')
            e('global_store_dword v49, v50, %s' % sr(sDBG))
        e.label('L_c_wo_done')
        e('s_mov_b64 exec, -1')
        self.ts(12)
        self.ts_store()
        e('s_endpgm')

        e.restore(snapC)
        e.label('L_c_mlp')
        self.mlp_setup()
        loads = self.mlp_loads()
        for it in loads[:cfg.cw0]:
            for x in it:
                self.emit_item(x)
        op_publish()
        for it in loads[cfg.cw0:]:
            for x in it:
                self.emit_item(x)

        e.label('L_mlp2')
        e.restore(immediate_unknown(e))
        vP = vVt
        self.spin_begin('L_hp_poll')
        for u in range(4):
            e('global_load_dwordx4 %s, v%d, %s offset:%d sc1' % (vr(vP + 4 * u), vHPA, sr(sWS), 1024 * u))
        e.wait_vm0()
        self.strip(vP, 4, vT)
        self.spin_end('L_hp_poll', vT)
        self.ts(8)
        e('v_and_b32 v%d, 0xffff0000, v%d' % (vHX + 1, vHX))
        e('v_lshlrev_b32 v%d, 16, v%d' % (vHX, vHX))
        for hh in (0, 2):
            e('v_pk_add_f32 %s, %s, %s' % (vr(vP + hh, 2), vr(vP + hh, 2), vr(vP + 4 + hh, 2)))
            e('v_pk_add_f32 %s, %s, %s' % (vr(vP + 8 + hh, 2), vr(vP + 8 + hh, 2), vr(vP + 12 + hh, 2)))
        for hh in (0, 2):
            e('v_pk_add_f32 %s, %s, %s' % (vr(vP + hh, 2), vr(vP + hh, 2), vr(vP + 8 + hh, 2)))
        for c in range(4):
            e('v_add_f32_dpp v%d, v%d, v%d %s' % (vP + c, vP + c, vP + c, X2))
        e('v_cndmask_b32 v%d, v%d, v%d, %s' % (vP, vP, vP + 2, sr(sBIT1)))
        e('v_cndmask_b32 v%d, v%d, v%d, %s' % (vP + 1, vP + 1, vP + 3, sr(sBIT1)))
        y0, y1 = vP, vP + 1
        e('v_add_f32_dpp v%d, v%d, v%d %s' % (y0, y0, y0, X1))
        e('v_add_f32_dpp v%d, v%d, v%d %s' % (y1, y1, y1, X1))
        e(self.rnd(y0, y0))
        e(self.rnd(y1, y1))
        e('v_add_f32 v%d, v%d, v%d' % (y0, y0, vHX))
        e('v_add_f32 v%d, v%d, v%d' % (y1, y1, vHX + 1))
        for ln, lst in ((0, L_ST1), (1, L_ST2)):
            e(self.rnd(y0, y0))
            e(self.rnd(y1, y1))
            z, z2 = vP + 2, vP + 3
            e('v_add_f32 v%d, v%d, v%d' % (z, y0, y1))
            e('v_mul_f32 v%d, v%d, v%d' % (z2, y0, y0))
            e('v_fmac_f32 v%d, v%d, v%d' % (z2, y1, y1))
            e('v_cndmask_b32 v%d, v%d, v%d, %s' % (z, z, z2, sr(sBIT0)))
            for d in (X2, ROR(4), ROR(8)):
                e('v_add_f32_dpp v%d, v%d, v%d %s' % (z, z, z, d))
            e('s_mov_b64 exec, %s' % sr(sL2))
            e('ds_write_b32 v%d, v%d offset:%d' % (vSTW, z, lst))
            e('s_mov_b64 exec, -1')
            self.barrier()
            e('ds_read_b128 %s, v%d offset:%d' % (vr(vP + 4), vSTR, lst))
            e('ds_read_b128 %s, v%d offset:%d' % (vr(vP + 8), vSTR, lst + 16))
            e('s_waitcnt lgkmcnt(0)')
            e('v_pk_add_f32 %s, %s, %s' % (vr(vP + 4, 2), vr(vP + 4, 2), vr(vP + 8, 2)))
            e('v_pk_add_f32 %s, %s, %s' % (vr(vP + 6, 2), vr(vP + 6, 2), vr(vP + 10, 2)))
            e('v_pk_add_f32 %s, %s, %s' % (vr(vP + 4, 2), vr(vP + 4, 2), vr(vP + 6, 2)))
            e('v_add_f32 v%d, v%d, v%d' % (z, vP + 4, vP + 5))
            for d in (X2, ROR(4), ROR(8)):
                e('v_add_f32_dpp v%d, v%d, v%d %s' % (z, z, z, d))
            e('v_mov_b32_dpp v%d, v%d quad_perm:[1,1,3,3] %s' % (z2, z, DPP))
            e('v_mov_b32_dpp v%d, v%d quad_perm:[0,0,2,2] %s' % (z, z, DPP))
            m, sd, r, t = vP + 4, vP + 5, vP + 6, vP + 7
            for x in self.ln_scalars('v%d' % z, 'v%d' % z2, vINVM, m, sd, r, t):
                e(x)
            self.weave(self.ln_apply(y0, m, sd, r, vP + 8), self.ln_apply(y1, m, sd, r, vP + 9))
        e('v_cvt_pk_bf16_f32 v%d, v%d, v%d' % (y0, y0, y0))
        e('v_cvt_pk_bf16_f32 v%d, v%d, v%d' % (y1, y1, y1))
        self.ts(9)
        self.gemv8(y0, y1, vW1)
        e('s_mov_b64 exec, %s' % sr(sVALID))
        e('ds_write_b128 v%d, %s offset:%d' % (vDQ, vr(vD), L_QPART))
        e('s_mov_b64 exec, -1')
        self.barrier()
        self.ts(10)
        e('s_cmp_lg_u32 s%d, 8' % sW)
        e('s_cbranch_scc1 L_mlp3')
        snapG = e.snap()
        e('v_lshlrev_b32 v157, 2, v%d' % vL)
        for i in range(9):
            e('ds_read2st64_b32 %s, v157 offset0:%d offset1:%d' % (vr(vP + 2 * i, 2), 2 * i, 2 * i + 1))
        e('v_lshlrev_b32 v%d, 16, v%d' % (vB1, vB1))
        c1 = -2.0 * LOG2E * 0.7978845608028654
        e('v_mov_b32 v158, %s' % f32(c1 * 0.044715))
        e('s_waitcnt lgkmcnt(0)')
        regs = [vP + 2 * i for i in range(9)]
        while len(regs) > 1:
            nxt = []
            for i in range(0, len(regs) - 1, 2):
                e('v_pk_add_f32 %s, %s, %s' % (vr(regs[i], 2), vr(regs[i], 2), vr(regs[i + 1], 2)))
                nxt.append(regs[i])
            if len(regs) & 1:
                nxt.append(regs[-1])
            regs = nxt
        u = vP
        e('v_add_f32 v%d, v%d, v%d' % (u, vP, vP + 1))
        e(self.rnd(u, u))
        e('v_add_f32 v%d, v%d, v%d' % (u, u, vB1))
        e(self.rnd(u, u))
        e('v_mul_f32 v%d, v%d, v%d' % (u + 1, u, u))
        e('v_fmaak_f32 v%d, v%d, v158, %s' % (u + 1, u + 1, f32(c1)))
        e('v_mul_f32 v%d, v%d, v%d' % (u + 1, u + 1, u))
        e('v_exp_f32 v%d, v%d' % (u + 1, u + 1))
        e('v_add_f32 v%d, 1.0, v%d' % (u + 1, u + 1))
        e('v_rcp_f32 v%d, v%d' % (u + 1, u + 1))
        e('v_mul_f32 v%d, v%d, v%d' % (u, u, u + 1))
        e('v_cvt_pk_bf16_f32 v%d, v%d, v%d' % (u, u, u))
        e('ds_write_b32 v157, v%d offset:%d' % (u, L_H1))
        e('s_waitcnt lgkmcnt(0)')
        e.label('L_mlp3')
        e('s_barrier')
        e('ds_read_b64 %s, v%d offset:%d' % (vr(vP, 2), vH1A, L_H1))
        self.ts(11)
        e('v_mov_b32 v%d, 0xffffff00' % (vP + 8))
        e('s_waitcnt lgkmcnt(0)')
        self.gemv8(vP, vP + 1, vW2)
        for c in range(4):
            e('v_permlane32_swap_b32 v%d, v%d' % (vD + c, vP + 4 + c))
        for c in range(4):
            e('v_add_f32_dpp v%d, v%d, v%d %s' % (vD + c, vP + 4 + c, vD + c, ROR(8)))
        self.tag(vD, vP + 8)
        e('s_mov_b32 exec_lo, 0x00ff00ff')
        e('s_mov_b32 exec_hi, 0')
        e('global_store_dwordx4 v%d, %s, %s sc1' % (vFPA, vr(vD), sr(sWS)))
        e('s_mov_b64 exec, -1')
        self.ts(12)
        self.ts_store()
        e.label('L_end')
        e('s_endpgm')

        e.raw('.section .rodata,"a"')
        e.raw('.p2align 6')
        e.raw('.amdhsa_kernel %s' % K)
        e.raw('  .amdhsa_next_free_vgpr 168')
        e.raw('  .amdhsa_next_free_sgpr 102')
        e.raw('  .amdhsa_accum_offset 168')
        e.raw('  .amdhsa_group_segment_fixed_size 0')
        e.raw('  .amdhsa_kernarg_size 104')
        e.raw('  .amdhsa_user_sgpr_count 2')
        e.raw('  .amdhsa_user_sgpr_kernarg_segment_ptr 1')
        e.raw('  .amdhsa_system_sgpr_workgroup_id_x 1')
        e.raw('.end_amdhsa_kernel')
        return e.text()

    def wo_ids(self):
        e = self.e
        e('s_mul_i32 s%d, s%d, 18' % (sID, sXCD))
        e('s_add_u32 s%d, s%d, s%d' % (sID, sID, sIDX))
        e('s_cmp_ge_u32 s%d, 9' % sIDX)
        e('s_cselect_b32 s59, 1, 0')
        e('s_lshl1_add_u32 s%d, s%d, s59' % (sGP, sXCD))
        e('s_mul_i32 s59, s59, 9')
        e('s_sub_u32 s%d, s%d, s59' % (sC, sIDX))

    def mlp_setup(self):
        e = self.e
        e('s_mul_i32 s%d, s%d, 9' % (sID, sXCD))
        e('s_add_u32 s%d, s%d, s%d' % (sID, sID, sIDX))
        e('s_sub_u32 s%d, s%d, 18' % (sID, sID))
        rho, c16 = vMA, vMA + 1
        e('v_lshrrev_b32 v%d, 3, v%d' % (rho, vL))
        e('v_and_b32 v%d, 0x70, v%d' % (c16, vKV))
        e('v_mov_b32 v%d, %d' % (vW1O, 8 * 9216))
        e('v_mov_b32 v%d, %d' % (vW2O, 8 * 1152))
        e('v_mad_u32_u24 v%d, v%d, v%d, v%d' % (vW1O, rho, vW1O, c16))
        e('v_mad_u32_u24 v%d, v%d, v%d, v%d' % (vW2O, rho, vW2O, c16))
        e('s_mul_i32 s59, s%d, %d' % (sW, 64 * 9216))
        e('s_lshl_b32 s60, s%d, 7' % sID)
        e('s_add_u32 s59, s59, s60')
        self.add64(sA, sW1, 's59')
        e('s_mul_i32 s59, s%d, %d' % (sID, 64 * 1152))
        e('s_lshl_b32 s60, s%d, 7' % sW)
        e('s_add_u32 s59, s59, s60')
        e('s_add_u32 s59, s59, 4032')
        self.add64(sB, sW2, 's59')
        e('v_lshrrev_b32 v%d, 1, v%d' % (vH1A, vL))
        e('v_lshl_add_u32 v%d, v%d, 2, s60' % (vHX + 1, vH1A))
        e('global_load_dword v%d, v%d, %s' % (vHX, vHX + 1, sr(sX)), 'HX')
        e('v_lshlrev_b32 v%d, 3, v%d' % (vH1A, vH1A))
        e('s_lshl_b32 s59, s%d, 12' % sW)
        e('s_add_u32 s59, s59, 0x%x' % WS_HP)
        e('v_lshl_add_u32 v%d, v%d, 4, s59' % (vHPA, vL))
        e('v_and_b32 v%d, 1, v%d' % (vSTW, vL))
        e('v_lshlrev_b32 v%d, 8, v%d' % (vSTW, vSTW))
        e('v_bfe_u32 v%d, v%d, 1, 3' % (vSTR, vL))
        e('v_lshl_add_u32 v%d, v%d, 5, v%d' % (vSTR, vSTR, vSTW))
        e('v_lshrrev_b32 v%d, 4, v%d' % (rho, vL))
        e('v_lshl_add_u32 v%d, v%d, 2, v%d' % (vSTW, rho, vSTW))
        e('s_lshl_b32 s59, s%d, 4' % sW)
        e('v_add_u32 v%d, s59, v%d' % (vSTW, vSTW))
        e('v_and_b32 v%d, 1, v%d' % (rho, rho))
        e('v_lshrrev_b32 v%d, 3, v%d' % (c16, c16))
        e('v_add_u32 v%d, v%d, v%d' % (rho, rho, c16))
        e('s_mul_i32 s59, s%d, %d' % (sW, 16 * 1152))
        e('s_lshl4_add_u32 s59, s%d, s59' % sID)
        e('s_add_u32 s59, s59, 0x%x' % WS_FP)
        e('v_mov_b32 v%d, 1152' % vFPA)
        e('v_mad_u32_u24 v%d, v%d, v%d, s59' % (vFPA, rho, vFPA))
        e('v_mov_b32 v%d, %s' % (vINVM, f32(1.0 / 576)))
        e('s_mov_b32 s%d, 0xaaaaaaaa' % sBIT0)
        e('s_mov_b32 s%d, 0xaaaaaaaa' % (sBIT0 + 1))
        e('s_mov_b32 s%d, 0xcccccccc' % sBIT1)
        e('s_mov_b32 s%d, 0xcccccccc' % (sBIT1 + 1))
        e('s_mov_b32 s%d, 0x00030003' % sL2)
        e('s_mov_b32 s%d, 0x00030003' % (sL2 + 1))

    def mlp_loads(self):
        out = []
        for jj in range(8):
            it = [('load', 'global_load_dwordx4 %s, v%d, %s nt' % (vr(vW1 + 4 * jj), vW1O, sr(sA)), 'A%d' % jj)]
            if jj < 7:
                it.append('s_add_u32 s%d, s%d, 9216' % (sA, sA))
                it.append('s_addc_u32 s%d, s%d, 0' % (sA + 1, sA + 1))
            out.append(it)
        for jj in range(8):
            out.append([('load', 'global_load_dwordx4 %s, v%d, %s offset:%d nt' % (vr(vW2 + 4 * jj), vW2O, sr(sB), 1152 * jj - 4032), 'B%d' % jj)])
        return out


vW1O, vW2O, vHPA, vSTW, vSTR, vFPA, vH1A, vINVM = 144, 145, 146, 147, 148, 149, 150, 151
vHX = 152
vMA = 154
sBIT0, sBIT1, sL2 = 44, 46, 48


def immediate_unknown(e):
    return ([], [])


def main():
    ap = argparse.ArgumentParser()
    ap.add_argument('-o', default='cdna_kernels/%s.s' % NAME)
    ap.add_argument('--diag', type=int, default=0)
    ap.add_argument('--thr', type=int, default=0)
    ap.add_argument('--spin', type=int, default=0x2000)
    ap.add_argument('--nka', type=int, default=3)
    ap.add_argument('--nvb', type=int, default=2)
    ap.add_argument('--vq', type=str, default='1,3,5,7')
    ap.add_argument('--vm', type=int, default=1)
    ap.add_argument('--mw0', type=int, default=4)
    ap.add_argument('--cw0', type=int, default=4)
    ap.add_argument('--rorsign', type=int, default=1)
    cfg = ap.parse_args()
    cfg.vq = [int(x) for x in cfg.vq.split(',') if x != '']
    g = Gen(cfg)
    txt = g.build()
    open(cfg.o, 'w').write(txt)
    print('wrote', cfg.o, 'instructions', g.e.nins)


if __name__ == '__main__':
    main()
```

```python
import sys, struct, argparse
sys.path.insert(0, 'dev')
from emit import Em, Ins, need

NAME = 'sequential_preLN__sliding_block_cached__mixer_channel_mlp__decode'


def f32(x):
    return '0x%08x' % struct.unpack('<I', struct.pack('<f', x))[0]


WS_QP = 0x10000
WS_ML = 0x30000
WS_OP = 0x40000
WS_HP = 0x80000
WS_FP = 0x90000
WS_TS = 0x100000

L_QPART = 0x0000
L_QL = 0x1200
L_LP = 0x1400
L_F = 0x1600
L_ST1 = 0x1700
L_ST2 = 0x1900
L_H1 = 0x1B00
L_OPART = 0x2000
LDS_SIZE = 0x4000

LOG2E = 1.4426950408889634
SCALE = 128 ** -0.5

DPP = 'row_mask:0xf bank_mask:0xf'
X1 = 'quad_perm:[1,0,3,2] ' + DPP
X2 = 'quad_perm:[2,3,0,1] ' + DPP
HM = 'row_half_mirror ' + DPP
MI = 'row_mirror ' + DPP


def ROR(n):
    return 'row_ror:%d %s' % (n, DPP)


def vr(a, n=4):
    return 'v[%d:%d]' % (a, a + n - 1)


def sr(a, n=2):
    return 's[%d:%d]' % (a, a + n - 1)


sX, sK, sV, sWQ, sWO, sW1, sB1, sW2, sB2, sOUT, sDBG, sWS = 4, 6, 8, 10, 12, 16, 18, 20, 22, 24, 26, 28
sW = 3
sT = 30
sT0 = 31
sLOG2E = 35
sONES = 36
sG, sS, sIDX, sXCD, sID = 39, 40, 41, 42, 43
sKB, sVB, sQ0, sQ1 = 44, 46, 48, 50
sA, sB = 52, 54
sVALID = 56
sSPIN = 58
sTMP = 59
sTS = 64
sGP, sC = 96, 97
sL8 = 98

vL = 1
vM = 2
vKV = 6
vDQ = 7
vD = 8
vT = 12
vKt = 16
vVt = 48
vW1 = 80
vW2 = 112
vQO, vQX = 144, 148
vSC = 152
vU = 160


class Gen:
    def __init__(self, cfg):
        self.cfg = cfg
        self.e = Em()
        self.nts = 0

    def ts(self, k):
        if self.cfg.diag == 1 or (self.cfg.diag >= 2 and k == 0):
            self.e('s_memrealtime %s' % sr(sTS + 2 * k))

    def ts_store(self, nslots=16):
        e = self.e
        if self.cfg.diag not in (1, 2):
            return
        e('s_waitcnt lgkmcnt(0)')
        e('s_mul_i32 s59, s2, 9')
        e('s_add_u32 s59, s59, s%d' % sW)
        e('s_lshl_b32 s59, s59, 7')
        e('s_add_u32 s59, s59, 0x%x' % WS_TS)
        e('s_mov_b64 exec, 1')
        if self.cfg.diag == 2:
            e('s_memrealtime s[60:61]')
            e('v_mov_b32 v0, 0')
            e('s_not_b32 s59, s%d' % sTS)
            e('v_mov_b32 v%d, s59' % vU)
            e('s_waitcnt lgkmcnt(0)')
            e('v_mov_b32 v%d, s60' % (vU + 1))
            e('global_atomic_umax v0, v%d, %s' % (vU, sr(sDBG)))
            e('global_atomic_umax v0, v%d, %s offset:4' % (vU + 1, sr(sDBG)))
            e('s_mov_b64 exec, -1')
            return
        e('v_mov_b32 v0, s59')
        for k in range(0, nslots, 4):
            for j in range(4):
                e('v_mov_b32 v%d, s%d' % (vU + j, sTS + 2 * (k + j)))
            e('global_store_dwordx4 v0, %s, %s offset:%d' % (vr(vU), sr(sWS), 4 * k))
            e('s_nop 1')
        e('s_mov_b64 exec, -1')

    def pad_needed(self, text):
        ins = Ins(text)
        dist = 0
        pad = 0
        for p in reversed(self.e.hist):
            n = need(p, ins)
            if n > dist:
                pad = max(pad, n - dist)
            dist += p.ws
            if dist >= 12:
                break
        return pad

    def emit_item(self, it):
        if isinstance(it, str):
            self.e(it)
        elif it[0] == 'wait':
            self.e.wait_vm(it[1])
        elif it[0] == 'load':
            self.e(it[1], it[2])
        elif it[0] == 'issue':
            self.issue_to(it[1])

    def weave(self, *streams):
        streams = [list(s) for s in streams if s]
        while any(streams):
            best = None
            for k, s in enumerate(streams):
                if not s:
                    continue
                it = s[0]
                if isinstance(it, str):
                    p = self.pad_needed(it)
                elif it[0] == 'load':
                    p = self.pad_needed(it[1])
                else:
                    p = 0
                if best is None or p < best[0]:
                    best = (p, k)
                if p == 0:
                    break
            self.emit_item(streams[best[1]].pop(0))

    def issue_to(self, n):
        while self.iss < min(n, len(self.L)):
            it = self.L[self.iss]
            self.e(it[1], it[2])
            for x in it[3:]:
                self.e(x)
            self.iss += 1

    def pace(self, i, win):
        self.e.wait_vm(self.L[i][2])
        self.issue_to(i + 1 + win)

    def barrier(self):
        self.e('s_waitcnt lgkmcnt(0)')
        self.e('s_barrier')

    def add64(self, dst, base, off):
        self.e('s_add_u32 s%d, s%d, %s' % (dst, base, off))
        self.e('s_addc_u32 s%d, s%d, 0' % (dst + 1, base + 1))

    def rnd(self, d, s):
        return 'v_cvt_pk_bf16_f32 v%d, 0, v%d' % (d, s)

    def ln_scalars(self, S, Q, inv, m, sd, r, t):
        return [
            'v_mul_f32 v%d, %s, v%d' % (m, S, inv),
            'v_mul_f32 v%d, %s, v%d' % (t, Q, inv),
            'v_fma_f32 v%d, -v%d, v%d, v%d' % (t, m, m, t),
            self.rnd(m, m),
            self.rnd(t, t),
            'v_add_f32 v%d, %s, v%d' % (t, f32(1e-5), t),
            self.rnd(t, t),
            'v_sqrt_f32 v%d, v%d' % (sd, t),
            self.rnd(sd, sd),
            'v_rcp_f32 v%d, v%d' % (r, sd),
        ]

    def ln_apply(self, x, m, sd, r, t):
        return [
            'v_sub_f32 v%d, v%d, v%d' % (x, x, m),
            self.rnd(x, x),
            'v_mul_f32 v%d, v%d, v%d' % (t, x, r),
            'v_fma_f32 v%d, -v%d, v%d, v%d' % (x, t, sd, x),
            'v_fma_f32 v%d, v%d, v%d, v%d' % (x, x, r, t),
        ]

    def spin_begin(self, name):
        self.e('s_movk_i32 s%d, 0x%x' % (sSPIN, self.cfg.spin))
        self.e.label(name)

    def spin_end(self, name, acc, bytemask=True):
        e = self.e
        if bytemask:
            e('v_and_b32 v%d, 0xff, v%d' % (acc, acc))
        e('v_cmp_ne_u32 vcc, 0, v%d' % acc)
        e('s_sub_u32 s%d, s%d, 1' % (sSPIN, sSPIN))
        e('s_cbranch_scc1 %s_x' % name)
        e('s_cbranch_vccnz %s' % name)
        e.label(name + '_x')

    def strip(self, base, n, acc):
        e = self.e
        regs = []
        for gi in range(n):
            for i in range(4):
                r = base + 4 * gi + i
                e('v_xor_b32 v%d, s%d, v%d' % (r, sT0 + i, r))
                regs.append(r)
        e('v_or3_b32 v%d, v%d, v%d, v%d' % (acc, regs[0], regs[1], regs[2]))
        k = 3
        while k < len(regs):
            if k + 1 < len(regs):
                e('v_or3_b32 v%d, v%d, v%d, v%d' % (acc, acc, regs[k], regs[k + 1]))
                k += 2
            else:
                e('v_or_b32 v%d, v%d, v%d' % (acc, acc, regs[k]))
                k += 1

    def tag(self, base, vmask):
        for i in range(4):
            self.e('v_and_or_b32 v%d, v%d, v%d, s%d' % (base + i, base + i, vmask, sT0 + i))

    def a_ops_plain(self, dst, src):
        return ['v_and_b32 v%d, v%d, v%d' % (dst + p, src, vM + p) for p in range(4)]

    def a_ops_rot(self, dst, src, j):
        out = []
        for p in range(4):
            n = (2 * (p - j) * self.cfg.rorsign) % 16
            if n == 0:
                out.append('v_and_b32 v%d, v%d, v%d' % (dst + p, src, vM + p))
            else:
                out.append('v_and_b32_dpp v%d, v%d, v%d %s' % (dst + p, src, vM + p, ROR(n)))
        return out

    def mfma(self, d, a, b, first):
        return 'v_mfma_f32_16x16x32_bf16 %s, %s, %s, %s' % (vr(d), vr(a), vr(b), '0' if first else vr(d))

    def gemv8(self, ya, yb, wbase):
        e = self.e
        A = lambda jj: self.a_ops_rot(vKt + 4 * jj, yb if (jj & 1) else ya, jj >> 1)
        for x in A(0):
            e(x)
        for jj in range(8):
            if jj + 1 < 8:
                for x in A(jj + 1):
                    e(x)
            e(self.mfma(vD, vKt + 4 * jj, wbase + 4 * jj, jj == 0))

    def kload(self, t):
        return ('load', 'global_load_dwordx4 %s, v%d, %s offset:%d nt' % (vr(vKt + 4 * t), vKV, sr(sKB), 256 * t), 'K%d' % t)

    def vload(self, t):
        return ('load', 'global_load_dwordx4 %s, v%d, %s offset:%d nt' % (vr(vVt + 4 * t), vKV, sr(sVB), 256 * t), 'V%d' % t)

    def build(self):
        e = self.e
        cfg = self.cfg
        K = NAME + '_kernel'
        e.raw('; @launch grid=(256,1,1) block=(576,1,1) lds=%d' % LDS_SIZE)
        e.raw('.amdgcn_target "amdgcn-amd-amdhsa--gfx950"')
        e.raw('.text')
        e.raw('.globl %s' % K)
        e.raw('.p2align 8')
        e.raw('.type %s,@function' % K)
        e.label(K)
        e('s_cmp_ge_u32 s2, 0x100')
        e('s_cbranch_scc1 L_end')
        e('s_load_dwordx16 s[4:19], s[0:1], 0')
        e('s_load_dwordx8 s[20:27], s[0:1], 64')
        e('s_load_dwordx2 s[28:29], s[0:1], 96')
        self.ts(0)
        e('s_getpc_b64 s[60:61]')
        e.label('L_pc')
        e('v_lshlrev_b32 v12, 7, v0')
        e('v_min_u32 v12, L_end-L_pc, v12')
        e('v_mov_b32 v14, s60')
        e('v_mov_b32 v15, s61')
        e('v_add_co_u32 v14, vcc, v14, v12')
        e('v_lshrrev_b32 v13, 6, v0')
        e('v_and_b32 v%d, 63, v0' % vL)
        e('v_addc_co_u32 v15, vcc, 0, v15, vcc')
        e('v_readfirstlane_b32 s%d, v13' % sW)
        e('global_load_dword v%d, v[14:15], off' % (vU + 7), 'PF')
        e('s_and_b32 s%d, s2, 7' % sXCD)
        e('s_lshr_b32 s%d, s2, 3' % sIDX)
        e('s_lshr_b32 s%d, s%d, 4' % (sG, sIDX))
        e('s_lshl1_add_u32 s%d, s%d, s%d' % (sG, sXCD, sG))
        e('s_and_b32 s%d, s%d, 15' % (sS, sIDX))
        e('s_lshr_b32 s59, s%d, 2' % sS)
        e('s_mul_i32 s59, s59, 144')
        e('s_lshl4_add_u32 s59, s%d, s59' % sW)
        e('s_lshl_b32 s60, s59, 13')
        e('s_lshl_b32 s61, s%d, 9' % sG)
        e('s_add_u32 s60, s60, s61')
        e('s_and_b32 s61, s%d, 3' % sS)
        e('s_lshl_b32 s61, s61, 7')
        e('s_add_u32 s60, s60, s61')
        e('s_lshl_b32 s59, s59, 1')
        e('s_lshl_b32 s61, s%d, 24' % sG)
        e('s_lshl_b32 s62, s%d, 16' % sS)
        e('s_add_u32 s61, s61, s62')
        e('s_lshl_b32 s62, s%d, 13' % sW)
        e('s_add_u32 s61, s61, s62')
        e('s_add_u32 s61, s61, 0x%x' % (61440 * 256))
        vRHO, vC16, vXA, vXB, vXC, vQOFF = 12, 13, 14, 15, vU, vU + 1
        e('v_lshrrev_b32 v%d, 3, v%d' % (vRHO, vL))
        e('v_and_b32 v%d, 7, v%d' % (vC16, vL))
        e('v_lshlrev_b32 v%d, 4, v%d' % (vC16, vC16))
        e('v_lshlrev_b32 v%d, 4, v%d' % (vXA, vL))
        e('v_lshlrev_b32 v%d, 1, v%d' % (vXB, vL))
        e('v_lshl_add_u32 v%d, v%d, 2, s59' % (vXC, vRHO))
        e('v_lshl_add_u32 v%d, v%d, 14, v%d' % (vQOFF, vRHO, vC16))
        e('v_lshrrev_b32 v%d, 4, v%d' % (vKV, vL))
        e('v_and_b32 v%d, 0xf0, v%d' % (vU + 2, vXA))
        e('v_lshl_add_u32 v%d, v%d, 11, v%d' % (vKV, vKV, vU + 2))
        e('s_waitcnt lgkmcnt(0)')
        e('s_load_dword s%d, %s, 0' % (sT, sr(sWS)))
        vX = vW2 + 8
        e('global_load_dwordx4 %s, v%d, %s' % (vr(vX), vXA, sr(sX)), 'XA')
        e('global_load_ushort v%d, v%d, %s offset:1024' % (vX + 4, vXB, sr(sX)), 'XB')
        e('global_load_dword v%d, v%d, %s' % (vX + 5, vXC, sr(sX)), 'XC')
        self.add64(sQ0, sWQ, 's60')
        e('global_load_dwordx4 %s, v%d, %s nt' % (vr(vW2), vQOFF, sr(sQ0)), 'Q0')
        self.add64(sQ1, sQ0, '0x2000')
        e('global_load_dwordx4 %s, v%d, %s nt' % (vr(vW2 + 4), vQOFF, sr(sQ1)), 'Q1')
        self.add64(sKB, sK, 's61')
        self.add64(sVB, sV, 's61')
        self.ts(1)
        e('v_and_b32 v%d, 3, v%d' % (vU + 2, vL))
        e('v_lshlrev_b32 v%d, 4, v%d' % (vU + 2, vU + 2))
        e('v_mov_b32 v%d, 0xffff' % (vU + 4))
        e('v_mov_b32 v%d, 0' % (vU + 5))
        e('v_lshlrev_b64 %s, v%d, %s' % (vr(vU + 4, 2), vU + 2, vr(vU + 4, 2)))
        e('v_bfe_i32 v%d, v%d, 2, 1' % (vU + 2, vL))
        e('v_and_b32 v%d, v%d, v%d' % (vM + 2, vU + 4, vU + 2))
        e('v_and_b32 v%d, v%d, v%d' % (vM + 3, vU + 5, vU + 2))
        e('v_xor_b32 v%d, v%d, v%d' % (vM + 0, vU + 4, vM + 2))
        e('v_xor_b32 v%d, v%d, v%d' % (vM + 1, vU + 5, vM + 3))
        e('v_lshrrev_b32 v%d, 5, v%d' % (vDQ, vL))
        e('v_lshlrev_b32 v%d, 8, v%d' % (vDQ, vDQ))
        e('v_lshl_add_u32 v%d, v%d, 1, v%d' % (vDQ, vC16, vDQ))
        e('v_and_b32 v%d, 16, v%d' % (vU + 2, vL))
        e('s_lshl_b32 s59, s%d, 9' % sW)
        e('v_add3_u32 v%d, v%d, v%d, s59' % (vDQ, vDQ, vU + 2))
        e('s_mov_b32 s%d, 0x00ff00ff' % sVALID)
        e('s_mov_b32 s%d, 0xff00ff00' % (sVALID + 1))
        e('s_mov_b32 s%d, 0x01010101' % sL8)
        e('s_mov_b32 s%d, 0x01010101' % (sL8 + 1))
        e('s_mov_b32 s%d, %s' % (sLOG2E, f32(LOG2E)))
        e('s_mov_b32 s%d, 0x3f803f80' % sONES)
        vINV = vU + 6
        e('v_mov_b32 v%d, %s' % (vINV, f32(1.0 / 576)))
        e.wait_vm('XB')
        e('s_cmp_eq_u32 s%d, 8' % sW)
        e('s_cbranch_scc1 L_w8_pre')
        snapA = e.snap()
        self.L = [self.kload(t) for t in range(8)] + [self.vload(t) for t in range(8)]
        self.iss = 0
        self.issue_to(cfg.nka)
        e.label('L_pre_join')
        vS, vQ = vU + 2, vU + 3
        for k in range(5):
            e('v_dot2_f32_bf16 v%d, v%d, s%d, %s' % (vS, vX + k, sONES, '0' if k == 0 else 'v%d' % vS))
            e('v_dot2_f32_bf16 v%d, v%d, v%d, %s' % (vQ, vX + k, vX + k, '0' if k == 0 else 'v%d' % vQ))
        for d in (X1, X2, HM, MI):
            e('v_add_f32_dpp v%d, v%d, v%d %s' % (vS, vS, vS, d))
            e('v_add_f32_dpp v%d, v%d, v%d %s' % (vQ, vQ, vQ, d))
        for d in ('row_bcast:15 row_mask:0xa bank_mask:0xf', 'row_bcast:31 row_mask:0xc bank_mask:0xf'):
            e('v_add_f32_dpp v%d, v%d, v%d %s' % (vS, vS, vS, d))
            e('v_add_f32_dpp v%d, v%d, v%d %s' % (vQ, vQ, vQ, d))
        e('v_readlane_b32 s59, v%d, 63' % vS)
        e('v_readlane_b32 s60, v%d, 63' % vQ)
        e.wait_vm('XC')
        y0, y1 = vX, vX + 1
        e('v_lshlrev_b32 v%d, 16, v%d' % (y0, vX + 5))
        e('v_and_b32 v%d, 0xffff0000, v%d' % (y1, vX + 5))
        m, sd, r, t = vU + 2, vU + 3, vU + 4, vU + 5
        for x in self.ln_scalars('s59', 's60', vINV, m, sd, r, t):
            e(x)
        self.weave(self.ln_apply(y0, m, sd, r, vX + 2), self.ln_apply(y1, m, sd, r, vX + 3))
        e('v_cvt_pk_bf16_f32 v%d, v%d, v%d' % (y0, y0, y0))
        e('v_cvt_pk_bf16_f32 v%d, v%d, v%d' % (y1, y1, y1))
        A0, A1 = vT, vX + 4
        for x in self.a_ops_plain(A0, y0):
            e(x)
        for x in self.a_ops_plain(A1, y1):
            e(x)
        e.wait_vm('Q0')
        e(self.mfma(vD, A0, vW2, True))
        e.wait_vm('Q1')
        e(self.mfma(vD, A1, vW2 + 4, False))
        e('s_waitcnt lgkmcnt(0)')
        e('s_add_u32 s%d, s%d, 0x01010101' % (sT, sT))
        e('s_and_b32 s%d, s%d, 0xff' % (sT0, sT))
        e('s_bfe_u32 s%d, s%d, 0x80008' % (sT0 + 1, sT))
        e('s_bfe_u32 s%d, s%d, 0x80010' % (sT0 + 2, sT))
        e('s_lshr_b32 s%d, s%d, 24' % (sT0 + 3, sT))
        e('s_mov_b64 exec, %s' % sr(sVALID))
        e('ds_write_b128 v%d, %s offset:%d' % (vDQ, vr(vD), L_QPART))
        e('s_mov_b64 exec, -1')
        self.ts(2)
        self.barrier()
        e('s_cmp_eq_u32 s%d, 8' % sW)
        e('s_cbranch_scc1 L_comm')
        snapB1 = e.snap()

        vQA, vLPA = vU, vU + 2
        e('v_and_b32 v%d, 8, v%d' % (vU + 1, vL))
        e('v_lshlrev_b32 v%d, 5, v%d' % (vQA, vU + 1))
        e('v_and_b32 v%d, 0xf0, v%d' % (vU + 3, vKV))
        e('v_lshrrev_b32 v%d, 4, v%d' % (vU + 4, vL))
        e('v_lshl_add_u32 v%d, v%d, 3, v%d' % (vLPA, vU + 4, vQA))
        e('v_add_u32 v%d, v%d, v%d' % (vQA, vQA, vU + 3))
        e('v_xor_b32 v%d, 0x100, v%d' % (vU + 3, vQA))
        e('s_lshl_b32 s59, s%d, 5' % sW)
        e('v_add_u32 v%d, s59, v%d' % (vLPA, vLPA))
        vSCL = vU + 4
        e('v_mov_b32 v%d, %s' % (vSCL, f32(SCALE)))
        vOPA = vU + 1
        e('s_lshl_b32 s59, s%d, 10' % sW)
        e('v_lshl_add_u32 v%d, v%d, 4, s59' % (vOPA, vL))
        for i in range(cfg.nb2):
            self.pace(i, cfg.win)
        self.ts(3)
        e('s_barrier')
        e('ds_read_b128 %s, v%d offset:%d' % (vr(vQO), vQA, L_QL))
        e('ds_read_b128 %s, v%d offset:%d' % (vr(vQX), vU + 3, L_QL))
        if cfg.b2all:
            self.issue_to(16)
        self.ts(4)
        e('s_waitcnt lgkmcnt(0)')
        prevR = []
        pq = cfg.nb2
        for t in range(8):
            a, b = vSC + t, (vT + (t & 1))
            D = [('wait', 'K%d' % t)]
            if t >= pq:
                D.append(('issue', t + 1 + cfg.win))
                pq = t + 1
            for k in range(4):
                D.append('v_dot2_f32_bf16 v%d, v%d, v%d, %s' % (a, vKt + 4 * t + k, vQO + k, '0' if k == 0 else 'v%d' % a))
                D.append('v_dot2_f32_bf16 v%d, v%d, v%d, %s' % (b, vKt + 4 * t + k, vQX + k, '0' if k == 0 else 'v%d' % b))
            if t in cfg.vq and pq >= 8:
                D.append(('wait', self.L[pq][2]))
                D.append(('issue', pq + 1 + cfg.win))
                pq += 1
            self.weave(prevR, D)
            prevR = [
                'v_add_f32_dpp v%d, v%d, v%d %s' % (a, b, a, ROR(8)),
                'v_add_f32_dpp v%d, v%d, v%d %s' % (a, a, a, X1),
                'v_add_f32_dpp v%d, v%d, v%d %s' % (a, a, a, X2),
                'v_add_f32_dpp v%d, v%d, v%d %s' % (a, a, a, HM),
                self.rnd(a, a),
                'v_mul_f32 v%d, v%d, v%d' % (a, a, vSCL),
                self.rnd(a, a),
            ]
        mx = vT + 2
        pre = ['v_max3_f32 v%d, v%d, v%d, v%d' % (mx, vSC, vSC + 1, vSC + 2),
               'v_max3_f32 v%d, v%d, v%d, v%d' % (mx, mx, vSC + 3, vSC + 4),
               'v_max3_f32 v%d, v%d, v%d, v%d' % (mx, mx, vSC + 5, vSC + 6)]
        self.weave(prevR, pre)
        e('v_max_f32 v%d, v%d, v%d' % (mx, mx, vSC + 7))
        e('v_mov_b32 v%d, v%d' % (vT, mx))
        e('v_permlane32_swap_b32 v%d, v%d' % (vT, mx))
        e('v_max_f32 v%d, v%d, v%d' % (mx, mx, vT))
        e('v_mov_b32 v%d, v%d' % (vT, mx))
        e('v_permlane16_swap_b32 v%d, v%d' % (vT, mx))
        e('v_max_f32 v%d, v%d, v%d' % (mx, mx, vT))
        self.ts(5)
        e('v_mul_f32 v%d, s%d, v%d' % (vT, sLOG2E, mx))
        for t in range(8):
            e('v_fma_f32 v%d, v%d, s%d, -v%d' % (vSC + t, vSC + t, sLOG2E, vT))
        for t in range(8):
            e('v_exp_f32 v%d, v%d' % (vSC + t, vSC + t))
        ls = vT + 3
        e('v_add_f32 v%d, v%d, v%d' % (vT, vSC, vSC + 1))
        e('v_add_f32 v%d, v%d, v%d' % (vT + 1, vSC + 2, vSC + 3))
        e('v_add_f32 v%d, v%d, v%d' % (ls, vSC + 4, vSC + 5))
        e('v_add_f32 v%d, v%d, v%d' % (vT, vT, vSC + 6))
        e('v_add_f32 v%d, v%d, v%d' % (vT + 1, vT + 1, vSC + 7))
        e('v_add_f32 v%d, v%d, v%d' % (ls, ls, vT))
        e('v_add_f32 v%d, v%d, v%d' % (ls, ls, vT + 1))
        e('s_mov_b64 exec, %s' % sr(sL8))
        e('ds_write_b64 v%d, %s offset:%d' % (vLPA, vr(mx, 2), L_LP))
        e('s_mov_b64 exec, -1')
        for _ in range(cfg.vm):
            self.pace(pq, cfg.win)
            pq += 1
        for t in range(8):
            e('v_cvt_pk_bf16_f32 v%d, v%d, v%d' % (vSC + t, vSC + t, vSC + t))
        for t in range(8):
            for x in self.a_ops_plain(vKt + 4 * t, vSC + t):
                e(x)
        self.issue_to(16)
        self.ts(6)
        e('s_cmp_lt_u32 s%d, 18' % sIDX)
        e('s_cbranch_scc1 L_wo')
        e('s_cmp_lt_u32 s%d, 27' % sIDX)
        e('s_cbranch_scc1 L_mlp')
        snapR = e.snap()
        L0 = list(self.L)

        def pv(win):
            for t in range(8):
                e.wait_vm('V%d' % t)
                e(self.mfma(vD, vKt + 4 * t, vVt + 4 * t, t == 0))
                self.issue_to(8 + t + 1 + win)
            e('ds_write_b128 v%d, %s offset:%d' % (vOPA, vr(vD), L_OPART))
            self.ts(7)
            self.barrier()

        pv(0)
        self.ts_store()
        e('s_endpgm')

        e.restore(snapR)
        e.label('L_wo')
        self.wo_ids()
        vWO, vP0, vP1, vMLA = vSC, vSC + 1, vSC + 2, vSC + 3
        e('v_lshrrev_b32 v%d, 3, v%d' % (vU + 2, vL))
        e('v_and_b32 v%d, 0x70, v%d' % (vWO, vKV))
        e('v_mov_b32 v%d, 4608' % (vU + 3))
        e('v_mad_u32_u24 v%d, v%d, v%d, v%d' % (vWO, vU + 2, vU + 3, vWO))
        e('s_lshl_b32 s59, s%d, 3' % sGP)
        e('s_add_u32 s59, s59, s%d' % sW)
        e('s_mul_i32 s59, s59, %d' % (32 * 1152))
        e('s_lshl_b32 s60, s%d, 7' % sC)
        e('s_add_u32 s59, s59, s60')
        self.add64(sA, sWO, 's59')
        self.L = L0 + [('load', 'global_load_dwordx4 %s, v%d, %s offset:%d nt' % (vr(vW1 + 4 * j), vWO, sr(sA), 1152 * j), 'W%d' % j)
                       for j in range(4)]
        self.iss = 16
        e('v_and_b32 v%d, 0xf0, v%d' % (vU + 3, vKV))
        e('v_lshl_add_u32 v%d, v%d, 8, v%d' % (vU + 2, vU + 2, vU + 3))
        e('s_lshl_b32 s59, s%d, 14' % sGP)
        e('s_lshl_b32 s60, s%d, 11' % sW)
        e('s_add_u32 s59, s59, s60')
        e('s_add_u32 s59, s59, 0x%x' % WS_OP)
        e('v_add_u32 v%d, s59, v%d' % (vP0, vU + 2))
        e('v_xor_b32 v%d, 0x80, v%d' % (vP1, vP0))
        e('s_lshl_b32 s59, s%d, 8' % sGP)
        e('s_add_u32 s59, s59, 0x%x' % WS_ML)
        e('v_add_u32 v%d, s59, v%d' % (vMLA, vU + 3))
        pv(cfg.winw)
        e('s_barrier')
        self.issue_to(20)
        if cfg.diag == 1:
            e.wait_vm0()
            self.ts(13)
        f0, f1 = vU + 4, vU + 5
        G = vVt + 8
        self.spin_begin('L_ml_poll')
        e('global_load_dwordx4 %s, v%d, %s sc1' % (vr(G), vMLA, sr(sWS)))
        e.wait_vm0()
        self.strip(G, 1, vT)
        self.spin_end('L_ml_poll', vT)
        self.ts(14)
        e('global_load_dwordx4 %s, v%d, %s sc1' % (vr(vVt), vP0, sr(sWS)))
        e('global_load_dwordx4 %s, v%d, %s sc1' % (vr(vVt + 4), vP1, sr(sWS)))
        e('s_cmp_lt_u32 s%d, 4' % sW)
        e('s_cbranch_scc1 L_wo_h0')
        e('v_mov_b32 v%d, v%d' % (G, G + 2))
        e('v_mov_b32 v%d, v%d' % (G + 1, G + 3))
        e.label('L_wo_h0')
        e('v_mov_b32 v%d, v%d' % (G + 2, G))
        for d in (X1, X2, HM, MI):
            e('v_max_f32_dpp v%d, v%d, v%d %s' % (G + 2, G + 2, G + 2, d))
        e('v_sub_f32 v%d, v%d, v%d' % (G, G, G + 2))
        e('v_mul_f32 v%d, s%d, v%d' % (G, sLOG2E, G))
        e('v_exp_f32 v%d, v%d' % (G, G))
        e('v_mul_f32 v%d, v%d, v%d' % (G + 1, G + 1, G))
        for d in (X1, X2, HM, MI):
            e('v_add_f32_dpp v%d, v%d, v%d %s' % (G + 1, G + 1, G + 1, d))
        e('v_rcp_f32 v%d, v%d' % (G + 1, G + 1))
        e('v_mul_f32 v%d, v%d, v%d' % (f0, G, G + 1))
        e('v_mov_b32_dpp v%d, v%d %s' % (f1, f0, ROR(8)))
        e('s_movk_i32 s%d, 0x%x' % (sSPIN, cfg.spin))
        e('s_branch L_wo_poll_w')
        e.label('L_wo_poll')
        e('global_load_dwordx4 %s, v%d, %s sc1' % (vr(vVt), vP0, sr(sWS)))
        e('global_load_dwordx4 %s, v%d, %s sc1' % (vr(vVt + 4), vP1, sr(sWS)))
        e.label('L_wo_poll_w')
        e.wait_vm0()
        self.strip(vVt, 2, vT)
        self.spin_end('L_wo_poll', vT)
        self.ts(8)
        for c in range(4):
            e('v_mul_f32 v%d, v%d, v%d' % (vVt + c, vVt + c, f0))
        for c in range(4):
            e('v_fmac_f32 v%d, v%d, v%d' % (vVt + c, vVt + 4 + c, f1))
        for d in (X1, X2, HM):
            for c in range(4):
                e('v_add_f32_dpp v%d, v%d, v%d %s' % (vVt + c, vVt + c, vVt + c, d))
        for c in range(4):
            e('v_cvt_pk_bf16_f32 v%d, v%d, v%d' % (vVt + c, vVt + c, vVt + c))
        for x in self.a_ops_plain(vKt, vVt):
            e(x)
        for j in range(4):
            if j + 1 < 4:
                for x in self.a_ops_plain(vKt + 4 * (j + 1), vVt + j + 1):
                    e(x)
            e(self.mfma(vD, vKt + 4 * j, vW1 + 4 * j, j == 0))
        e('s_mov_b64 exec, %s' % sr(sVALID))
        e('ds_write_b128 v%d, %s offset:%d' % (vDQ, vr(vD), L_QPART))
        e('s_mov_b64 exec, -1')
        self.ts(9)
        self.barrier()
        self.ts_store()
        e('s_endpgm')

        e.restore(snapR)
        e.label('L_mlp')
        self.mlp_setup()
        self.L = L0 + self.mlp_loads()[:cfg.mpre]
        self.iss = 16
        pv(cfg.mpre)
        e('s_branch L_mlp_w')

        e.restore(snapA)
        e.label('L_w8_pre')
        vFX, vFB, vB1 = 16, 17, 156
        e('s_mul_i32 s59, s%d, 18' % sXCD)
        e('s_add_u32 s59, s59, s%d' % sIDX)
        e('s_min_u32 s59, s59, 143')
        e('s_lshl_b32 s59, s59, 3')
        e('v_lshrrev_b32 v19, 5, v%d' % vL)
        e('v_bfe_u32 v20, v%d, 4, 1' % vL)
        e('v_lshl_add_u32 v19, v20, 1, v19')
        e('v_lshl_add_u32 v19, v19, 1, s59')
        e('global_load_ushort v%d, v19, %s' % (vFX, sr(sX)), 'K0')
        e('global_load_ushort v%d, v19, %s' % (vFB, sr(sB2)), 'K1')
        e('s_mul_i32 s59, s%d, 9' % sXCD)
        e('s_add_u32 s59, s59, s%d' % sIDX)
        e('s_sub_u32 s59, s59, 18')
        e('s_min_u32 s59, s59, 71')
        e('s_lshl_b32 s59, s59, 7')
        e('v_add_u32 v20, s59, v%d' % vXB)
        e('global_load_ushort v%d, v20, %s' % (vB1, sr(sB1)), 'K2')
        for t in range(3, cfg.nka):
            e('global_load_ushort v21, v20, %s' % sr(sB1), 'K%d' % t)
        e('v_mov_b32 v20, 0')
        e('v_mov_b32 v21, -1.0')
        e('v_lshlrev_b32 v22, 2, v%d' % vL)
        e('v_lshlrev_b32 v23, 3, v%d' % vL)
        e('ds_write2st64_b32 v22, v20, v20 offset0:%d offset1:%d' % (L_ST1 // 256, L_ST1 // 256 + 1))
        e('ds_write2st64_b32 v22, v20, v20 offset0:%d offset1:%d' % (L_ST2 // 256, L_ST2 // 256 + 1))
        e('ds_write_b64 v23, v[20:21] offset:%d' % L_LP)
        e('s_branch L_pre_join')

        e.restore(snapB1)
        e.label('L_comm')
        vA = 24
        vMASK = 23
        e('v_lshlrev_b32 v%d, 3, v%d' % (vA, vL))
        for i in range(4):
            e('ds_read2_b64 %s, v%d offset0:%d offset1:%d' % (vr(32 + 4 * i), vA, 64 * i, 64 * i + 32))
        e('v_add_u32 v25, 0x800, v%d' % vA)
        for i in range(4):
            e('ds_read2_b64 %s, v25 offset0:%d offset1:%d' % (vr(48 + 4 * i), 64 * i, 64 * i + 32))
        e('v_add_u32 v25, 0x1000, v%d' % vA)
        e('ds_read2_b64 %s, v25 offset0:0 offset1:32' % vr(64))
        e('v_mov_b32 v%d, 0xffffff00' % vMASK)
        e('s_lshl_b32 s59, s%d, 13' % sG)
        e('s_lshl_b32 s60, s%d, 9' % sS)
        e('s_add_u32 s60, s60, s59')
        e('s_add_u32 s60, s60, 0x%x' % WS_QP)
        e('s_add_u32 s59, s59, 0x%x' % WS_QP)
        e('v_lshl_add_u32 v26, v%d, 4, s60' % vL)
        e('v_lshl_add_u32 v27, v%d, 4, s59' % vL)
        e('v_add_u32 v28, 0x1000, v27')
        e('s_waitcnt lgkmcnt(0)')
        n = 18
        regs = [32 + 2 * i for i in range(n)]
        while len(regs) > 1:
            nxt = []
            for i in range(0, len(regs) - 1, 2):
                e('v_pk_add_f32 %s, %s, %s' % (vr(regs[i], 2), vr(regs[i], 2), vr(regs[i + 1], 2)))
                nxt.append(regs[i])
            if len(regs) & 1:
                nxt.append(regs[-1])
            regs = nxt
        e('v_mov_b32 v34, s%d' % sT)
        e('v_mov_b32 v35, s%d' % sT)
        e('s_mov_b32 exec_hi, 0')
        e('global_store_dwordx4 v26, %s, %s sc1' % (vr(32), sr(sWS)))
        e('s_mov_b64 exec, -1')
        self.ts(3)
        self.spin_begin('L_q_poll')
        for r_ in range(4):
            for h in range(2):
                off = (r_ & 1) * 2048 + h * 1024
                e('global_load_dwordx4 %s, v%d, %s offset:%d sc1' % (vr(48 + 8 * r_ + 4 * h), 27 + (r_ >> 1), sr(sWS), off))
        e.wait_vm0()
        e('v_xor_b32 v25, s%d, v50' % sT)
        for k in range(1, 8):
            e('v_bitop3_b32 v25, v25, v%d, s%d bitop3:0xf6' % (50 + 4 * k, sT))
        self.spin_end('L_q_poll', 25, bytemask=False)
        for h in range(2):
            b = 48 + 4 * h
            e('v_pk_add_f32 %s, %s, %s' % (vr(b, 2), vr(b, 2), vr(b + 8, 2)))
            e('v_pk_add_f32 %s, %s, %s' % (vr(b + 16, 2), vr(b + 16, 2), vr(b + 24, 2)))
        for h in range(2):
            b = 48 + 4 * h
            e('v_pk_add_f32 %s, %s, %s' % (vr(b, 2), vr(b, 2), vr(b + 16, 2)))
        e('v_cvt_pk_bf16_f32 v48, v48, v49')
        e('v_cvt_pk_bf16_f32 v52, v52, v53')
        e('v_lshlrev_b32 v22, 2, v%d' % vL)
        e('ds_write2st64_b32 v22, v48, v52 offset0:%d offset1:%d' % (L_QL // 256, L_QL // 256 + 1))
        self.ts(4)
        self.barrier()
        e('v_lshrrev_b32 v24, 5, v%d' % vL)
        e('v_lshlrev_b32 v24, 13, v24')
        e('v_and_b32 v25, 15, v%d' % vL)
        e('v_lshl_add_u32 v24, v25, 9, v24')
        e('v_bfe_u32 v25, v%d, 4, 1' % vL)
        e('v_lshl_add_u32 v24, v25, 8, v24')
        e('s_lshl_b32 s59, s%d, 14' % sG)
        e('s_lshl4_add_u32 s59, s%d, s59' % sS)
        e('s_add_u32 s59, s59, 0x%x' % WS_OP)
        e('v_add_u32 v24, s59, v24')
        e('v_lshlrev_b32 v25, 4, v%d' % vL)
        e('s_lshl_b32 s59, s%d, 8' % sG)
        e('s_lshl4_add_u32 s59, s%d, s59' % sS)
        e('s_add_u32 s59, s59, 0x%x' % WS_ML)
        e('v_mov_b32 v26, s59')
        e('v_lshlrev_b32 v27, 3, v%d' % vL)
        e('v_lshrrev_b32 v28, 5, v%d' % vL)
        e('v_lshlrev_b32 v28, 5, v28')
        e('v_and_b32 v29, 0x3c, v%d' % vL)
        self.spin_begin('L_lp_poll')
        e('ds_read_b64 v[32:33], v27 offset:%d' % L_LP)
        e('s_waitcnt lgkmcnt(0)')
        e('v_cmp_gt_f32 vcc, 0, v33')
        e('s_sub_u32 s%d, s%d, 1' % (sSPIN, sSPIN))
        e('s_cbranch_scc1 L_lp_poll_x')
        e('s_cbranch_vccnz L_lp_poll')
        e.label('L_lp_poll_x')
        e('v_max_f32_dpp v36, v32, v32 %s' % ROR(4))
        e('v_max_f32_dpp v36, v36, v36 %s' % ROR(8))
        e('v_mov_b32 v37, v36')
        e('v_permlane16_swap_b32 v37, v36')
        e('v_max_f32 v36, v36, v37')
        e('v_sub_f32 v37, v32, v36')
        e('v_mul_f32 v37, s%d, v37' % sLOG2E)
        e('v_exp_f32 v37, v37')
        e('v_mov_b32 v32, v36')
        e('v_mul_f32 v33, v33, v37')
        e('ds_write_b32 v29, v37 offset:%d' % L_F)
        for d in (X1, X2, ROR(4), ROR(8)):
            e('v_add_f32_dpp v33, v33, v33 %s' % d)
        e('v_mov_b32 v38, v33')
        e('v_permlane16_swap_b32 v38, v33')
        e('v_add_f32 v33, v33, v38')
        e('v_permlane32_swap_b32 v32, v34')
        e('v_permlane32_swap_b32 v33, v35')
        self.tag(32, vMASK)
        e('s_mov_b64 exec, 1')
        e('global_store_dwordx4 v26, %s, %s sc1' % (vr(32), sr(sWS)))
        e('s_mov_b64 exec, -1')
        e('ds_read_b128 %s, v28 offset:%d' % (vr(64), L_F))
        e('ds_read_b128 %s, v28 offset:%d' % (vr(68), L_F + 16))
        self.ts(5)
        e('s_cmp_lt_u32 s%d, 18' % sIDX)
        e('s_cbranch_scc1 L_c_wo')
        e('s_cmp_lt_u32 s%d, 27' % sIDX)
        e('s_cbranch_scc1 L_c_mlp')
        snapC = e.snap()

        def op_publish():
            e('s_barrier')
            self.ts(6)
            for w in range(8):
                e('ds_read_b128 %s, v25 offset:%d' % (vr(32 + 4 * w), L_OPART + 1024 * w))
            for w in range(8):
                e('s_waitcnt lgkmcnt(%d)' % (0 if self.cfg.diag == 1 else 7 - w))
                sel = 'op_sel:[0,1,0] op_sel_hi:[1,1,1]' if w & 1 else 'op_sel:[0,0,0] op_sel_hi:[1,0,1]'
                acc = 32 + 4 * (w & 1)
                for hh in (0, 2):
                    if w < 2:
                        e('v_pk_mul_f32 %s, %s, %s %s' % (vr(acc + hh, 2), vr(32 + 4 * w + hh, 2), vr(64 + (w & ~1), 2),
                                                         'op_sel:[0,1] op_sel_hi:[1,1]' if w & 1 else 'op_sel:[0,0] op_sel_hi:[1,0]'))
                    else:
                        e('v_pk_fma_f32 %s, %s, %s, %s %s' % (vr(acc + hh, 2), vr(32 + 4 * w + hh, 2), vr(64 + (w & ~1), 2),
                                                             vr(acc + hh, 2), sel))
            for hh in (0, 2):
                e('v_pk_add_f32 %s, %s, %s' % (vr(32 + hh, 2), vr(32 + hh, 2), vr(36 + hh, 2)))
            self.tag(32, vMASK)
            e('global_store_dwordx4 v24, %s, %s sc1' % (vr(32), sr(sWS)))
            self.ts(7)

        op_publish()
        self.ts_store()
        e('s_endpgm')

        e.restore(snapC)
        e.label('L_c_wo')
        self.wo_ids()
        e('v_lshrrev_b32 v26, 2, v%d' % vL)
        e('v_and_b32 v27, 3, v%d' % vL)
        e('v_lshlrev_b32 v28, 4, v26')
        e('v_lshl_add_u32 v28, v27, 8, v28')
        e('s_lshl_b32 s59, s%d, 12' % sC)
        e('s_lshr_b32 s60, s%d, 2' % sGP)
        e('s_lshl_b32 s60, s60, 10')
        e('s_add_u32 s59, s59, s60')
        e('s_and_b32 s60, s%d, 3' % sGP)
        e('s_lshl4_add_u32 s59, s60, s59')
        e('s_add_u32 s59, s59, 0x%x' % WS_HP)
        e('v_lshl_add_u32 v29, v26, 6, s59')
        e('s_lshr_b32 s59, s%d, 4' % sID)
        e('s_lshl_b32 s59, s59, 12')
        e('s_and_b32 s60, s%d, 15' % sID)
        e('s_lshl_b32 s60, s60, 6')
        e('s_add_u32 s59, s59, s60')
        e('s_add_u32 s59, s59, 0x%x' % WS_HP)
        e('v_and_b32 v26, 3, v26')
        e('v_lshlrev_b32 v26, 4, v26')
        e('v_lshl_add_u32 v26, v27, 10, v26')
        e('v_add_u32 v26, s59, v26')
        e('s_mul_i32 s59, s%d, 1152' % sID)
        e('s_add_u32 s59, s59, 0x%x' % WS_FP)
        e('v_add_u32 v27, s59, v25')
        e('v_and_b32 v30, 0x70, v25')
        e('v_add_u32 v30, s59, v30')
        e('v_lshlrev_b32 v%d, 16, v%d' % (vFX, vFX))
        e('v_lshlrev_b32 v%d, 16, v%d' % (vFB, vFB))
        op_publish()
        e('s_barrier')
        e('s_barrier')
        self.ts(8)
        for k in range(4):
            e('ds_read_b128 %s, v28 offset:%d' % (vr(40 + 4 * k), L_QPART + 1024 * k))
        e('s_waitcnt lgkmcnt(%d)' % (0 if self.cfg.diag else 2))
        for hh in (0, 2):
            e('v_pk_add_f32 %s, %s, %s' % (vr(40 + hh, 2), vr(40 + hh, 2), vr(44 + hh, 2)))
        e('s_waitcnt lgkmcnt(0)')
        for hh in (0, 2):
            e('v_pk_add_f32 %s, %s, %s' % (vr(48 + hh, 2), vr(48 + hh, 2), vr(52 + hh, 2)))
        for hh in (0, 2):
            e('v_pk_add_f32 %s, %s, %s' % (vr(40 + hh, 2), vr(40 + hh, 2), vr(48 + hh, 2)))
        for d in (X1, X2):
            for c in range(4):
                e('v_add_f32_dpp v%d, v%d, v%d %s' % (40 + c, 40 + c, 40 + c, d))
        self.tag(40, vMASK)
        e('s_mov_b32 s60, 0x11111111')
        e('s_mov_b32 s61, 0x11111111')
        e('s_mov_b64 exec, s[60:61]')
        e('global_store_dwordx4 v29, %s, %s sc1' % (vr(40), sr(sWS)))
        e('s_mov_b64 exec, -1')
        self.ts(9)
        self.spin_begin('L_fh_poll')
        e('global_load_dwordx4 %s, v26, %s sc1' % (vr(48), sr(sWS)))
        e.wait_vm0()
        self.strip(48, 1, 52)
        self.spin_end('L_fh_poll', 52)
        self.ts(10)
        ident = 'quad_perm:[0,1,2,3] row_mask:0x%x bank_mask:0xf'
        e('v_mov_b32_dpp v48, v50 %s' % (ident % 2))
        e('v_mov_b32_dpp v48, v49 %s' % (ident % 4))
        e('v_mov_b32_dpp v48, v51 %s' % (ident % 8))
        for d in (X1, X2, ROR(8), ROR(4)):
            e('v_add_f32_dpp v48, v48, v48 %s' % d)
        e(self.rnd(48, 48))
        e('v_add_f32 v48, v48, v%d' % vFX)
        e(self.rnd(vFX, 48))
        self.spin_begin('L_ff_poll')
        e('global_load_dwordx4 %s, v27, %s sc1' % (vr(48), sr(sWS)))
        e('global_load_dwordx4 %s, v30, %s offset:1024 sc1' % (vr(52), sr(sWS)))
        e.wait_vm0()
        self.strip(48, 2, 56)
        self.spin_end('L_ff_poll', 56)
        self.ts(11)
        e('s_mov_b32 exec_lo, 0xff')
        e('s_mov_b32 exec_hi, 0')
        for hh in (0, 2):
            e('v_pk_add_f32 %s, %s, %s' % (vr(48 + hh, 2), vr(48 + hh, 2), vr(52 + hh, 2)))
        e('s_mov_b64 exec, -1')
        e('v_permlane32_swap_b32 v48, v49')
        e('v_permlane32_swap_b32 v50, v51')
        e('v_add_f32 v48, v48, v49')
        e('v_add_f32 v50, v50, v51')
        e('v_permlane16_swap_b32 v48, v50')
        e('v_add_f32 v48, v48, v50')
        for d in (X1, X2, HM, MI):
            e('v_add_f32_dpp v48, v48, v48 %s' % d)
        e(self.rnd(48, 48))
        e('v_add_f32 v48, v48, v%d' % vFB)
        e(self.rnd(48, 48))
        e('v_add_f32 v48, v48, v%d' % vFX)
        e('v_cvt_pk_bf16_f32 v48, v48, v48')
        if cfg.diag == 3 and cfg.thr:
            e('s_memrealtime s[60:61]')
            e('s_waitcnt lgkmcnt(0)')
            e('s_sub_u32 s60, s60, s%d' % sTS)
            e('s_cmp_gt_u32 s60, %d' % cfg.thr)
            e('s_cselect_b32 s60, 0x7fc0, 0')
            e('v_or_b32 v48, s60, v48')
        e('s_mov_b32 s60, 0x00010001')
        e('s_mov_b32 s61, 0x00010001')
        e('s_mov_b64 exec, s[60:61]')
        e('global_store_short v19, v48, %s' % sr(sOUT))
        e('s_cmp_lg_u32 s%d, 0' % sID)
        e('s_cbranch_scc1 L_c_wo_done')
        e('s_mov_b64 exec, 1')
        e('v_mov_b32 v49, 0')
        e('v_mov_b32 v50, s%d' % sT)
        e('global_store_dword v49, v50, %s sc1' % sr(sWS))
        if cfg.diag == 3:
            e('s_memrealtime s[60:61]')
            e('s_waitcnt lgkmcnt(0)')
            e('s_sub_u32 s60, s60, s%d' % sTS)
            e('v_mov_b32 v50, s60')
            e('global_store_dword v49, v50, %s' % sr(sDBG))
        e.label('L_c_wo_done')
        e('s_mov_b64 exec, -1')
        self.ts(12)
        self.ts_store()
        e('s_endpgm')

        e.restore(snapC)
        e.label('L_c_mlp')
        self.mlp_setup()
        self.L = self.mlp_loads()
        self.iss = 0
        self.issue_to(cfg.mpre)
        op_publish()

        e.label('L_mlp_w')
        e.restore(([], [it[2] for it in self.L[:cfg.mpre]]))
        e('s_barrier')
        self.issue_to(cfg.winm2)
        for i in range(16):
            if self.iss >= 16:
                break
            self.pace(i, cfg.winm2)
            if i == 7:
                self.ts(15)
        self.ts(13)
        if cfg.diag == 1:
            e.wait_vm0()
            self.ts(14)
        vP = vVt
        self.spin_begin('L_hp_poll')
        for u in range(4):
            e('global_load_dwordx4 %s, v%d, %s offset:%d sc1' % (vr(vP + 4 * u), vHPA, sr(sWS), 1024 * u))
        e.wait_vm0()
        self.strip(vP, 4, vT)
        self.spin_end('L_hp_poll', vT)
        self.ts(8)
        e('v_and_b32 v%d, 0xffff0000, v%d' % (vHX + 1, vHX))
        e('v_lshlrev_b32 v%d, 16, v%d' % (vHX, vHX))
        for hh in (0, 2):
            e('v_pk_add_f32 %s, %s, %s' % (vr(vP + hh, 2), vr(vP + hh, 2), vr(vP + 4 + hh, 2)))
            e('v_pk_add_f32 %s, %s, %s' % (vr(vP + 8 + hh, 2), vr(vP + 8 + hh, 2), vr(vP + 12 + hh, 2)))
        for hh in (0, 2):
            e('v_pk_add_f32 %s, %s, %s' % (vr(vP + hh, 2), vr(vP + hh, 2), vr(vP + 8 + hh, 2)))
        for c in range(4):
            e('v_add_f32_dpp v%d, v%d, v%d %s' % (vP + c, vP + c, vP + c, X2))
        e('v_cndmask_b32 v%d, v%d, v%d, %s' % (vP, vP, vP + 2, sr(sBIT1)))
        e('v_cndmask_b32 v%d, v%d, v%d, %s' % (vP + 1, vP + 1, vP + 3, sr(sBIT1)))
        y0, y1 = vP, vP + 1
        e('v_add_f32_dpp v%d, v%d, v%d %s' % (y0, y0, y0, X1))
        e('v_add_f32_dpp v%d, v%d, v%d %s' % (y1, y1, y1, X1))
        e(self.rnd(y0, y0))
        e(self.rnd(y1, y1))
        e('v_add_f32 v%d, v%d, v%d' % (y0, y0, vHX))
        e('v_add_f32 v%d, v%d, v%d' % (y1, y1, vHX + 1))
        for ln, lst in ((0, L_ST1), (1, L_ST2)):
            e(self.rnd(y0, y0))
            e(self.rnd(y1, y1))
            z, z2 = vP + 2, vP + 3
            e('v_add_f32 v%d, v%d, v%d' % (z, y0, y1))
            e('v_mul_f32 v%d, v%d, v%d' % (z2, y0, y0))
            e('v_fmac_f32 v%d, v%d, v%d' % (z2, y1, y1))
            e('v_cndmask_b32 v%d, v%d, v%d, %s' % (z, z, z2, sr(sBIT0)))
            for d in (X2, ROR(4), ROR(8)):
                e('v_add_f32_dpp v%d, v%d, v%d %s' % (z, z, z, d))
            e('s_mov_b64 exec, %s' % sr(sL2))
            e('ds_write_b32 v%d, v%d offset:%d' % (vSTW, z, lst))
            e('s_mov_b64 exec, -1')
            self.barrier()
            e('ds_read_b128 %s, v%d offset:%d' % (vr(vP + 4), vSTR, lst))
            e('ds_read_b128 %s, v%d offset:%d' % (vr(vP + 8), vSTR, lst + 16))
            e('s_waitcnt lgkmcnt(0)')
            e('v_pk_add_f32 %s, %s, %s' % (vr(vP + 4, 2), vr(vP + 4, 2), vr(vP + 8, 2)))
            e('v_pk_add_f32 %s, %s, %s' % (vr(vP + 6, 2), vr(vP + 6, 2), vr(vP + 10, 2)))
            e('v_pk_add_f32 %s, %s, %s' % (vr(vP + 4, 2), vr(vP + 4, 2), vr(vP + 6, 2)))
            e('v_add_f32 v%d, v%d, v%d' % (z, vP + 4, vP + 5))
            for d in (X2, ROR(4), ROR(8)):
                e('v_add_f32_dpp v%d, v%d, v%d %s' % (z, z, z, d))
            e('v_mov_b32_dpp v%d, v%d quad_perm:[1,1,3,3] %s' % (z2, z, DPP))
            e('v_mov_b32_dpp v%d, v%d quad_perm:[0,0,2,2] %s' % (z, z, DPP))
            m, sd, r, t = vP + 4, vP + 5, vP + 6, vP + 7
            for x in self.ln_scalars('v%d' % z, 'v%d' % z2, vINVM, m, sd, r, t):
                e(x)
            self.weave(self.ln_apply(y0, m, sd, r, vP + 8), self.ln_apply(y1, m, sd, r, vP + 9))
        e('v_cvt_pk_bf16_f32 v%d, v%d, v%d' % (y0, y0, y0))
        e('v_cvt_pk_bf16_f32 v%d, v%d, v%d' % (y1, y1, y1))
        self.ts(9)
        self.gemv8(y0, y1, vW1)
        e('s_mov_b64 exec, %s' % sr(sVALID))
        e('ds_write_b128 v%d, %s offset:%d' % (vDQ, vr(vD), L_QPART))
        e('s_mov_b64 exec, -1')
        self.barrier()
        self.ts(10)
        e('s_cmp_lg_u32 s%d, 8' % sW)
        e('s_cbranch_scc1 L_mlp3')
        snapG = e.snap()
        e('v_lshlrev_b32 v157, 2, v%d' % vL)
        for i in range(9):
            e('ds_read2st64_b32 %s, v157 offset0:%d offset1:%d' % (vr(vP + 2 * i, 2), 2 * i, 2 * i + 1))
        e('v_lshlrev_b32 v%d, 16, v%d' % (vB1, vB1))
        c1 = -2.0 * LOG2E * 0.7978845608028654
        e('v_mov_b32 v158, %s' % f32(c1 * 0.044715))
        e('s_waitcnt lgkmcnt(0)')
        regs = [vP + 2 * i for i in range(9)]
        while len(regs) > 1:
            nxt = []
            for i in range(0, len(regs) - 1, 2):
                e('v_pk_add_f32 %s, %s, %s' % (vr(regs[i], 2), vr(regs[i], 2), vr(regs[i + 1], 2)))
                nxt.append(regs[i])
            if len(regs) & 1:
                nxt.append(regs[-1])
            regs = nxt
        u = vP
        e('v_add_f32 v%d, v%d, v%d' % (u, vP, vP + 1))
        e(self.rnd(u, u))
        e('v_add_f32 v%d, v%d, v%d' % (u, u, vB1))
        e(self.rnd(u, u))
        e('v_mul_f32 v%d, v%d, v%d' % (u + 1, u, u))
        e('v_fmaak_f32 v%d, v%d, v158, %s' % (u + 1, u + 1, f32(c1)))
        e('v_mul_f32 v%d, v%d, v%d' % (u + 1, u + 1, u))
        e('v_exp_f32 v%d, v%d' % (u + 1, u + 1))
        e('v_add_f32 v%d, 1.0, v%d' % (u + 1, u + 1))
        e('v_rcp_f32 v%d, v%d' % (u + 1, u + 1))
        e('v_mul_f32 v%d, v%d, v%d' % (u, u, u + 1))
        e('v_cvt_pk_bf16_f32 v%d, v%d, v%d' % (u, u, u))
        e('ds_write_b32 v157, v%d offset:%d' % (u, L_H1))
        e('s_waitcnt lgkmcnt(0)')
        e.label('L_mlp3')
        e('s_barrier')
        e('ds_read_b64 %s, v%d offset:%d' % (vr(vP, 2), vH1A, L_H1))
        self.ts(11)
        e('v_mov_b32 v%d, 0xffffff00' % (vP + 8))
        e('s_waitcnt lgkmcnt(0)')
        self.gemv8(vP, vP + 1, vW2)
        for c in range(4):
            e('v_permlane32_swap_b32 v%d, v%d' % (vD + c, vP + 4 + c))
        for c in range(4):
            e('v_add_f32_dpp v%d, v%d, v%d %s' % (vD + c, vP + 4 + c, vD + c, ROR(8)))
        self.tag(vD, vP + 8)
        e('s_mov_b32 exec_lo, 0x00ff00ff')
        e('s_mov_b32 exec_hi, 0')
        e('global_store_dwordx4 v%d, %s, %s sc1' % (vFPA, vr(vD), sr(sWS)))
        e('s_mov_b64 exec, -1')
        self.ts(12)
        self.ts_store()
        e.label('L_end')
        e('s_endpgm')

        e.raw('.section .rodata,"a"')
        e.raw('.p2align 6')
        e.raw('.amdhsa_kernel %s' % K)
        e.raw('  .amdhsa_next_free_vgpr 168')
        e.raw('  .amdhsa_next_free_sgpr 102')
        e.raw('  .amdhsa_accum_offset 168')
        e.raw('  .amdhsa_group_segment_fixed_size 0')
        e.raw('  .amdhsa_kernarg_size 104')
        e.raw('  .amdhsa_user_sgpr_count 2')
        e.raw('  .amdhsa_user_sgpr_kernarg_segment_ptr 1')
        e.raw('  .amdhsa_system_sgpr_workgroup_id_x 1')
        e.raw('.end_amdhsa_kernel')
        return e.text()

    def wo_ids(self):
        e = self.e
        e('s_mul_i32 s%d, s%d, 18' % (sID, sXCD))
        e('s_add_u32 s%d, s%d, s%d' % (sID, sID, sIDX))
        e('s_cmp_ge_u32 s%d, 9' % sIDX)
        e('s_cselect_b32 s59, 1, 0')
        e('s_lshl1_add_u32 s%d, s%d, s59' % (sGP, sXCD))
        e('s_mul_i32 s59, s59, 9')
        e('s_sub_u32 s%d, s%d, s59' % (sC, sIDX))

    def mlp_setup(self):
        e = self.e
        e('s_mul_i32 s%d, s%d, 9' % (sID, sXCD))
        e('s_add_u32 s%d, s%d, s%d' % (sID, sID, sIDX))
        e('s_sub_u32 s%d, s%d, 18' % (sID, sID))
        rho, c16 = vMA, vMA + 1
        e('v_lshrrev_b32 v%d, 3, v%d' % (rho, vL))
        e('v_and_b32 v%d, 0x70, v%d' % (c16, vKV))
        e('v_mov_b32 v%d, %d' % (vW1O, 8 * 9216))
        e('v_mov_b32 v%d, %d' % (vW2O, 8 * 1152))
        e('v_mad_u32_u24 v%d, v%d, v%d, v%d' % (vW1O, rho, vW1O, c16))
        e('v_mad_u32_u24 v%d, v%d, v%d, v%d' % (vW2O, rho, vW2O, c16))
        e('s_mul_i32 s59, s%d, %d' % (sW, 64 * 9216))
        e('s_lshl_b32 s60, s%d, 7' % sID)
        e('s_add_u32 s59, s59, s60')
        self.add64(sA, sW1, 's59')
        e('s_mul_i32 s59, s%d, %d' % (sID, 64 * 1152))
        e('s_lshl_b32 s60, s%d, 7' % sW)
        e('s_add_u32 s59, s59, s60')
        e('s_add_u32 s59, s59, 4032')
        self.add64(sB, sW2, 's59')
        e('v_lshrrev_b32 v%d, 1, v%d' % (vH1A, vL))
        e('v_lshl_add_u32 v%d, v%d, 2, s60' % (vHX + 1, vH1A))
        e('global_load_dword v%d, v%d, %s' % (vHX, vHX + 1, sr(sX)), 'HX')
        e('v_lshlrev_b32 v%d, 3, v%d' % (vH1A, vH1A))
        e('s_lshl_b32 s59, s%d, 12' % sW)
        e('s_add_u32 s59, s59, 0x%x' % WS_HP)
        e('v_lshl_add_u32 v%d, v%d, 4, s59' % (vHPA, vL))
        e('v_and_b32 v%d, 1, v%d' % (vSTW, vL))
        e('v_lshlrev_b32 v%d, 8, v%d' % (vSTW, vSTW))
        e('v_bfe_u32 v%d, v%d, 1, 3' % (vSTR, vL))
        e('v_lshl_add_u32 v%d, v%d, 5, v%d' % (vSTR, vSTR, vSTW))
        e('v_lshrrev_b32 v%d, 4, v%d' % (rho, vL))
        e('v_lshl_add_u32 v%d, v%d, 2, v%d' % (vSTW, rho, vSTW))
        e('s_lshl_b32 s59, s%d, 4' % sW)
        e('v_add_u32 v%d, s59, v%d' % (vSTW, vSTW))
        e('v_and_b32 v%d, 1, v%d' % (rho, rho))
        e('v_lshrrev_b32 v%d, 3, v%d' % (c16, c16))
        e('v_add_u32 v%d, v%d, v%d' % (rho, rho, c16))
        e('s_mul_i32 s59, s%d, %d' % (sW, 16 * 1152))
        e('s_lshl4_add_u32 s59, s%d, s59' % sID)
        e('s_add_u32 s59, s59, 0x%x' % WS_FP)
        e('v_mov_b32 v%d, 1152' % vFPA)
        e('v_mad_u32_u24 v%d, v%d, v%d, s59' % (vFPA, rho, vFPA))
        e('v_mov_b32 v%d, %s' % (vINVM, f32(1.0 / 576)))
        e('s_mov_b32 s%d, 0xaaaaaaaa' % sBIT0)
        e('s_mov_b32 s%d, 0xaaaaaaaa' % (sBIT0 + 1))
        e('s_mov_b32 s%d, 0xcccccccc' % sBIT1)
        e('s_mov_b32 s%d, 0xcccccccc' % (sBIT1 + 1))
        e('s_mov_b32 s%d, 0x00030003' % sL2)
        e('s_mov_b32 s%d, 0x00030003' % (sL2 + 1))

    def mlp_loads(self):
        out = []
        for jj in range(8):
            it = ('load', 'global_load_dwordx4 %s, v%d, %s nt' % (vr(vW1 + 4 * jj), vW1O, sr(sA)), 'A%d' % jj)
            if jj < 7:
                it += ('s_add_u32 s%d, s%d, 9216' % (sA, sA), 's_addc_u32 s%d, s%d, 0' % (sA + 1, sA + 1))
            out.append(it)
        for jj in range(8):
            out.append(('load', 'global_load_dwordx4 %s, v%d, %s offset:%d nt' % (vr(vW2 + 4 * jj), vW2O, sr(sB), 1152 * jj - 4032), 'B%d' % jj))
        if self.cfg.w2first:
            out = out[8:] + out[:8]
        return out


vW1O, vW2O, vHPA, vSTW, vSTR, vFPA, vH1A, vINVM = 144, 145, 146, 147, 148, 149, 150, 151
vHX = 152
vMA = 154
sBIT0, sBIT1, sL2 = 44, 46, 48


def immediate_unknown(e):
    return ([], [])


def main():
    ap = argparse.ArgumentParser()
    ap.add_argument('-o', default='cdna_kernels/%s.s' % NAME)
    ap.add_argument('--diag', type=int, default=0)
    ap.add_argument('--thr', type=int, default=0)
    ap.add_argument('--spin', type=int, default=0x2000)
    ap.add_argument('--nka', type=int, default=3)
    ap.add_argument('--win', type=int, default=3)
    ap.add_argument('--nb2', type=int, default=8)
    ap.add_argument('--vq', type=str, default='')
    ap.add_argument('--b2all', type=int, default=1)
    ap.add_argument('--vm', type=int, default=0)
    ap.add_argument('--winw', type=int, default=0)
    ap.add_argument('--mpre', type=int, default=0)
    ap.add_argument('--winm2', type=int, default=6)
    ap.add_argument('--w2first', type=int, default=0)
    ap.add_argument('--rorsign', type=int, default=1)
    cfg = ap.parse_args()
    cfg.vq = [int(x) for x in cfg.vq.split(',') if x != '']
    g = Gen(cfg)
    txt = g.build()
    open(cfg.o, 'w').write(txt)
    print('wrote', cfg.o, 'instructions', g.e.nins)


if __name__ == '__main__':
    main()
```

```python
import sys, struct, argparse
sys.path.insert(0, 'dev')
from emit import Em, Ins, need

NAME = 'sequential_preLN__sliding_block_cached__mixer_channel_mlp__decode'


def f32(x):
    return '0x%08x' % struct.unpack('<I', struct.pack('<f', x))[0]


WS_QP = 0x10000
WS_ML = 0x30000
WS_OP = 0x40000
WS_HP = 0x80000
WS_FP = 0x90000
WS_TS = 0x100000
WS_DELTA = 0x200000

L_QPART = 0x0000
L_QL = 0x1200
L_LP = 0x1400
L_F = 0x1600
L_ST1 = 0x1700
L_ST2 = 0x1900
L_H1 = 0x1B00
L_OPART = 0x2000
LDS_SIZE = 0x4000

LOG2E = 1.4426950408889634
SCALE = 128 ** -0.5

DPP = 'row_mask:0xf bank_mask:0xf'
X1 = 'quad_perm:[1,0,3,2] ' + DPP
X2 = 'quad_perm:[2,3,0,1] ' + DPP
HM = 'row_half_mirror ' + DPP
MI = 'row_mirror ' + DPP


def ROR(n):
    return 'row_ror:%d %s' % (n, DPP)


def vr(a, n=4):
    return 'v[%d:%d]' % (a, a + n - 1)


def sr(a, n=2):
    return 's[%d:%d]' % (a, a + n - 1)


sX, sK, sV, sWQ, sWO, sW1, sB1, sW2, sB2, sOUT, sDBG, sWS = 4, 6, 8, 10, 12, 16, 18, 20, 22, 24, 26, 28
sW = 3
sT = 30
sT0 = 31
sLOG2E = 35
sONES = 36
sG, sS, sIDX, sXCD, sID = 39, 40, 41, 42, 43
sKB, sVB, sQ0, sQ1 = 44, 46, 48, 50
sA, sB = 52, 54
sVALID = 56
sSPIN = 58
sTMP = 59
sTS = 64
sGP, sC = 96, 97
sL8 = 98
sWS2 = 100
sPB = 0

vL = 1
vM = 2
vKV = 6
vDQ = 7
vD = 8
vT = 12
vKt = 16
vVt = 48
vW1 = 80
vW2 = 112
vQO, vQX = 144, 148
vSC = 152
vU = 160


class Gen:
    def __init__(self, cfg):
        self.cfg = cfg
        self.e = Em()
        self.nts = 0

    def ts(self, k):
        if self.cfg.diag == 1 or (self.cfg.diag >= 2 and k == 0):
            self.e('s_memrealtime %s' % sr(sTS + 2 * k))

    def ts_store(self, nslots=16):
        e = self.e
        if self.cfg.diag not in (1, 2):
            return
        e('s_waitcnt lgkmcnt(0)')
        e('s_mul_i32 s59, s2, 9')
        e('s_add_u32 s59, s59, s%d' % sW)
        e('s_lshl_b32 s59, s59, 7')
        e('s_add_u32 s59, s59, 0x%x' % WS_TS)
        e('s_mov_b64 exec, 1')
        if self.cfg.diag == 2:
            e('s_memrealtime s[60:61]')
            e('v_mov_b32 v0, 0')
            e('s_not_b32 s59, s%d' % sTS)
            e('v_mov_b32 v%d, s59' % vU)
            e('s_waitcnt lgkmcnt(0)')
            e('v_mov_b32 v%d, s60' % (vU + 1))
            e('global_atomic_umax v0, v%d, %s' % (vU, sr(sDBG)))
            e('global_atomic_umax v0, v%d, %s offset:4' % (vU + 1, sr(sDBG)))
            e('s_mov_b64 exec, -1')
            return
        e('v_mov_b32 v0, s59')
        for k in range(0, nslots, 4):
            for j in range(4):
                e('v_mov_b32 v%d, s%d' % (vU + j, sTS + 2 * (k + j)))
            e('global_store_dwordx4 v0, %s, %s offset:%d' % (vr(vU), sr(sWS), 4 * k))
            e('s_nop 1')
        e('s_mov_b64 exec, -1')

    def pad_needed(self, text):
        ins = Ins(text)
        dist = 0
        pad = 0
        for p in reversed(self.e.hist):
            n = need(p, ins)
            if n > dist:
                pad = max(pad, n - dist)
            dist += p.ws
            if dist >= 12:
                break
        return pad

    def emit_item(self, it):
        if isinstance(it, str):
            self.e(it)
        elif it[0] == 'wait':
            self.e.wait_vm(it[1])
        elif it[0] == 'load':
            self.e(it[1], it[2])
        elif it[0] == 'issue':
            self.issue_to(it[1])

    def weave(self, *streams):
        streams = [list(s) for s in streams if s]
        while any(streams):
            best = None
            for k, s in enumerate(streams):
                if not s:
                    continue
                it = s[0]
                if isinstance(it, str):
                    p = self.pad_needed(it)
                elif it[0] == 'load':
                    p = self.pad_needed(it[1])
                else:
                    p = 0
                if best is None or p < best[0]:
                    best = (p, k)
                if p == 0:
                    break
            self.emit_item(streams[best[1]].pop(0))

    def issue_to(self, n):
        while self.iss < min(n, len(self.L)):
            it = self.L[self.iss]
            self.e(it[1], it[2])
            for x in it[3:]:
                self.e(x)
            self.iss += 1

    def pace(self, i, win):
        self.e.wait_vm(self.L[i][2])
        self.issue_to(i + 1 + win)

    def barrier(self):
        self.e('s_waitcnt lgkmcnt(0)')
        self.e('s_barrier')

    def add64(self, dst, base, off):
        self.e('s_add_u32 s%d, s%d, %s' % (dst, base, off))
        self.e('s_addc_u32 s%d, s%d, 0' % (dst + 1, base + 1))

    def rnd(self, d, s):
        return 'v_cvt_pk_bf16_f32 v%d, 0, v%d' % (d, s)

    def ln_scalars(self, S, Q, inv, m, sd, r, t):
        return [
            'v_mul_f32 v%d, %s, v%d' % (m, S, inv),
            'v_mul_f32 v%d, %s, v%d' % (t, Q, inv),
            'v_fma_f32 v%d, -v%d, v%d, v%d' % (t, m, m, t),
            self.rnd(m, m),
            self.rnd(t, t),
            'v_add_f32 v%d, %s, v%d' % (t, f32(1e-5), t),
            self.rnd(t, t),
            'v_sqrt_f32 v%d, v%d' % (sd, t),
            self.rnd(sd, sd),
            'v_rcp_f32 v%d, v%d' % (r, sd),
        ]

    def ln_apply(self, x, m, sd, r, t):
        return [
            'v_sub_f32 v%d, v%d, v%d' % (x, x, m),
            self.rnd(x, x),
            'v_mul_f32 v%d, v%d, v%d' % (t, x, r),
            'v_fma_f32 v%d, -v%d, v%d, v%d' % (x, t, sd, x),
            'v_fma_f32 v%d, v%d, v%d, v%d' % (x, x, r, t),
        ]

    def spin_begin(self, name):
        self.e('s_movk_i32 s%d, 0x%x' % (sSPIN, self.cfg.spin))
        self.e.label(name)

    def spin_end(self, name, acc, bytemask=True):
        e = self.e
        if bytemask:
            e('v_and_b32 v%d, 0xff, v%d' % (acc, acc))
        e('v_cmp_ne_u32 vcc, 0, v%d' % acc)
        e('s_sub_u32 s%d, s%d, 1' % (sSPIN, sSPIN))
        e('s_cbranch_scc1 %s_x' % name)
        e('s_cbranch_vccnz %s' % name)
        e.label(name + '_x')

    def poll(self, name, items, acc, first_issued=False, fb=False):
        e = self.e
        for it in items:
            e('s_mov_b64 %s, -1' % sr(it[3]))
        e('s_movk_i32 s%d, 0x%x' % (sSPIN, self.cfg.spin))
        if first_issued:
            e('s_branch %s_w' % name)
        e.label(name)
        for it in items:
            e('s_mov_b64 exec, %s' % sr(it[3]))
            e(it[0])
        e.label(name + '_w')
        n = len(items)
        for k, it in enumerate(items):
            e('s_waitcnt vmcnt(%d)' % (n - 1 - k))
            e('s_mov_b64 exec, %s' % sr(it[3]))
            if it[2] == 'f24':
                self.strip(it[1], 1, acc)
                e('v_and_b32 v%d, 0xff, v%d' % (acc, acc))
                e('v_cmp_ne_u32 %s, 0, v%d' % (sr(it[3]), acc))
            else:
                e('v_cmp_ne_u32 %s, s%d, v%d' % (sr(it[3]), sT, it[1] + 2))
        e.vm = []
        if n == 1:
            e('s_cmp_lg_u64 %s, 0' % sr(items[0][3]))
        else:
            e('s_or_b64 vcc, %s, %s' % (sr(items[0][3]), sr(items[1][3])))
            for it in items[2:]:
                e('s_or_b64 vcc, vcc, %s' % sr(it[3]))
        e('s_cbranch_scc0 %s_x' % name)
        e('s_sub_u32 s%d, s%d, 1' % (sSPIN, sSPIN))
        if fb:
            e('s_cbranch_scc1 %s_x' % name)
            e('s_cmp_lg_u32 s%d, 0x%x' % (sSPIN, self.cfg.spin - self.cfg.nfb))
            e('s_cbranch_scc1 %s' % name)
            e('s_mov_b64 %s, %s' % (sr(sPB), sr(sWS2)))
            e('s_branch %s' % name)
        else:
            e('s_cbranch_scc0 %s' % name)
        e.label(name + '_x')
        e('s_mov_b64 exec, -1')

    def strip(self, base, n, acc):
        e = self.e
        regs = []
        for gi in range(n):
            for i in range(4):
                r = base + 4 * gi + i
                e('v_xor_b32 v%d, s%d, v%d' % (r, sT0 + i, r))
                regs.append(r)
        e('v_or3_b32 v%d, v%d, v%d, v%d' % (acc, regs[0], regs[1], regs[2]))
        k = 3
        while k < len(regs):
            if k + 1 < len(regs):
                e('v_or3_b32 v%d, v%d, v%d, v%d' % (acc, acc, regs[k], regs[k + 1]))
                k += 2
            else:
                e('v_or_b32 v%d, v%d, v%d' % (acc, acc, regs[k]))
                k += 1

    def publish(self, addr, data):
        e = self.e
        if self.cfg.fast:
            e('global_store_dwordx4 v%d, %s, %s' % (addr, vr(data), sr(sWS)))
            e('global_store_dwordx4 v%d, %s, %s sc1' % (addr, vr(data), sr(sWS2)))
        else:
            e('global_store_dwordx4 v%d, %s, %s sc1' % (addr, vr(data), sr(sWS)))

    def tag(self, base, vmask):
        for i in range(4):
            self.e('v_and_or_b32 v%d, v%d, v%d, s%d' % (base + i, base + i, vmask, sT0 + i))

    def a_ops_plain(self, dst, src):
        return ['v_and_b32 v%d, v%d, v%d' % (dst + p, src, vM + p) for p in range(4)]

    def a_ops_rot(self, dst, src, j):
        out = []
        for p in range(4):
            n = (2 * (p - j) * self.cfg.rorsign) % 16
            if n == 0:
                out.append('v_and_b32 v%d, v%d, v%d' % (dst + p, src, vM + p))
            else:
                out.append('v_and_b32_dpp v%d, v%d, v%d %s' % (dst + p, src, vM + p, ROR(n)))
        return out

    def mfma(self, d, a, b, first):
        return 'v_mfma_f32_16x16x32_bf16 %s, %s, %s, %s' % (vr(d), vr(a), vr(b), '0' if first else vr(d))

    def gemv8(self, ya, yb, wbase):
        e = self.e
        A = lambda jj: self.a_ops_rot(vKt + 4 * jj, yb if (jj & 1) else ya, jj >> 1)
        for x in A(0):
            e(x)
        for jj in range(8):
            if jj + 1 < 8:
                for x in A(jj + 1):
                    e(x)
            e(self.mfma(vD, vKt + 4 * jj, wbase + 4 * jj, jj == 0))

    def kvload(self, dst, base, t, tok):
        m = self.cfg.kvmode
        off = {0: 256 * t, 1: 1024 * t - 4096, 2: 0}[m]
        it = ('load', 'global_load_dwordx4 %s, v%d, %s offset:%d %s' % (vr(dst), vKV, sr(base), off, self.cfg.kvhint), tok)
        if m == 2 and t < 7:
            it += ('s_add_u32 s%d, s%d, 0x2000' % (base, base), 's_addc_u32 s%d, s%d, 0' % (base + 1, base + 1))
        return it

    def kload(self, t):
        return self.kvload(vKt + 4 * t, sKB, t, 'K%d' % t)

    def vload(self, t):
        return self.kvload(vVt + 4 * t, sVB, t, 'V%d' % t)

    def build(self):
        e = self.e
        cfg = self.cfg
        K = NAME + '_kernel'
        e.raw('; @launch grid=(256,1,1) block=(576,1,1) lds=%d' % LDS_SIZE)
        e.raw('.amdgcn_target "amdgcn-amd-amdhsa--gfx950"')
        e.raw('.text')
        e.raw('.globl %s' % K)
        e.raw('.p2align 8')
        e.raw('.type %s,@function' % K)
        e.label(K)
        e('s_cmp_ge_u32 s2, 0x100')
        e('s_cbranch_scc1 L_end')
        e('s_load_dwordx16 s[4:19], s[0:1], 0')
        e('s_load_dwordx8 s[20:27], s[0:1], 64')
        e('s_load_dwordx2 s[28:29], s[0:1], 96')
        self.ts(0)
        e('s_getpc_b64 s[60:61]')
        e.label('L_pc')
        e('v_lshlrev_b32 v12, 7, v0')
        e('v_min_u32 v12, L_end-L_pc, v12')
        e('v_mov_b32 v14, s60')
        e('v_mov_b32 v15, s61')
        e('v_add_co_u32 v14, vcc, v14, v12')
        e('v_lshrrev_b32 v13, 6, v0')
        e('v_and_b32 v%d, 63, v0' % vL)
        e('v_addc_co_u32 v15, vcc, 0, v15, vcc')
        e('v_readfirstlane_b32 s%d, v13' % sW)
        e('global_load_dword v%d, v[14:15], off' % (vU + 7), 'PF')
        e('s_and_b32 s%d, s2, 7' % sXCD)
        e('s_lshr_b32 s%d, s2, 3' % sIDX)
        e('s_lshr_b32 s%d, s%d, 4' % (sG, sIDX))
        e('s_lshl1_add_u32 s%d, s%d, s%d' % (sG, sXCD, sG))
        e('s_and_b32 s%d, s%d, 15' % (sS, sIDX))
        e('s_lshr_b32 s59, s%d, 2' % sS)
        e('s_mul_i32 s59, s59, 144')
        e('s_lshl4_add_u32 s59, s%d, s59' % sW)
        e('s_lshl_b32 s60, s59, 13')
        e('s_lshl_b32 s61, s%d, 9' % sG)
        e('s_add_u32 s60, s60, s61')
        e('s_and_b32 s61, s%d, 3' % sS)
        e('s_lshl_b32 s61, s61, 7')
        e('s_add_u32 s60, s60, s61')
        e('s_lshl_b32 s59, s59, 1')
        e('s_lshl_b32 s61, s%d, 24' % sG)
        e('s_lshl_b32 s62, s%d, 16' % sS)
        e('s_add_u32 s61, s61, s62')
        e('s_lshl_b32 s62, s%d, %d' % (sW, 10 if cfg.kvmode == 2 else 13))
        e('s_add_u32 s61, s61, s62')
        e('s_add_u32 s61, s61, 0x%x' % (61440 * 256 + (4096 if cfg.kvmode == 1 else 0)))
        vRHO, vC16, vXA, vXB, vXC, vQOFF = 12, 13, 14, 15, vU, vU + 1
        e('v_lshrrev_b32 v%d, 3, v%d' % (vRHO, vL))
        e('v_and_b32 v%d, 7, v%d' % (vC16, vL))
        e('v_lshlrev_b32 v%d, 4, v%d' % (vC16, vC16))
        e('v_lshlrev_b32 v%d, 4, v%d' % (vXA, vL))
        e('v_lshlrev_b32 v%d, 1, v%d' % (vXB, vL))
        e('v_lshl_add_u32 v%d, v%d, 2, s59' % (vXC, vRHO))
        e('v_lshl_add_u32 v%d, v%d, 14, v%d' % (vQOFF, vRHO, vC16))
        if cfg.kvmode == 0:
            e('v_lshrrev_b32 v%d, 4, v%d' % (vKV, vL))
            e('v_and_b32 v%d, 0xf0, v%d' % (vU + 2, vXA))
            e('v_lshl_add_u32 v%d, v%d, 11, v%d' % (vKV, vKV, vU + 2))
        else:
            e('v_lshlrev_b32 v%d, 4, v%d' % (vKV, vL))
        e('s_waitcnt lgkmcnt(0)')
        e('s_load_dword s%d, %s, 0' % (sT, sr(sWS)))
        vX = vW2 + 8
        e('global_load_dwordx4 %s, v%d, %s' % (vr(vX), vXA, sr(sX)), 'XA')
        e('global_load_ushort v%d, v%d, %s offset:1024' % (vX + 4, vXB, sr(sX)), 'XB')
        e('global_load_dword v%d, v%d, %s' % (vX + 5, vXC, sr(sX)), 'XC')
        self.add64(sQ0, sWQ, 's60')
        e('global_load_dwordx4 %s, v%d, %s nt' % (vr(vW2), vQOFF, sr(sQ0)), 'Q0')
        self.add64(sQ1, sQ0, '0x2000')
        e('global_load_dwordx4 %s, v%d, %s nt' % (vr(vW2 + 4), vQOFF, sr(sQ1)), 'Q1')
        self.add64(sKB, sK, 's61')
        self.add64(sVB, sV, 's61')
        self.L = [self.kload(t) for t in range(8)] + [self.vload(t) for t in range(8)]
        self.iss = 0
        if cfg.early:
            e('s_cmp_eq_u32 s%d, 8' % sW)
            e('s_cbranch_scc1 L_w8_pre')
            snapA = e.snap()
            self.issue_to(cfg.nka)
            e.label('L_pre_join')
        e('s_mov_b64 %s, %s' % (sr(sPB), sr(sWS)))
        self.add64(sWS2, sWS, '0x%x' % WS_DELTA)
        self.ts(1)
        e('v_and_b32 v%d, 3, v%d' % (vU + 2, vL))
        e('v_lshlrev_b32 v%d, 4, v%d' % (vU + 2, vU + 2))
        e('v_mov_b32 v%d, 0xffff' % (vU + 4))
        e('v_mov_b32 v%d, 0' % (vU + 5))
        e('v_lshlrev_b64 %s, v%d, %s' % (vr(vU + 4, 2), vU + 2, vr(vU + 4, 2)))
        e('v_bfe_i32 v%d, v%d, 2, 1' % (vU + 2, vL))
        e('v_and_b32 v%d, v%d, v%d' % (vM + 2, vU + 4, vU + 2))
        e('v_and_b32 v%d, v%d, v%d' % (vM + 3, vU + 5, vU + 2))
        e('v_xor_b32 v%d, v%d, v%d' % (vM + 0, vU + 4, vM + 2))
        e('v_xor_b32 v%d, v%d, v%d' % (vM + 1, vU + 5, vM + 3))
        e('v_lshrrev_b32 v%d, 5, v%d' % (vDQ, vL))
        e('v_lshlrev_b32 v%d, 8, v%d' % (vDQ, vDQ))
        e('v_lshl_add_u32 v%d, v%d, 1, v%d' % (vDQ, vC16, vDQ))
        e('v_and_b32 v%d, 16, v%d' % (vU + 2, vL))
        e('s_lshl_b32 s59, s%d, 9' % sW)
        e('v_add3_u32 v%d, v%d, v%d, s59' % (vDQ, vDQ, vU + 2))
        e('s_mov_b32 s%d, 0x00ff00ff' % sVALID)
        e('s_mov_b32 s%d, 0xff00ff00' % (sVALID + 1))
        e('s_mov_b32 s%d, 0x01010101' % sL8)
        e('s_mov_b32 s%d, 0x01010101' % (sL8 + 1))
        e('s_mov_b32 s%d, %s' % (sLOG2E, f32(LOG2E)))
        e('s_mov_b32 s%d, 0x3f803f80' % sONES)
        vINV = vU + 6
        e('v_mov_b32 v%d, %s' % (vINV, f32(1.0 / 576)))
        e.wait_vm('XB')
        if not cfg.early:
            e('s_cmp_eq_u32 s%d, 8' % sW)
            e('s_cbranch_scc1 L_w8_pre')
            snapA = e.snap()
            self.issue_to(cfg.nka)
            e.label('L_pre_join')
        vS, vQ = vU + 2, vU + 3
        for k in range(5):
            e('v_dot2_f32_bf16 v%d, v%d, s%d, %s' % (vS, vX + k, sONES, '0' if k == 0 else 'v%d' % vS))
            e('v_dot2_f32_bf16 v%d, v%d, v%d, %s' % (vQ, vX + k, vX + k, '0' if k == 0 else 'v%d' % vQ))
        for d in (X1, X2, HM, MI):
            e('v_add_f32_dpp v%d, v%d, v%d %s' % (vS, vS, vS, d))
            e('v_add_f32_dpp v%d, v%d, v%d %s' % (vQ, vQ, vQ, d))
        for d in ('row_bcast:15 row_mask:0xa bank_mask:0xf', 'row_bcast:31 row_mask:0xc bank_mask:0xf'):
            e('v_add_f32_dpp v%d, v%d, v%d %s' % (vS, vS, vS, d))
            e('v_add_f32_dpp v%d, v%d, v%d %s' % (vQ, vQ, vQ, d))
        e('v_readlane_b32 s59, v%d, 63' % vS)
        e('v_readlane_b32 s60, v%d, 63' % vQ)
        e.wait_vm('XC')
        y0, y1 = vX, vX + 1
        e('v_lshlrev_b32 v%d, 16, v%d' % (y0, vX + 5))
        e('v_and_b32 v%d, 0xffff0000, v%d' % (y1, vX + 5))
        m, sd, r, t = vU + 2, vU + 3, vU + 4, vU + 5
        for x in self.ln_scalars('s59', 's60', vINV, m, sd, r, t):
            e(x)
        self.weave(self.ln_apply(y0, m, sd, r, vX + 2), self.ln_apply(y1, m, sd, r, vX + 3))
        e('v_cvt_pk_bf16_f32 v%d, v%d, v%d' % (y0, y0, y0))
        e('v_cvt_pk_bf16_f32 v%d, v%d, v%d' % (y1, y1, y1))
        A0, A1 = vT, vX + 4
        for x in self.a_ops_plain(A0, y0):
            e(x)
        for x in self.a_ops_plain(A1, y1):
            e(x)
        e.wait_vm('Q0')
        e(self.mfma(vD, A0, vW2, True))
        e.wait_vm('Q1')
        e(self.mfma(vD, A1, vW2 + 4, False))
        e('s_waitcnt lgkmcnt(0)')
        e('s_add_u32 s%d, s%d, 0x01010101' % (sT, sT))
        e('s_and_b32 s%d, s%d, 0xff' % (sT0, sT))
        e('s_bfe_u32 s%d, s%d, 0x80008' % (sT0 + 1, sT))
        e('s_bfe_u32 s%d, s%d, 0x80010' % (sT0 + 2, sT))
        e('s_lshr_b32 s%d, s%d, 24' % (sT0 + 3, sT))
        e('s_mov_b64 exec, %s' % sr(sVALID))
        e('ds_write_b128 v%d, %s offset:%d' % (vDQ, vr(vD), L_QPART))
        e('s_mov_b64 exec, -1')
        self.ts(2)
        self.barrier()
        e('s_cmp_eq_u32 s%d, 8' % sW)
        e('s_cbranch_scc1 L_comm')
        snapB1 = e.snap()

        vQA, vLPA = vU, vU + 2
        e('v_and_b32 v%d, 8, v%d' % (vU + 1, vL))
        e('v_lshlrev_b32 v%d, 5, v%d' % (vQA, vU + 1))
        e('v_and_b32 v%d, 0xf0, v%d' % (vU + 3, vKV))
        e('v_lshrrev_b32 v%d, 4, v%d' % (vU + 4, vL))
        e('v_lshl_add_u32 v%d, v%d, 3, v%d' % (vLPA, vU + 4, vQA))
        e('v_add_u32 v%d, v%d, v%d' % (vQA, vQA, vU + 3))
        e('v_xor_b32 v%d, 0x100, v%d' % (vU + 3, vQA))
        e('s_lshl_b32 s59, s%d, 5' % sW)
        e('v_add_u32 v%d, s59, v%d' % (vLPA, vLPA))
        vSCL = vU + 4
        e('v_mov_b32 v%d, %s' % (vSCL, f32(SCALE)))
        vOPA = vU + 1
        e('s_lshl_b32 s59, s%d, 10' % sW)
        e('v_lshl_add_u32 v%d, v%d, 4, s59' % (vOPA, vL))
        for i in range(cfg.nb2):
            self.pace(i, cfg.win)
        self.ts(3)
        e('s_barrier')
        e('ds_read_b128 %s, v%d offset:%d' % (vr(vQO), vQA, L_QL))
        e('ds_read_b128 %s, v%d offset:%d' % (vr(vQX), vU + 3, L_QL))
        if cfg.b2all:
            self.issue_to(16)
        self.ts(4)
        e('s_waitcnt lgkmcnt(0)')
        prevR = []
        pq = cfg.nb2
        for t in range(8):
            a, b = vSC + t, (vT + (t & 1))
            D = [('wait', 'K%d' % t)]
            if t >= pq:
                D.append(('issue', t + 1 + cfg.win))
                pq = t + 1
            for k in range(4):
                D.append('v_dot2_f32_bf16 v%d, v%d, v%d, %s' % (a, vKt + 4 * t + k, vQO + k, '0' if k == 0 else 'v%d' % a))
                D.append('v_dot2_f32_bf16 v%d, v%d, v%d, %s' % (b, vKt + 4 * t + k, vQX + k, '0' if k == 0 else 'v%d' % b))
            if t in cfg.vq and pq >= 8:
                D.append(('wait', self.L[pq][2]))
                D.append(('issue', pq + 1 + cfg.win))
                pq += 1
            self.weave(prevR, D)
            prevR = [
                'v_add_f32_dpp v%d, v%d, v%d %s' % (a, b, a, ROR(8)),
                'v_add_f32_dpp v%d, v%d, v%d %s' % (a, a, a, X1),
                'v_add_f32_dpp v%d, v%d, v%d %s' % (a, a, a, X2),
                'v_add_f32_dpp v%d, v%d, v%d %s' % (a, a, a, HM),
                self.rnd(a, a),
                'v_mul_f32 v%d, v%d, v%d' % (a, a, vSCL),
                self.rnd(a, a),
            ]
        mx = vT + 2
        pre = ['v_max3_f32 v%d, v%d, v%d, v%d' % (mx, vSC, vSC + 1, vSC + 2),
               'v_max3_f32 v%d, v%d, v%d, v%d' % (mx, mx, vSC + 3, vSC + 4),
               'v_max3_f32 v%d, v%d, v%d, v%d' % (mx, mx, vSC + 5, vSC + 6)]
        self.weave(prevR, pre)
        e('v_max_f32 v%d, v%d, v%d' % (mx, mx, vSC + 7))
        e('v_mov_b32 v%d, v%d' % (vT, mx))
        e('v_permlane32_swap_b32 v%d, v%d' % (vT, mx))
        e('v_max_f32 v%d, v%d, v%d' % (mx, mx, vT))
        e('v_mov_b32 v%d, v%d' % (vT, mx))
        e('v_permlane16_swap_b32 v%d, v%d' % (vT, mx))
        e('v_max_f32 v%d, v%d, v%d' % (mx, mx, vT))
        self.ts(5)
        e('v_mul_f32 v%d, s%d, v%d' % (vT, sLOG2E, mx))
        for t in range(8):
            e('v_fma_f32 v%d, v%d, s%d, -v%d' % (vSC + t, vSC + t, sLOG2E, vT))
        for t in range(8):
            e('v_exp_f32 v%d, v%d' % (vSC + t, vSC + t))
        ls = vT + 3
        e('v_add_f32 v%d, v%d, v%d' % (vT, vSC, vSC + 1))
        e('v_add_f32 v%d, v%d, v%d' % (vT + 1, vSC + 2, vSC + 3))
        e('v_add_f32 v%d, v%d, v%d' % (ls, vSC + 4, vSC + 5))
        e('v_add_f32 v%d, v%d, v%d' % (vT, vT, vSC + 6))
        e('v_add_f32 v%d, v%d, v%d' % (vT + 1, vT + 1, vSC + 7))
        e('v_add_f32 v%d, v%d, v%d' % (ls, ls, vT))
        e('v_add_f32 v%d, v%d, v%d' % (ls, ls, vT + 1))
        e('s_mov_b64 exec, %s' % sr(sL8))
        e('ds_write_b64 v%d, %s offset:%d' % (vLPA, vr(mx, 2), L_LP))
        e('s_mov_b64 exec, -1')
        for _ in range(cfg.vm):
            self.pace(pq, cfg.win)
            pq += 1
        for t in range(8):
            e('v_cvt_pk_bf16_f32 v%d, v%d, v%d' % (vSC + t, vSC + t, vSC + t))
        for t in range(8):
            for x in self.a_ops_plain(vKt + 4 * t, vSC + t):
                e(x)
        self.issue_to(16)
        self.ts(6)
        e('s_cmp_lt_u32 s%d, 18' % sIDX)
        e('s_cbranch_scc1 L_wo')
        e('s_cmp_lt_u32 s%d, 27' % sIDX)
        e('s_cbranch_scc1 L_mlp')
        snapR = e.snap()
        L0 = list(self.L)

        def pv(win):
            for t in range(8):
                e.wait_vm('V%d' % t)
                e(self.mfma(vD, vKt + 4 * t, vVt + 4 * t, t == 0))
                self.issue_to(8 + t + 1 + win)
            e('ds_write_b128 v%d, %s offset:%d' % (vOPA, vr(vD), L_OPART))
            self.ts(7)
            self.barrier()

        pv(0)
        self.ts_store()
        e('s_endpgm')

        e.restore(snapR)
        e.label('L_wo')
        self.wo_ids()
        vWO, vP0, vP1, vMLA = vSC, vSC + 1, vSC + 2, vSC + 3
        e('v_lshrrev_b32 v%d, 3, v%d' % (vU + 2, vL))
        e('v_and_b32 v%d, 0x70, v%d' % (vWO, vKV))
        e('v_mov_b32 v%d, 4608' % (vU + 3))
        e('v_mad_u32_u24 v%d, v%d, v%d, v%d' % (vWO, vU + 2, vU + 3, vWO))
        e('s_lshl_b32 s59, s%d, 3' % sGP)
        e('s_add_u32 s59, s59, s%d' % sW)
        e('s_mul_i32 s59, s59, %d' % (32 * 1152))
        e('s_lshl_b32 s60, s%d, 7' % sC)
        e('s_add_u32 s59, s59, s60')
        self.add64(sA, sWO, 's59')
        self.L = L0 + [('load', 'global_load_dwordx4 %s, v%d, %s offset:%d nt' % (vr(vW1 + 4 * j), vWO, sr(sA), 1152 * j), 'W%d' % j)
                       for j in range(4)]
        self.iss = 16
        e('v_and_b32 v%d, 15, v%d' % (vU + 3, vL))
        if cfg.lay:
            e('v_lshlrev_b32 v%d, 4, v%d' % (vU + 2, vU + 2))
            e('v_lshl_add_u32 v%d, v%d, 10, v%d' % (vU + 2, vU + 3, vU + 2))
            e('s_lshl_b32 s60, s%d, 7' % sW)
        else:
            e('v_lshlrev_b32 v%d, 8, v%d' % (vU + 2, vU + 2))
            e('v_lshl_add_u32 v%d, v%d, 4, v%d' % (vU + 2, vU + 3, vU + 2))
            e('s_lshl_b32 s60, s%d, 11' % sW)
        e('s_lshl_b32 s59, s%d, 14' % sGP)
        e('s_add_u32 s59, s59, s60')
        e('s_add_u32 s59, s59, 0x%x' % WS_OP)
        e('v_add_u32 v%d, s59, v%d' % (vP0, vU + 2))
        e('v_xor_b32 v%d, 0x%x, v%d' % (vP1, 0x2000 if cfg.lay else 0x80, vP0))
        e('s_lshl_b32 s59, s%d, %d' % (sGP, 11 if cfg.lay else 8))
        e('s_add_u32 s59, s59, 0x%x' % WS_ML)
        e('v_lshl_add_u32 v%d, v%d, %d, s59' % (vMLA, vU + 3, 7 if cfg.lay else 4))
        pv(cfg.winw)
        e('s_barrier')
        if cfg.wlate < 2:
            self.issue_to(20)
        if cfg.diag == 1:
            e.wait_vm0()
            self.ts(13)
        f0, f1 = vU + 4, vU + 5
        G = vVt + 8
        if cfg.mpoll:
            self.poll('L_ml_poll', [('global_load_dwordx4 %s, v%d, %s sc1' % (vr(G), vMLA, sr(sPB)), G, 'f24', 44)], vT, fb=cfg.fast)
        else:
            self.spin_begin('L_ml_poll')
            e('global_load_dwordx4 %s, v%d, %s sc1' % (vr(G), vMLA, sr(sWS)))
            e.wait_vm0()
            self.strip(G, 1, vT)
            self.spin_end('L_ml_poll', vT)
        self.ts(14)
        e('global_load_dwordx4 %s, v%d, %s sc1' % (vr(vVt), vP0, sr(sPB)))
        e('global_load_dwordx4 %s, v%d, %s sc1' % (vr(vVt + 4), vP1, sr(sPB)))
        e('s_cmp_lt_u32 s%d, 4' % sW)
        e('s_cbranch_scc1 L_wo_h0')
        e('v_mov_b32 v%d, v%d' % (G, G + 2))
        e('v_mov_b32 v%d, v%d' % (G + 1, G + 3))
        e.label('L_wo_h0')
        e('v_mov_b32 v%d, v%d' % (G + 2, G))
        for d in (X1, X2, HM, MI):
            e('v_max_f32_dpp v%d, v%d, v%d %s' % (G + 2, G + 2, G + 2, d))
        e('v_sub_f32 v%d, v%d, v%d' % (G, G, G + 2))
        e('v_mul_f32 v%d, s%d, v%d' % (G, sLOG2E, G))
        e('v_exp_f32 v%d, v%d' % (G, G))
        e('v_mul_f32 v%d, v%d, v%d' % (G + 1, G + 1, G))
        for d in (X1, X2, HM, MI):
            e('v_add_f32_dpp v%d, v%d, v%d %s' % (G + 1, G + 1, G + 1, d))
        e('v_rcp_f32 v%d, v%d' % (G + 1, G + 1))
        e('v_mul_f32 v%d, v%d, v%d' % (f0, G, G + 1))
        e('v_mov_b32_dpp v%d, v%d %s' % (f1, f0, ROR(8)))
        if cfg.mpoll:
            self.poll('L_wo_poll', [('global_load_dwordx4 %s, v%d, %s sc1' % (vr(vVt), vP0, sr(sPB)), vVt, 'f24', 44),
                                    ('global_load_dwordx4 %s, v%d, %s sc1' % (vr(vVt + 4), vP1, sr(sPB)), vVt + 4, 'f24', 46)],
                      vT, first_issued=True, fb=cfg.fast)
        else:
            e('s_movk_i32 s%d, 0x%x' % (sSPIN, cfg.spin))
            e('s_branch L_wo_poll_w')
            e.label('L_wo_poll')
            e('global_load_dwordx4 %s, v%d, %s sc1' % (vr(vVt), vP0, sr(sWS)))
            e('global_load_dwordx4 %s, v%d, %s sc1' % (vr(vVt + 4), vP1, sr(sWS)))
            e.label('L_wo_poll_w')
            e.wait_vm0()
            self.strip(vVt, 2, vT)
            self.spin_end('L_wo_poll', vT)
        self.ts(8)
        if cfg.wlate >= 2:
            self.issue_to(20)
            e.wait_vm0()
        for c in range(4):
            e('v_mul_f32 v%d, v%d, v%d' % (vVt + c, vVt + c, f0))
        for c in range(4):
            e('v_fmac_f32 v%d, v%d, v%d' % (vVt + c, vVt + 4 + c, f1))
        for d in (X1, X2, HM):
            for c in range(4):
                e('v_add_f32_dpp v%d, v%d, v%d %s' % (vVt + c, vVt + c, vVt + c, d))
        for c in range(4):
            e('v_cvt_pk_bf16_f32 v%d, v%d, v%d' % (vVt + c, vVt + c, vVt + c))
        for x in self.a_ops_plain(vKt, vVt):
            e(x)
        for j in range(4):
            if j + 1 < 4:
                for x in self.a_ops_plain(vKt + 4 * (j + 1), vVt + j + 1):
                    e(x)
            e(self.mfma(vD, vKt + 4 * j, vW1 + 4 * j, j == 0))
        e('s_mov_b64 exec, %s' % sr(sVALID))
        e('ds_write_b128 v%d, %s offset:%d' % (vDQ, vr(vD), L_QPART))
        e('s_mov_b64 exec, -1')
        self.ts(9)
        self.barrier()
        self.ts_store()
        e('s_endpgm')

        e.restore(snapR)
        e.label('L_mlp')
        self.mlp_setup()
        self.L = L0 + self.mlp_loads()[:cfg.mpre]
        self.iss = 16
        pv(cfg.mpre)
        e('s_branch L_mlp_w')

        e.restore(snapA)
        e.label('L_w8_pre')
        vFX, vFB, vB1 = 16, 17, 156
        e('s_mul_i32 s59, s%d, 18' % sXCD)
        e('s_add_u32 s59, s59, s%d' % sIDX)
        e('s_min_u32 s59, s59, 143')
        e('s_lshl_b32 s59, s59, 3')
        e('v_lshrrev_b32 v19, 5, v%d' % vL)
        e('v_bfe_u32 v20, v%d, 4, 1' % vL)
        e('v_lshl_add_u32 v19, v20, 1, v19')
        e('v_lshl_add_u32 v19, v19, 1, s59')
        e('global_load_ushort v%d, v19, %s' % (vFX, sr(sX)), 'K0')
        e('global_load_ushort v%d, v19, %s' % (vFB, sr(sB2)), 'K1')
        e('s_mul_i32 s59, s%d, 9' % sXCD)
        e('s_add_u32 s59, s59, s%d' % sIDX)
        e('s_sub_u32 s59, s59, 18')
        e('s_min_u32 s59, s59, 71')
        e('s_lshl_b32 s59, s59, 7')
        e('v_add_u32 v20, s59, v%d' % vXB)
        e('global_load_ushort v%d, v20, %s' % (vB1, sr(sB1)), 'K2')
        nsm = 3
        if cfg.fast and cfg.touch:
            e('s_lshl4_add_u32 s59, s%d, s%d' % (sG, sS))
            e('s_lshl_b32 s60, s59, 9')
            e('s_add_u32 s60, s60, 0x%x' % WS_QP)
            e('v_lshl_add_u32 v21, v%d, 7, s60' % vL)
            e('s_lshl_b32 s60, s59, 10')
            e('s_add_u32 s60, s60, 0x%x' % (WS_OP - 512))
            e('s_mov_b64 exec, -16')
            e('v_lshl_add_u32 v21, v%d, 7, s60' % vL)
            e('s_lshl_b32 s60, s59, 7')
            e('s_add_u32 s60, s60, 0x%x' % WS_ML)
            e('s_lshl_b64 exec, -1, 12')
            e('v_mov_b32 v21, s60')
            e('s_mov_b64 exec, 0x1fff')
            e('global_load_dword v18, v21, %s sc1' % sr(sWS), 'K3')
            e('s_mov_b64 exec, -1')
            nsm = 4
        for t in range(nsm, cfg.nka):
            e('global_load_ushort v18, v20, %s' % sr(sB1), 'K%d' % t)
        e('v_mov_b32 v20, 0')
        e('v_mov_b32 v21, -1.0')
        e('v_lshlrev_b32 v22, 2, v%d' % vL)
        e('v_lshlrev_b32 v23, 3, v%d' % vL)
        e('ds_write2st64_b32 v22, v20, v20 offset0:%d offset1:%d' % (L_ST1 // 256, L_ST1 // 256 + 1))
        e('ds_write2st64_b32 v22, v20, v20 offset0:%d offset1:%d' % (L_ST2 // 256, L_ST2 // 256 + 1))
        e('ds_write_b64 v23, v[20:21] offset:%d' % L_LP)
        e('s_branch L_pre_join')

        e.restore(snapB1)
        e.label('L_comm')
        vA = 24
        vMASK = 23
        e('v_lshlrev_b32 v%d, 3, v%d' % (vA, vL))
        for i in range(4):
            e('ds_read2_b64 %s, v%d offset0:%d offset1:%d' % (vr(32 + 4 * i), vA, 64 * i, 64 * i + 32))
        e('v_add_u32 v25, 0x800, v%d' % vA)
        for i in range(4):
            e('ds_read2_b64 %s, v25 offset0:%d offset1:%d' % (vr(48 + 4 * i), 64 * i, 64 * i + 32))
        e('v_add_u32 v25, 0x1000, v%d' % vA)
        e('ds_read2_b64 %s, v25 offset0:0 offset1:32' % vr(64))
        e('v_mov_b32 v%d, 0xffffff00' % vMASK)
        e('s_lshl_b32 s59, s%d, 13' % sG)
        e('s_lshl_b32 s60, s%d, 9' % sS)
        e('s_add_u32 s60, s60, s59')
        e('s_add_u32 s60, s60, 0x%x' % WS_QP)
        e('s_add_u32 s59, s59, 0x%x' % WS_QP)
        e('v_lshl_add_u32 v26, v%d, 4, s60' % vL)
        e('v_lshl_add_u32 v27, v%d, 4, s59' % vL)
        e('v_add_u32 v28, 0x1000, v27')
        e('s_waitcnt lgkmcnt(0)')
        n = 18
        regs = [32 + 2 * i for i in range(n)]
        while len(regs) > 1:
            nxt = []
            for i in range(0, len(regs) - 1, 2):
                e('v_pk_add_f32 %s, %s, %s' % (vr(regs[i], 2), vr(regs[i], 2), vr(regs[i + 1], 2)))
                nxt.append(regs[i])
            if len(regs) & 1:
                nxt.append(regs[-1])
            regs = nxt
        e('v_mov_b32 v34, s%d' % sT)
        e('v_mov_b32 v35, s%d' % sT)
        e('s_mov_b32 exec_hi, 0')
        self.publish(26, 32)
        e('s_mov_b64 exec, -1')
        self.ts(3)
        qitems = []
        for r_ in range(4):
            for h in range(2):
                off = (r_ & 1) * 2048 + h * 1024
                qitems.append(('global_load_dwordx4 %s, v%d, %s offset:%d sc1' % (vr(48 + 8 * r_ + 4 * h), 27 + (r_ >> 1), sr(sPB), off),
                               48 + 8 * r_ + 4 * h, 'tw', [44, 46, 48, 50, 52, 54, 14, 60][2 * r_ + h]))
        if cfg.mpoll:
            self.poll('L_q_poll', qitems, 25, fb=cfg.fast)
        else:
            self.spin_begin('L_q_poll')
            for it in qitems:
                e(it[0])
            e.wait_vm0()
            e('v_xor_b32 v25, s%d, v50' % sT)
            for k in range(1, 8):
                e('v_bitop3_b32 v25, v25, v%d, s%d bitop3:0xf6' % (50 + 4 * k, sT))
            self.spin_end('L_q_poll', 25, bytemask=False)
        for h in range(2):
            b = 48 + 4 * h
            e('v_pk_add_f32 %s, %s, %s' % (vr(b, 2), vr(b, 2), vr(b + 8, 2)))
            e('v_pk_add_f32 %s, %s, %s' % (vr(b + 16, 2), vr(b + 16, 2), vr(b + 24, 2)))
        for h in range(2):
            b = 48 + 4 * h
            e('v_pk_add_f32 %s, %s, %s' % (vr(b, 2), vr(b, 2), vr(b + 16, 2)))
        e('v_cvt_pk_bf16_f32 v48, v48, v49')
        e('v_cvt_pk_bf16_f32 v52, v52, v53')
        e('v_lshlrev_b32 v22, 2, v%d' % vL)
        e('ds_write2st64_b32 v22, v48, v52 offset0:%d offset1:%d' % (L_QL // 256, L_QL // 256 + 1))
        self.ts(4)
        self.barrier()
        sh = 0 if cfg.lay else 4
        e('v_lshrrev_b32 v24, 5, v%d' % vL)
        e('v_lshlrev_b32 v24, %d, v24' % (9 + sh))
        e('v_and_b32 v25, 15, v%d' % vL)
        e('v_lshl_add_u32 v24, v25, %d, v24' % (5 + sh))
        e('v_bfe_u32 v25, v%d, 4, 1' % vL)
        e('v_lshl_add_u32 v24, v25, %d, v24' % (4 + sh))
        e('s_lshl_b32 s59, s%d, 14' % sG)
        e('s_lshl_b32 s60, s%d, %d' % (sS, 10 if cfg.lay else 4))
        e('s_add_u32 s59, s59, s60')
        e('s_add_u32 s59, s59, 0x%x' % WS_OP)
        e('v_add_u32 v24, s59, v24')
        e('v_lshlrev_b32 v25, 4, v%d' % vL)
        e('s_lshl4_add_u32 s59, s%d, s%d' % (sG, sS))
        e('s_lshl_b32 s59, s59, %d' % (7 if cfg.lay else 4))
        e('s_add_u32 s59, s59, 0x%x' % WS_ML)
        e('v_mov_b32 v26, s59')
        e('v_lshlrev_b32 v27, 3, v%d' % vL)
        e('v_lshrrev_b32 v28, 5, v%d' % vL)
        e('v_lshlrev_b32 v28, 5, v28')
        e('v_and_b32 v29, 0x3c, v%d' % vL)
        self.spin_begin('L_lp_poll')
        e('ds_read_b64 v[32:33], v27 offset:%d' % L_LP)
        e('s_waitcnt lgkmcnt(0)')
        e('v_cmp_gt_f32 vcc, 0, v33')
        e('s_sub_u32 s%d, s%d, 1' % (sSPIN, sSPIN))
        e('s_cbranch_scc1 L_lp_poll_x')
        e('s_cbranch_vccnz L_lp_poll')
        e.label('L_lp_poll_x')
        e('v_max_f32_dpp v36, v32, v32 %s' % ROR(4))
        e('v_max_f32_dpp v36, v36, v36 %s' % ROR(8))
        e('v_mov_b32 v37, v36')
        e('v_permlane16_swap_b32 v37, v36')
        e('v_max_f32 v36, v36, v37')
        e('v_sub_f32 v37, v32, v36')
        e('v_mul_f32 v37, s%d, v37' % sLOG2E)
        e('v_exp_f32 v37, v37')
        e('v_mov_b32 v32, v36')
        e('v_mul_f32 v33, v33, v37')
        e('ds_write_b32 v29, v37 offset:%d' % L_F)
        for d in (X1, X2, ROR(4), ROR(8)):
            e('v_add_f32_dpp v33, v33, v33 %s' % d)
        e('v_mov_b32 v38, v33')
        e('v_permlane16_swap_b32 v38, v33')
        e('v_add_f32 v33, v33, v38')
        e('v_permlane32_swap_b32 v32, v34')
        e('v_permlane32_swap_b32 v33, v35')
        self.tag(32, vMASK)
        e('s_mov_b64 exec, 1')
        self.publish(26, 32)
        e('s_mov_b64 exec, -1')
        e('ds_read_b128 %s, v28 offset:%d' % (vr(64), L_F))
        e('ds_read_b128 %s, v28 offset:%d' % (vr(68), L_F + 16))
        self.ts(5)
        e('s_cmp_lt_u32 s%d, 18' % sIDX)
        e('s_cbranch_scc1 L_c_wo')
        e('s_cmp_lt_u32 s%d, 27' % sIDX)
        e('s_cbranch_scc1 L_c_mlp')
        snapC = e.snap()

        def op_publish():
            e('s_barrier')
            self.ts(6)
            for w in range(8):
                e('ds_read_b128 %s, v25 offset:%d' % (vr(32 + 4 * w), L_OPART + 1024 * w))
            for w in range(8):
                e('s_waitcnt lgkmcnt(%d)' % (0 if self.cfg.diag == 1 else 7 - w))
                sel = 'op_sel:[0,1,0] op_sel_hi:[1,1,1]' if w & 1 else 'op_sel:[0,0,0] op_sel_hi:[1,0,1]'
                acc = 32 + 4 * (w & 1)
                for hh in (0, 2):
                    if w < 2:
                        e('v_pk_mul_f32 %s, %s, %s %s' % (vr(acc + hh, 2), vr(32 + 4 * w + hh, 2), vr(64 + (w & ~1), 2),
                                                         'op_sel:[0,1] op_sel_hi:[1,1]' if w & 1 else 'op_sel:[0,0] op_sel_hi:[1,0]'))
                    else:
                        e('v_pk_fma_f32 %s, %s, %s, %s %s' % (vr(acc + hh, 2), vr(32 + 4 * w + hh, 2), vr(64 + (w & ~1), 2),
                                                             vr(acc + hh, 2), sel))
            for hh in (0, 2):
                e('v_pk_add_f32 %s, %s, %s' % (vr(32 + hh, 2), vr(32 + hh, 2), vr(36 + hh, 2)))
            self.tag(32, vMASK)
            self.publish(24, 32)
            self.ts(7)

        op_publish()
        self.ts_store()
        e('s_endpgm')

        e.restore(snapC)
        e.label('L_c_wo')
        self.wo_ids()
        e('v_lshrrev_b32 v26, 2, v%d' % vL)
        e('v_and_b32 v27, 3, v%d' % vL)
        e('v_lshlrev_b32 v28, 4, v26')
        e('v_lshl_add_u32 v28, v27, 8, v28')
        if cfg.lay:
            e('s_lshl_b32 s59, s%d, 12' % sC)
            e('s_lshl_b32 s60, s%d, 8' % sGP)
            e('s_add_u32 s59, s59, s60')
            e('s_add_u32 s59, s59, 0x%x' % WS_HP)
            e('v_lshl_add_u32 v29, v26, 4, s59')
            e('s_lshr_b32 s59, s%d, 4' % sID)
            e('s_lshl_b32 s59, s59, 12')
            e('s_and_b32 s60, s%d, 15' % sID)
            e('s_lshl4_add_u32 s59, s60, s59')
            e('s_add_u32 s59, s59, 0x%x' % WS_HP)
            e('v_and_b32 v26, 15, v%d' % vL)
            e('v_lshl_add_u32 v26, v26, 8, s59')
            e('s_lshl_b32 s59, s%d, 4' % sID)
            e('s_add_u32 s59, s59, 0x%x' % WS_FP)
            e('v_mov_b32 v30, 2304')
            e('v_mad_u32_u24 v27, v%d, v30, s59' % vL)
            e('v_and_b32 v31, 7, v%d' % vL)
            e('s_add_u32 s59, s59, %d' % (64 * 2304 - 1024))
            e('v_mad_u32_u24 v30, v31, v30, s59')
        else:
            e('s_lshl_b32 s59, s%d, 12' % sC)
            e('s_lshr_b32 s60, s%d, 2' % sGP)
            e('s_lshl_b32 s60, s60, 10')
            e('s_add_u32 s59, s59, s60')
            e('s_and_b32 s60, s%d, 3' % sGP)
            e('s_lshl4_add_u32 s59, s60, s59')
            e('s_add_u32 s59, s59, 0x%x' % WS_HP)
            e('v_lshl_add_u32 v29, v26, 6, s59')
            e('s_lshr_b32 s59, s%d, 4' % sID)
            e('s_lshl_b32 s59, s59, 12')
            e('s_and_b32 s60, s%d, 15' % sID)
            e('s_lshl_b32 s60, s60, 6')
            e('s_add_u32 s59, s59, s60')
            e('s_add_u32 s59, s59, 0x%x' % WS_HP)
            e('v_and_b32 v26, 3, v26')
            e('v_lshlrev_b32 v26, 4, v26')
            e('v_lshl_add_u32 v26, v27, 10, v26')
            e('v_add_u32 v26, s59, v26')
            e('s_mul_i32 s59, s%d, 1152' % sID)
            e('s_add_u32 s59, s59, 0x%x' % WS_FP)
            e('v_add_u32 v27, s59, v25')
            e('v_and_b32 v30, 0x70, v25')
            e('v_add_u32 v30, s59, v30')
        e('v_lshlrev_b32 v%d, 16, v%d' % (vFX, vFX))
        e('v_lshlrev_b32 v%d, 16, v%d' % (vFB, vFB))
        op_publish()
        e('s_barrier')
        e('s_barrier')
        self.ts(8)
        for k in range(4):
            e('ds_read_b128 %s, v28 offset:%d' % (vr(40 + 4 * k), L_QPART + 1024 * k))
        e('s_waitcnt lgkmcnt(%d)' % (0 if self.cfg.diag else 2))
        for hh in (0, 2):
            e('v_pk_add_f32 %s, %s, %s' % (vr(40 + hh, 2), vr(40 + hh, 2), vr(44 + hh, 2)))
        e('s_waitcnt lgkmcnt(0)')
        for hh in (0, 2):
            e('v_pk_add_f32 %s, %s, %s' % (vr(48 + hh, 2), vr(48 + hh, 2), vr(52 + hh, 2)))
        for hh in (0, 2):
            e('v_pk_add_f32 %s, %s, %s' % (vr(40 + hh, 2), vr(40 + hh, 2), vr(48 + hh, 2)))
        for d in (X1, X2):
            for c in range(4):
                e('v_add_f32_dpp v%d, v%d, v%d %s' % (40 + c, 40 + c, 40 + c, d))
        self.tag(40, vMASK)
        e('s_mov_b32 s60, 0x11111111')
        e('s_mov_b32 s61, 0x11111111')
        e('s_mov_b64 exec, s[60:61]')
        e('global_store_dwordx4 v29, %s, %s sc1' % (vr(40), sr(sWS)))
        e('s_mov_b64 exec, -1')
        self.ts(9)
        if cfg.mpoll:
            self.poll('L_fh_poll', [('global_load_dwordx4 %s, v26, %s sc1' % (vr(48), sr(sWS)), 48, 'f24', 44)], 52)
        else:
            self.spin_begin('L_fh_poll')
            e('global_load_dwordx4 %s, v26, %s sc1' % (vr(48), sr(sWS)))
            e.wait_vm0()
            self.strip(48, 1, 52)
            self.spin_end('L_fh_poll', 52)
        self.ts(10)
        ident = 'quad_perm:[0,1,2,3] row_mask:0x%x bank_mask:0xf'
        e('v_mov_b32_dpp v48, v50 %s' % (ident % 2))
        e('v_mov_b32_dpp v48, v49 %s' % (ident % 4))
        e('v_mov_b32_dpp v48, v51 %s' % (ident % 8))
        for d in (X1, X2, ROR(8), ROR(4)):
            e('v_add_f32_dpp v48, v48, v48 %s' % d)
        e(self.rnd(48, 48))
        e('v_add_f32 v48, v48, v%d' % vFX)
        e(self.rnd(vFX, 48))
        if cfg.mpoll:
            self.poll('L_ff_poll', [('global_load_dwordx4 %s, v27, %s sc1' % (vr(48), sr(sWS)), 48, 'f24', 44),
                                    ('global_load_dwordx4 %s, v30, %s offset:1024 sc1' % (vr(52), sr(sWS)), 52, 'f24', 46)], 56)
        else:
            self.spin_begin('L_ff_poll')
            e('global_load_dwordx4 %s, v27, %s sc1' % (vr(48), sr(sWS)))
            e('global_load_dwordx4 %s, v30, %s offset:1024 sc1' % (vr(52), sr(sWS)))
            e.wait_vm0()
            self.strip(48, 2, 56)
            self.spin_end('L_ff_poll', 56)
        self.ts(11)
        e('s_mov_b32 exec_lo, 0xff')
        e('s_mov_b32 exec_hi, 0')
        for hh in (0, 2):
            e('v_pk_add_f32 %s, %s, %s' % (vr(48 + hh, 2), vr(48 + hh, 2), vr(52 + hh, 2)))
        e('s_mov_b64 exec, -1')
        e('v_permlane32_swap_b32 v48, v49')
        e('v_permlane32_swap_b32 v50, v51')
        e('v_add_f32 v48, v48, v49')
        e('v_add_f32 v50, v50, v51')
        e('v_permlane16_swap_b32 v48, v50')
        e('v_add_f32 v48, v48, v50')
        for d in (X1, X2, HM, MI):
            e('v_add_f32_dpp v48, v48, v48 %s' % d)
        e(self.rnd(48, 48))
        e('v_add_f32 v48, v48, v%d' % vFB)
        e(self.rnd(48, 48))
        e('v_add_f32 v48, v48, v%d' % vFX)
        e('v_cvt_pk_bf16_f32 v48, v48, v48')
        if cfg.diag == 3 and cfg.thr:
            e('s_memrealtime s[60:61]')
            e('s_waitcnt lgkmcnt(0)')
            e('s_sub_u32 s60, s60, s%d' % sTS)
            e('s_cmp_gt_u32 s60, %d' % cfg.thr)
            e('s_cselect_b32 s60, 0x7fc0, 0')
            e('v_or_b32 v48, s60, v48')
        e('s_mov_b32 s60, 0x00010001')
        e('s_mov_b32 s61, 0x00010001')
        e('s_mov_b64 exec, s[60:61]')
        e('global_store_short v19, v48, %s' % sr(sOUT))
        e('s_cmp_lg_u32 s%d, 0' % sID)
        e('s_cbranch_scc1 L_c_wo_done')
        e('s_mov_b64 exec, 1')
        e('v_mov_b32 v49, 0')
        e('v_mov_b32 v50, s%d' % sT)
        e('global_store_dword v49, v50, %s sc1' % sr(sWS))
        if cfg.diag == 3:
            e('s_memrealtime s[60:61]')
            e('s_waitcnt lgkmcnt(0)')
            e('s_sub_u32 s60, s60, s%d' % sTS)
            e('v_mov_b32 v50, s60')
            e('global_store_dword v49, v50, %s' % sr(sDBG))
        e.label('L_c_wo_done')
        e('s_mov_b64 exec, -1')
        self.ts(12)
        self.ts_store()
        e('s_endpgm')

        e.restore(snapC)
        e.label('L_c_mlp')
        self.mlp_setup()
        self.L = self.mlp_loads()
        self.iss = 0
        self.issue_to(cfg.mpre)
        op_publish()

        e.label('L_mlp_w')
        e.restore(([], [it[2] for it in self.L[:cfg.mpre]]))
        e('s_barrier')
        if not cfg.wlate:
            self.issue_to(cfg.winm2)
        for i in range(0 if cfg.wlate else 16):
            if self.iss >= 16:
                break
            self.pace(i, cfg.winm2)
            if i == 7:
                self.ts(15)
        self.ts(13)
        if cfg.diag == 1:
            e.wait_vm0()
            self.ts(14)
        vP = vVt
        if cfg.mpoll:
            self.poll('L_hp_poll', [('global_load_dwordx4 %s, v%d, %s offset:%d sc1' % (vr(vP + 4 * u), vHPA, sr(sWS), 1024 * u),
                                     vP + 4 * u, 'f24', [50, 14, 60, 62][u]) for u in range(4)], vT)
        else:
            self.spin_begin('L_hp_poll')
            for u in range(4):
                e('global_load_dwordx4 %s, v%d, %s offset:%d sc1' % (vr(vP + 4 * u), vHPA, sr(sWS), 1024 * u))
            e.wait_vm0()
            self.strip(vP, 4, vT)
            self.spin_end('L_hp_poll', vT)
        self.ts(8)
        if cfg.wlate:
            self.issue_to(16)
            e.wait_vm0()
        e('v_and_b32 v%d, 0xffff0000, v%d' % (vHX + 1, vHX))
        e('v_lshlrev_b32 v%d, 16, v%d' % (vHX, vHX))
        for hh in (0, 2):
            e('v_pk_add_f32 %s, %s, %s' % (vr(vP + hh, 2), vr(vP + hh, 2), vr(vP + 4 + hh, 2)))
            e('v_pk_add_f32 %s, %s, %s' % (vr(vP + 8 + hh, 2), vr(vP + 8 + hh, 2), vr(vP + 12 + hh, 2)))
        for hh in (0, 2):
            e('v_pk_add_f32 %s, %s, %s' % (vr(vP + hh, 2), vr(vP + hh, 2), vr(vP + 8 + hh, 2)))
        for c in range(4):
            e('v_add_f32_dpp v%d, v%d, v%d %s' % (vP + c, vP + c, vP + c, X2))
        e('v_cndmask_b32 v%d, v%d, v%d, %s' % (vP, vP, vP + 2, sr(sBIT1)))
        e('v_cndmask_b32 v%d, v%d, v%d, %s' % (vP + 1, vP + 1, vP + 3, sr(sBIT1)))
        y0, y1 = vP, vP + 1
        e('v_add_f32_dpp v%d, v%d, v%d %s' % (y0, y0, y0, X1))
        e('v_add_f32_dpp v%d, v%d, v%d %s' % (y1, y1, y1, X1))
        e(self.rnd(y0, y0))
        e(self.rnd(y1, y1))
        e('v_add_f32 v%d, v%d, v%d' % (y0, y0, vHX))
        e('v_add_f32 v%d, v%d, v%d' % (y1, y1, vHX + 1))
        for ln, lst in ((0, L_ST1), (1, L_ST2)):
            e(self.rnd(y0, y0))
            e(self.rnd(y1, y1))
            z, z2 = vP + 2, vP + 3
            e('v_add_f32 v%d, v%d, v%d' % (z, y0, y1))
            e('v_mul_f32 v%d, v%d, v%d' % (z2, y0, y0))
            e('v_fmac_f32 v%d, v%d, v%d' % (z2, y1, y1))
            e('v_cndmask_b32 v%d, v%d, v%d, %s' % (z, z, z2, sr(sBIT0)))
            for d in (X2, ROR(4), ROR(8)):
                e('v_add_f32_dpp v%d, v%d, v%d %s' % (z, z, z, d))
            e('s_mov_b64 exec, %s' % sr(sL2))
            e('ds_write_b32 v%d, v%d offset:%d' % (vSTW, z, lst))
            e('s_mov_b64 exec, -1')
            self.barrier()
            e('ds_read_b128 %s, v%d offset:%d' % (vr(vP + 4), vSTR, lst))
            e('ds_read_b128 %s, v%d offset:%d' % (vr(vP + 8), vSTR, lst + 16))
            e('s_waitcnt lgkmcnt(0)')
            e('v_pk_add_f32 %s, %s, %s' % (vr(vP + 4, 2), vr(vP + 4, 2), vr(vP + 8, 2)))
            e('v_pk_add_f32 %s, %s, %s' % (vr(vP + 6, 2), vr(vP + 6, 2), vr(vP + 10, 2)))
            e('v_pk_add_f32 %s, %s, %s' % (vr(vP + 4, 2), vr(vP + 4, 2), vr(vP + 6, 2)))
            e('v_add_f32 v%d, v%d, v%d' % (z, vP + 4, vP + 5))
            for d in (X2, ROR(4), ROR(8)):
                e('v_add_f32_dpp v%d, v%d, v%d %s' % (z, z, z, d))
            e('v_mov_b32_dpp v%d, v%d quad_perm:[1,1,3,3] %s' % (z2, z, DPP))
            e('v_mov_b32_dpp v%d, v%d quad_perm:[0,0,2,2] %s' % (z, z, DPP))
            m, sd, r, t = vP + 4, vP + 5, vP + 6, vP + 7
            for x in self.ln_scalars('v%d' % z, 'v%d' % z2, vINVM, m, sd, r, t):
                e(x)
            self.weave(self.ln_apply(y0, m, sd, r, vP + 8), self.ln_apply(y1, m, sd, r, vP + 9))
        e('v_cvt_pk_bf16_f32 v%d, v%d, v%d' % (y0, y0, y0))
        e('v_cvt_pk_bf16_f32 v%d, v%d, v%d' % (y1, y1, y1))
        self.ts(9)
        self.gemv8(y0, y1, vW1)
        e('s_mov_b64 exec, %s' % sr(sVALID))
        e('ds_write_b128 v%d, %s offset:%d' % (vDQ, vr(vD), L_QPART))
        e('s_mov_b64 exec, -1')
        self.barrier()
        self.ts(10)
        e('s_cmp_lg_u32 s%d, 8' % sW)
        e('s_cbranch_scc1 L_mlp3')
        snapG = e.snap()
        e('v_lshlrev_b32 v157, 2, v%d' % vL)
        for i in range(9):
            e('ds_read2st64_b32 %s, v157 offset0:%d offset1:%d' % (vr(vP + 2 * i, 2), 2 * i, 2 * i + 1))
        e('v_lshlrev_b32 v%d, 16, v%d' % (vB1, vB1))
        c1 = -2.0 * LOG2E * 0.7978845608028654
        e('v_mov_b32 v158, %s' % f32(c1 * 0.044715))
        e('s_waitcnt lgkmcnt(0)')
        regs = [vP + 2 * i for i in range(9)]
        while len(regs) > 1:
            nxt = []
            for i in range(0, len(regs) - 1, 2):
                e('v_pk_add_f32 %s, %s, %s' % (vr(regs[i], 2), vr(regs[i], 2), vr(regs[i + 1], 2)))
                nxt.append(regs[i])
            if len(regs) & 1:
                nxt.append(regs[-1])
            regs = nxt
        u = vP
        e('v_add_f32 v%d, v%d, v%d' % (u, vP, vP + 1))
        e(self.rnd(u, u))
        e('v_add_f32 v%d, v%d, v%d' % (u, u, vB1))
        e(self.rnd(u, u))
        e('v_mul_f32 v%d, v%d, v%d' % (u + 1, u, u))
        e('v_fmaak_f32 v%d, v%d, v158, %s' % (u + 1, u + 1, f32(c1)))
        e('v_mul_f32 v%d, v%d, v%d' % (u + 1, u + 1, u))
        e('v_exp_f32 v%d, v%d' % (u + 1, u + 1))
        e('v_add_f32 v%d, 1.0, v%d' % (u + 1, u + 1))
        e('v_rcp_f32 v%d, v%d' % (u + 1, u + 1))
        e('v_mul_f32 v%d, v%d, v%d' % (u, u, u + 1))
        e('v_cvt_pk_bf16_f32 v%d, v%d, v%d' % (u, u, u))
        e('ds_write_b32 v157, v%d offset:%d' % (u, L_H1))
        e('s_waitcnt lgkmcnt(0)')
        e.label('L_mlp3')
        e('s_barrier')
        e('ds_read_b64 %s, v%d offset:%d' % (vr(vP, 2), vH1A, L_H1))
        self.ts(11)
        e('v_mov_b32 v%d, 0xffffff00' % (vP + 8))
        e('s_waitcnt lgkmcnt(0)')
        self.gemv8(vP, vP + 1, vW2)
        for c in range(4):
            e('v_permlane32_swap_b32 v%d, v%d' % (vD + c, vP + 4 + c))
        for c in range(4):
            e('v_add_f32_dpp v%d, v%d, v%d %s' % (vD + c, vP + 4 + c, vD + c, ROR(8)))
        self.tag(vD, vP + 8)
        e('s_mov_b32 exec_lo, 0x00ff00ff')
        e('s_mov_b32 exec_hi, 0')
        e('global_store_dwordx4 v%d, %s, %s sc1' % (vFPA, vr(vD), sr(sWS)))
        e('s_mov_b64 exec, -1')
        self.ts(12)
        self.ts_store()
        e.label('L_end')
        e('s_endpgm')

        e.raw('.section .rodata,"a"')
        e.raw('.p2align 6')
        e.raw('.amdhsa_kernel %s' % K)
        e.raw('  .amdhsa_next_free_vgpr 168')
        e.raw('  .amdhsa_next_free_sgpr 102')
        e.raw('  .amdhsa_accum_offset 168')
        e.raw('  .amdhsa_group_segment_fixed_size 0')
        e.raw('  .amdhsa_kernarg_size 104')
        e.raw('  .amdhsa_user_sgpr_count 2')
        e.raw('  .amdhsa_user_sgpr_kernarg_segment_ptr 1')
        e.raw('  .amdhsa_system_sgpr_workgroup_id_x 1')
        e.raw('.end_amdhsa_kernel')
        return e.text()

    def wo_ids(self):
        e = self.e
        e('s_mul_i32 s%d, s%d, 18' % (sID, sXCD))
        e('s_add_u32 s%d, s%d, s%d' % (sID, sID, sIDX))
        e('s_cmp_ge_u32 s%d, 9' % sIDX)
        e('s_cselect_b32 s59, 1, 0')
        e('s_lshl1_add_u32 s%d, s%d, s59' % (sGP, sXCD))
        e('s_mul_i32 s59, s59, 9')
        e('s_sub_u32 s%d, s%d, s59' % (sC, sIDX))

    def mlp_setup(self):
        e = self.e
        e('s_mul_i32 s%d, s%d, 9' % (sID, sXCD))
        e('s_add_u32 s%d, s%d, s%d' % (sID, sID, sIDX))
        e('s_sub_u32 s%d, s%d, 18' % (sID, sID))
        rho, c16 = vMA, vMA + 1
        e('v_lshrrev_b32 v%d, 3, v%d' % (rho, vL))
        e('v_and_b32 v%d, 0x70, v%d' % (c16, vKV))
        e('v_mov_b32 v%d, %d' % (vW1O, 8 * 9216))
        e('v_mov_b32 v%d, %d' % (vW2O, 8 * 1152))
        e('v_mad_u32_u24 v%d, v%d, v%d, v%d' % (vW1O, rho, vW1O, c16))
        e('v_mad_u32_u24 v%d, v%d, v%d, v%d' % (vW2O, rho, vW2O, c16))
        e('s_mul_i32 s59, s%d, %d' % (sW, 64 * 9216))
        e('s_lshl_b32 s60, s%d, 7' % sID)
        e('s_add_u32 s59, s59, s60')
        self.add64(sA, sW1, 's59')
        e('s_mul_i32 s59, s%d, %d' % (sID, 64 * 1152))
        e('s_lshl_b32 s60, s%d, 7' % sW)
        e('s_add_u32 s59, s59, s60')
        e('s_add_u32 s59, s59, 4032')
        self.add64(sB, sW2, 's59')
        e('v_lshrrev_b32 v%d, 1, v%d' % (vH1A, vL))
        e('v_lshl_add_u32 v%d, v%d, 2, s60' % (vHX + 1, vH1A))
        e('global_load_dword v%d, v%d, %s' % (vHX, vHX + 1, sr(sX)), 'HX')
        e('v_lshlrev_b32 v%d, 3, v%d' % (vH1A, vH1A))
        e('s_lshl_b32 s59, s%d, 12' % sW)
        e('s_add_u32 s59, s59, 0x%x' % WS_HP)
        if self.cfg.lay:
            e('v_lshrrev_b32 v%d, 2, v%d' % (vSTW, vL))
            e('v_lshl_add_u32 v%d, v%d, 4, s59' % (vHPA, vSTW))
            e('v_and_b32 v%d, 3, v%d' % (vSTW, vL))
            e('v_lshl_add_u32 v%d, v%d, 8, v%d' % (vHPA, vSTW, vHPA))
        else:
            e('v_lshl_add_u32 v%d, v%d, 4, s59' % (vHPA, vL))
        e('v_and_b32 v%d, 1, v%d' % (vSTW, vL))
        e('v_lshlrev_b32 v%d, 8, v%d' % (vSTW, vSTW))
        e('v_bfe_u32 v%d, v%d, 1, 3' % (vSTR, vL))
        e('v_lshl_add_u32 v%d, v%d, 5, v%d' % (vSTR, vSTR, vSTW))
        e('v_lshrrev_b32 v%d, 4, v%d' % (rho, vL))
        e('v_lshl_add_u32 v%d, v%d, 2, v%d' % (vSTW, rho, vSTW))
        e('s_lshl_b32 s59, s%d, 4' % sW)
        e('v_add_u32 v%d, s59, v%d' % (vSTW, vSTW))
        e('v_and_b32 v%d, 1, v%d' % (rho, rho))
        e('v_lshrrev_b32 v%d, 3, v%d' % (c16, c16))
        e('v_add_u32 v%d, v%d, v%d' % (rho, rho, c16))
        if self.cfg.lay:
            e('s_mul_i32 s59, s%d, 2304' % sID)
            e('s_lshl_b32 s60, s%d, 8' % sW)
            e('s_add_u32 s59, s59, s60')
            e('s_add_u32 s59, s59, 0x%x' % WS_FP)
            e('v_lshl_add_u32 v%d, v%d, 4, s59' % (vFPA, rho))
        else:
            e('s_mul_i32 s59, s%d, %d' % (sW, 16 * 1152))
            e('s_lshl4_add_u32 s59, s%d, s59' % sID)
            e('s_add_u32 s59, s59, 0x%x' % WS_FP)
            e('v_mov_b32 v%d, 1152' % vFPA)
            e('v_mad_u32_u24 v%d, v%d, v%d, s59' % (vFPA, rho, vFPA))
        e('v_mov_b32 v%d, %s' % (vINVM, f32(1.0 / 576)))
        e('s_mov_b32 s%d, 0xaaaaaaaa' % sBIT0)
        e('s_mov_b32 s%d, 0xaaaaaaaa' % (sBIT0 + 1))
        e('s_mov_b32 s%d, 0xcccccccc' % sBIT1)
        e('s_mov_b32 s%d, 0xcccccccc' % (sBIT1 + 1))
        e('s_mov_b32 s%d, 0x00030003' % sL2)
        e('s_mov_b32 s%d, 0x00030003' % (sL2 + 1))

    def mlp_loads(self):
        out = []
        for jj in range(8):
            it = ('load', 'global_load_dwordx4 %s, v%d, %s nt' % (vr(vW1 + 4 * jj), vW1O, sr(sA)), 'A%d' % jj)
            if jj < 7:
                it += ('s_add_u32 s%d, s%d, 9216' % (sA, sA), 's_addc_u32 s%d, s%d, 0' % (sA + 1, sA + 1))
            out.append(it)
        for jj in range(8):
            out.append(('load', 'global_load_dwordx4 %s, v%d, %s offset:%d nt' % (vr(vW2 + 4 * jj), vW2O, sr(sB), 1152 * jj - 4032), 'B%d' % jj))
        if self.cfg.w2first:
            out = out[8:] + out[:8]
        return out


vW1O, vW2O, vHPA, vSTW, vSTR, vFPA, vH1A, vINVM = 144, 145, 146, 147, 148, 149, 150, 151
vHX = 152
vMA = 154
sBIT0, sBIT1, sL2 = 44, 46, 48


def immediate_unknown(e):
    return ([], [])


def main():
    ap = argparse.ArgumentParser()
    ap.add_argument('-o', default='k.s')
    ap.add_argument('--diag', type=int, default=0)
    ap.add_argument('--thr', type=int, default=0)
    ap.add_argument('--spin', type=int, default=0x2000)
    ap.add_argument('--nka', type=int, default=3)
    ap.add_argument('--win', type=int, default=3)
    ap.add_argument('--nb2', type=int, default=8)
    ap.add_argument('--vq', type=str, default='')
    ap.add_argument('--b2all', type=int, default=1)
    ap.add_argument('--vm', type=int, default=0)
    ap.add_argument('--winw', type=int, default=0)
    ap.add_argument('--mpre', type=int, default=0)
    ap.add_argument('--winm2', type=int, default=6)
    ap.add_argument('--kvmode', type=int, default=0)
    ap.add_argument('--wlate', type=int, default=0)
    ap.add_argument('--kvhint', type=str, default='nt')
    ap.add_argument('--w2first', type=int, default=0)
    ap.add_argument('--rorsign', type=int, default=1)
    ap.add_argument('--lay', type=int, default=1)
    ap.add_argument('--fast', type=int, default=1)
    ap.add_argument('--touch', type=int, default=1)
    ap.add_argument('--early', type=int, default=1)
    ap.add_argument('--nfb', type=int, default=64)
    ap.add_argument('--mpoll', type=int, default=1)
    cfg = ap.parse_args()
    cfg.vq = [int(x) for x in cfg.vq.split(',') if x != '']
    g = Gen(cfg)
    txt = g.build()
    open(cfg.o, 'w').write(txt)
    print('wrote', cfg.o, 'instructions', g.e.nins)


if __name__ == '__main__':
    main()
```

```python
import sys, struct, argparse
sys.path.insert(0, 'dev')
from emit import Em, Ins, need

NAME = 'sequential_preLN__sliding_block_cached__mixer_channel_mlp__decode'


def f32(x):
    return '0x%08x' % struct.unpack('<I', struct.pack('<f', x))[0]


WS_QP = 0x10000
WS_ML = 0x30000
WS_OP = 0x40000
WS_HP = 0x80000
WS_FP = 0x90000
WS_TS = 0x100000
WS_DELTA = 0x200000

L_QPART = 0x0000
L_QL = 0x1200
L_LP = 0x1400
L_F = 0x1600
L_ST1 = 0x1700
L_ST2 = 0x1900
L_OPART = 0x2000
LDS_SIZE = 0x4000

LOG2E = 1.4426950408889634
SCALE = 128 ** -0.5

DPP = 'row_mask:0xf bank_mask:0xf'
X1 = 'quad_perm:[1,0,3,2] ' + DPP
X2 = 'quad_perm:[2,3,0,1] ' + DPP
HM = 'row_half_mirror ' + DPP
MI = 'row_mirror ' + DPP


def ROR(n, bank=0xf):
    return 'row_ror:%d row_mask:0xf bank_mask:0x%x' % (n, bank)


def vr(a, n=4):
    return 'v[%d:%d]' % (a, a + n - 1)


def sr(a, n=2):
    return 's[%d:%d]' % (a, a + n - 1)


sX, sK, sV, sWQ, sWO, sW1, sB1, sW2, sB2, sOUT, sDBG, sWS = 4, 6, 8, 10, 12, 16, 18, 20, 22, 24, 26, 28
sW = 3
sT = 30
sT0 = 31
sLOG2E = 35
sONES = 36
sG, sS, sIDX, sXCD, sID = 39, 40, 41, 42, 43
sKB, sVB, sQ0, sQ1 = 44, 46, 48, 50
sA, sB = 52, 54
sVALID = 56
sSPIN = 58
sTS = 64
sL8 = 98
sWS2 = 100
sPB = 0
sBIT0, sBIT1, sL2, sM1 = 48, 50, 14, 96

vL = 1
vM = 2
vKV = 6
vDQ = 7
vD = 8
vT = 12
vKt = 16
vVt = 48
vW1 = 80
vWQ = 112
vQO, vQX = 144, 148
vSC = 152
vU = 160
vWO, vP0, vMLA = 112, 113, 114
(vW1O, vW2O, vHPA, vSTW, vSTR, vFPA, vM1W, vM1R, vINVM, vB1, vFF0, vFF1, vFF2, vOUT, vFB, vGC) = range(112, 128)
vHX = 128
vH = 130
vMA = 132
vMASKM = 136

NWO, NML = 9, 18


class Gen:
    def __init__(self, cfg):
        self.cfg = cfg
        self.e = Em()

    def ts(self, k):
        if self.cfg.diag == 1:
            self.e('s_memrealtime %s' % sr(sTS + 2 * k))

    def ts_store(self, nslots=16):
        e = self.e
        if self.cfg.diag != 1:
            return
        e('s_waitcnt lgkmcnt(0)')
        e('s_mul_i32 s59, s2, 9')
        e('s_add_u32 s59, s59, s%d' % sW)
        e('s_lshl_b32 s59, s59, 7')
        e('s_add_u32 s59, s59, 0x%x' % WS_TS)
        e('s_mov_b64 exec, 1')
        e('v_mov_b32 v0, s59')
        for k in range(0, nslots, 4):
            for j in range(4):
                e('v_mov_b32 v%d, s%d' % (vU + j, sTS + 2 * (k + j)))
            e('global_store_dwordx4 v0, %s, %s offset:%d' % (vr(vU), sr(sWS), 4 * k))
            e('s_nop 1')
        e('s_mov_b64 exec, -1')

    def pad_needed(self, text):
        ins = Ins(text)
        dist = 0
        pad = 0
        for p in reversed(self.e.hist):
            n = need(p, ins)
            if n > dist:
                pad = max(pad, n - dist)
            dist += p.ws
            if dist >= 12:
                break
        return pad

    def emit_item(self, it):
        if isinstance(it, str):
            self.e(it)
        elif it[0] == 'wait':
            self.e.wait_vm(it[1])
        elif it[0] == 'issue':
            self.issue_to(it[1])

    def weave(self, *streams):
        streams = [list(s) for s in streams if s]
        while any(streams):
            best = None
            for k, s in enumerate(streams):
                if not s:
                    continue
                it = s[0]
                p = self.pad_needed(it) if isinstance(it, str) else 0
                if best is None or p < best[0]:
                    best = (p, k)
                if p == 0:
                    break
            self.emit_item(streams[best[1]].pop(0))

    def issue_to(self, n):
        while self.iss < min(n, len(self.L)):
            it = self.L[self.iss]
            self.e(it[1], it[2])
            for x in it[3:]:
                self.e(x)
            self.iss += 1

    def pace(self, i, win):
        self.e.wait_vm(self.L[i][2])
        self.issue_to(i + 1 + win)

    def barrier(self):
        self.e('s_waitcnt lgkmcnt(0)')
        self.e('s_barrier')

    def add64(self, dst, base, off):
        self.e('s_add_u32 s%d, s%d, %s' % (dst, base, off))
        self.e('s_addc_u32 s%d, s%d, 0' % (dst + 1, base + 1))

    def mask64(self, s, lo, hi=None):
        self.e('s_mov_b32 s%d, 0x%08x' % (s, lo))
        self.e('s_mov_b32 s%d, 0x%08x' % (s + 1, lo if hi is None else hi))

    def rnd(self, d, s):
        return 'v_cvt_pk_bf16_f32 v%d, 0, v%d' % (d, s)

    def ln_scalars(self, S, Q, inv, m, sd, r, t):
        return [
            'v_mul_f32 v%d, %s, v%d' % (m, S, inv),
            'v_mul_f32 v%d, %s, v%d' % (t, Q, inv),
            'v_fma_f32 v%d, -v%d, v%d, v%d' % (t, m, m, t),
            self.rnd(m, m),
            self.rnd(t, t),
            'v_add_f32 v%d, %s, v%d' % (t, f32(1e-5), t),
            self.rnd(t, t),
            'v_sqrt_f32 v%d, v%d' % (sd, t),
            self.rnd(sd, sd),
            'v_rcp_f32 v%d, v%d' % (r, sd),
        ]

    def ln_apply(self, x, m, sd, r, t, refine=True):
        out = ['v_sub_f32 v%d, v%d, v%d' % (x, x, m), self.rnd(x, x)]
        if refine:
            out += ['v_mul_f32 v%d, v%d, v%d' % (t, x, r),
                    'v_fma_f32 v%d, -v%d, v%d, v%d' % (x, t, sd, x),
                    'v_fma_f32 v%d, v%d, v%d, v%d' % (x, x, r, t)]
        else:
            out += ['v_mul_f32 v%d, v%d, v%d' % (x, x, r)]
        return out

    def poll(self, name, items, acc, first_issued=False, fb=False):
        e = self.e
        for it in items:
            e('s_mov_b64 %s, %s' % (sr(it[3]), it[4] if len(it) > 4 else '-1'))
        e('s_movk_i32 s%d, 0x%x' % (sSPIN, self.cfg.spin))
        if first_issued:
            e('s_branch %s_w' % name)
        e.label(name)
        for it in items:
            e('s_mov_b64 exec, %s' % sr(it[3]))
            e(it[0])
        e.label(name + '_w')
        n = len(items)
        for k, it in enumerate(items):
            e('s_waitcnt vmcnt(%d)' % (n - 1 - k))
            e('s_mov_b64 exec, %s' % sr(it[3]))
            if it[2] == 'f24':
                self.strip(it[1], acc)
                e('v_and_b32 v%d, 0xff, v%d' % (acc, acc))
                e('v_cmp_ne_u32 %s, 0, v%d' % (sr(it[3]), acc))
            else:
                e('v_cmp_ne_u32 %s, s%d, v%d' % (sr(it[3]), sT, it[1] + 2))
        e.vm = []
        if n == 1:
            e('s_cmp_lg_u64 %s, 0' % sr(items[0][3]))
        else:
            e('s_or_b64 vcc, %s, %s' % (sr(items[0][3]), sr(items[1][3])))
            for it in items[2:]:
                e('s_or_b64 vcc, vcc, %s' % sr(it[3]))
        e('s_cbranch_scc0 %s_x' % name)
        e('s_sub_u32 s%d, s%d, 1' % (sSPIN, sSPIN))
        if fb:
            e('s_cbranch_scc1 %s_x' % name)
            e('s_cmp_lg_u32 s%d, 0x%x' % (sSPIN, self.cfg.spin - self.cfg.nfb))
            e('s_cbranch_scc1 %s' % name)
            e('s_mov_b64 %s, %s' % (sr(sPB), sr(sWS2)))
            e('s_branch %s' % name)
        else:
            e('s_cbranch_scc0 %s' % name)
        e.label(name + '_x')
        e('s_mov_b64 exec, -1')

    def strip(self, base, acc):
        e = self.e
        for i in range(4):
            e('v_xor_b32 v%d, s%d, v%d' % (base + i, sT0 + i, base + i))
        e('v_or3_b32 v%d, v%d, v%d, v%d' % (acc, base, base + 1, base + 2))
        e('v_or_b32 v%d, v%d, v%d' % (acc, acc, base + 3))

    def publish(self, addr, data):
        e = self.e
        e('global_store_dwordx4 v%d, %s, %s' % (addr, vr(data), sr(sWS)))
        e('global_store_dwordx4 v%d, %s, %s sc1' % (addr, vr(data), sr(sWS2)))

    def tag(self, base, vmask):
        for i in range(4):
            self.e('v_and_or_b32 v%d, v%d, v%d, s%d' % (base + i, base + i, vmask, sT0 + i))

    def a_ops_plain(self, dst, src):
        return ['v_and_b32 v%d, v%d, v%d' % (dst + p, src, vM + p) for p in range(4)]

    def a_ops_rot(self, dst, src, j):
        out = []
        for p in range(4):
            n = (2 * (p - j)) % 16
            if n == 0:
                out.append('v_and_b32 v%d, v%d, v%d' % (dst + p, src, vM + p))
            else:
                out.append('v_and_b32_dpp v%d, v%d, v%d %s' % (dst + p, src, vM + p, ROR(n)))
        return out

    def mfma(self, d, a, b, first):
        return 'v_mfma_f32_16x16x32_bf16 %s, %s, %s, %s' % (vr(d), vr(a), vr(b), '0' if first else vr(d))

    def chain(self, A, M):
        e = self.e
        for x in A[0]:
            e(x)
        for j in range(len(M)):
            if j + 1 < len(M):
                for x in A[j + 1]:
                    e(x)
            e(M[j])

    def kvload(self, dst, base, t, tok):
        return ('load', 'global_load_dwordx4 %s, v%d, %s offset:%d nt' % (vr(dst), vKV, sr(base), 256 * t), tok)

    def attention(self, nb2, win, upto):
        e = self.e
        vQA, vLPA = vU, vU + 2
        e('v_and_b32 v%d, 8, v%d' % (vU + 1, vL))
        e('v_lshlrev_b32 v%d, 5, v%d' % (vQA, vU + 1))
        e('v_and_b32 v%d, 0xf0, v%d' % (vU + 3, vKV))
        e('v_lshrrev_b32 v%d, 4, v%d' % (vU + 4, vL))
        e('v_lshl_add_u32 v%d, v%d, 3, v%d' % (vLPA, vU + 4, vQA))
        e('v_add_u32 v%d, v%d, v%d' % (vQA, vQA, vU + 3))
        e('v_xor_b32 v%d, 0x100, v%d' % (vU + 3, vQA))
        e('s_lshl_b32 s59, s%d, 5' % sW)
        e('v_add_u32 v%d, s59, v%d' % (vLPA, vLPA))
        vSCL = vU + 4
        e('v_mov_b32 v%d, %s' % (vSCL, f32(SCALE)))
        self.vOPA = vU + 1
        e('s_lshl_b32 s59, s%d, 10' % sW)
        e('v_lshl_add_u32 v%d, v%d, 4, s59' % (self.vOPA, vL))
        for i in range(nb2):
            self.pace(i, win)
        self.ts(3)
        e('s_barrier')
        e('ds_read_b128 %s, v%d offset:%d' % (vr(vQO), vQA, L_QL))
        e('ds_read_b128 %s, v%d offset:%d' % (vr(vQX), vU + 3, L_QL))
        self.issue_to(upto)
        self.ts(4)
        e('s_waitcnt lgkmcnt(0)')
        prevR = []
        for t in range(8):
            a, b = vSC + t, (vT + (t & 1))
            D = [('wait', 'K%d' % t)]
            for k in range(4):
                D.append('v_dot2_f32_bf16 v%d, v%d, v%d, %s' % (a, vKt + 4 * t + k, vQO + k, '0' if k == 0 else 'v%d' % a))
                D.append('v_dot2_f32_bf16 v%d, v%d, v%d, %s' % (b, vKt + 4 * t + k, vQX + k, '0' if k == 0 else 'v%d' % b))
            self.weave(prevR, D)
            prevR = [
                'v_add_f32_dpp v%d, v%d, v%d %s' % (a, b, a, ROR(8)),
                'v_add_f32_dpp v%d, v%d, v%d %s' % (a, a, a, X1),
                'v_add_f32_dpp v%d, v%d, v%d %s' % (a, a, a, X2),
                'v_add_f32_dpp v%d, v%d, v%d %s' % (a, a, a, HM),
                self.rnd(a, a),
                'v_mul_f32 v%d, v%d, v%d' % (a, a, vSCL),
                self.rnd(a, a),
            ]
        mx = vT + 2
        pre = ['v_max3_f32 v%d, v%d, v%d, v%d' % (mx, vSC, vSC + 1, vSC + 2),
               'v_max3_f32 v%d, v%d, v%d, v%d' % (mx, mx, vSC + 3, vSC + 4),
               'v_max3_f32 v%d, v%d, v%d, v%d' % (mx, mx, vSC + 5, vSC + 6)]
        self.weave(prevR, pre)
        e('v_max_f32 v%d, v%d, v%d' % (mx, mx, vSC + 7))
        e('v_mov_b32 v%d, v%d' % (vT, mx))
        e('v_permlane32_swap_b32 v%d, v%d' % (vT, mx))
        e('v_max_f32 v%d, v%d, v%d' % (mx, mx, vT))
        e('v_mov_b32 v%d, v%d' % (vT, mx))
        e('v_permlane16_swap_b32 v%d, v%d' % (vT, mx))
        e('v_max_f32 v%d, v%d, v%d' % (mx, mx, vT))
        self.ts(5)
        e('v_mul_f32 v%d, s%d, v%d' % (vT, sLOG2E, mx))
        for t in range(8):
            e('v_fma_f32 v%d, v%d, s%d, -v%d' % (vSC + t, vSC + t, sLOG2E, vT))
        for t in range(8):
            e('v_exp_f32 v%d, v%d' % (vSC + t, vSC + t))
        ls = vT + 3
        e('v_add_f32 v%d, v%d, v%d' % (vT, vSC, vSC + 1))
        e('v_add_f32 v%d, v%d, v%d' % (vT + 1, vSC + 2, vSC + 3))
        e('v_add_f32 v%d, v%d, v%d' % (ls, vSC + 4, vSC + 5))
        e('v_add_f32 v%d, v%d, v%d' % (vT, vT, vSC + 6))
        e('v_add_f32 v%d, v%d, v%d' % (vT + 1, vT + 1, vSC + 7))
        e('v_add_f32 v%d, v%d, v%d' % (ls, ls, vT))
        e('v_add_f32 v%d, v%d, v%d' % (ls, ls, vT + 1))
        e('s_mov_b64 exec, %s' % sr(sL8))
        e('ds_write_b64 v%d, %s offset:%d' % (vLPA, vr(mx, 2), L_LP))
        e('s_mov_b64 exec, -1')
        for t in range(8):
            e('v_cvt_pk_bf16_f32 v%d, v%d, v%d' % (vSC + t, vSC + t, vSC + t))
        for t in range(8):
            for x in self.a_ops_plain(vKt + 4 * t, vSC + t):
                e(x)
        self.issue_to(16)
        self.ts(6)

    def pv(self, win):
        e = self.e
        for t in range(8):
            e.wait_vm('V%d' % t)
            e(self.mfma(vD, vKt + 4 * t, vVt + 4 * t, t == 0))
            self.issue_to(8 + t + 1 + win)
        e('ds_write_b128 v%d, %s offset:%d' % (self.vOPA, vr(vD), L_OPART))
        self.ts(7)
        self.barrier()

    def build(self):
        e = self.e
        cfg = self.cfg
        K = NAME + '_kernel'
        e.raw('; @launch grid=(256,1,1) block=(576,1,1) lds=%d' % LDS_SIZE)
        e.raw('.amdgcn_target "amdgcn-amd-amdhsa--gfx950"')
        e.raw('.text')
        e.raw('.globl %s' % K)
        e.raw('.p2align 8')
        e.raw('.type %s,@function' % K)
        e.label(K)
        e('s_cmp_ge_u32 s2, 0x100')
        e('s_cbranch_scc1 L_end')
        e('s_load_dwordx16 s[4:19], s[0:1], 0')
        e('s_load_dwordx8 s[20:27], s[0:1], 64')
        e('s_load_dwordx2 s[28:29], s[0:1], 96')
        self.ts(0)
        e('s_getpc_b64 s[60:61]')
        e.label('L_pc')
        e('v_lshlrev_b32 v12, 7, v0')
        e('v_min_u32 v12, L_end-L_pc, v12')
        e('v_mov_b32 v14, s60')
        e('v_mov_b32 v15, s61')
        e('v_add_co_u32 v14, vcc, v14, v12')
        e('v_lshrrev_b32 v13, 6, v0')
        e('v_and_b32 v%d, 63, v0' % vL)
        e('v_addc_co_u32 v15, vcc, 0, v15, vcc')
        e('v_readfirstlane_b32 s%d, v13' % sW)
        e('global_load_dword v%d, v[14:15], off' % (vU + 7), 'PF')
        e('s_and_b32 s%d, s2, 7' % sXCD)
        e('s_lshr_b32 s%d, s2, 3' % sIDX)
        e('s_lshr_b32 s%d, s%d, 4' % (sG, sIDX))
        e('s_lshl1_add_u32 s%d, s%d, s%d' % (sG, sXCD, sG))
        e('s_and_b32 s%d, s%d, 15' % (sS, sIDX))
        e('s_lshr_b32 s59, s%d, 2' % sS)
        e('s_mul_i32 s59, s59, 144')
        e('s_lshl4_add_u32 s59, s%d, s59' % sW)
        e('s_lshl_b32 s60, s59, 13')
        e('s_lshl_b32 s61, s%d, 9' % sG)
        e('s_add_u32 s60, s60, s61')
        e('s_and_b32 s61, s%d, 3' % sS)
        e('s_lshl_b32 s61, s61, 7')
        e('s_add_u32 s60, s60, s61')
        e('s_lshl_b32 s59, s59, 1')
        e('s_lshl_b32 s61, s%d, 24' % sG)
        e('s_lshl_b32 s62, s%d, 16' % sS)
        e('s_add_u32 s61, s61, s62')
        e('s_lshl_b32 s62, s%d, 13' % sW)
        e('s_add_u32 s61, s61, s62')
        e('s_add_u32 s61, s61, 0x%x' % (61440 * 256))
        vRHO, vC16, vXA, vXB, vXC, vQOFF = 12, 13, 14, 15, vU, vU + 1
        e('v_lshrrev_b32 v%d, 3, v%d' % (vRHO, vL))
        e('v_and_b32 v%d, 7, v%d' % (vC16, vL))
        e('v_lshlrev_b32 v%d, 4, v%d' % (vC16, vC16))
        e('v_lshlrev_b32 v%d, 4, v%d' % (vXA, vL))
        e('v_lshlrev_b32 v%d, 1, v%d' % (vXB, vL))
        e('v_lshl_add_u32 v%d, v%d, 2, s59' % (vXC, vRHO))
        e('v_lshl_add_u32 v%d, v%d, 14, v%d' % (vQOFF, vRHO, vC16))
        e('v_lshrrev_b32 v%d, 4, v%d' % (vKV, vL))
        e('v_and_b32 v%d, 0xf0, v%d' % (vU + 2, vXA))
        e('v_lshl_add_u32 v%d, v%d, 11, v%d' % (vKV, vKV, vU + 2))
        e('s_waitcnt lgkmcnt(0)')
        e('s_load_dword s%d, %s, 0' % (sT, sr(sWS)))
        vX = vWQ + 8
        e('global_load_dwordx4 %s, v%d, %s' % (vr(vX), vXA, sr(sX)), 'XA')
        e('global_load_ushort v%d, v%d, %s offset:1024' % (vX + 4, vXB, sr(sX)), 'XB')
        e('global_load_dword v%d, v%d, %s' % (vX + 5, vXC, sr(sX)), 'XC')
        self.add64(sQ0, sWQ, 's60')
        e('global_load_dwordx4 %s, v%d, %s nt' % (vr(vWQ), vQOFF, sr(sQ0)), 'Q0')
        self.add64(sQ1, sQ0, '0x2000')
        e('global_load_dwordx4 %s, v%d, %s nt' % (vr(vWQ + 4), vQOFF, sr(sQ1)), 'Q1')
        self.add64(sKB, sK, 's61')
        self.add64(sVB, sV, 's61')
        L0 = [self.kvload(vKt + 4 * t, sKB, t, 'K%d' % t) for t in range(8)] + \
             [self.kvload(vVt + 4 * t, sVB, t, 'V%d' % t) for t in range(8)]
        self.L = list(L0)
        self.iss = 0
        e('s_cmp_eq_u32 s%d, 8' % sW)
        e('s_cbranch_scc1 L_w8_pre')
        snapA = e.snap()
        self.issue_to(cfg.nka)
        e('s_branch L_pre_join')
        snapJ = e.snap()
        e.restore(snapA)
        e.label('L_w8_pre')
        e('s_lshl4_add_u32 s59, s%d, s%d' % (sG, sS))
        e('s_lshl_b32 s60, s59, 9')
        e('s_add_u32 s60, s60, 0x%x' % WS_QP)
        e('v_lshl_add_u32 v21, v%d, 7, s60' % vL)
        e('s_lshl_b32 s60, s59, 10')
        e('s_add_u32 s60, s60, 0x%x' % (WS_OP - 512))
        e('s_mov_b64 exec, -16')
        e('v_lshl_add_u32 v21, v%d, 7, s60' % vL)
        e('s_lshl_b32 s60, s59, 7')
        e('s_add_u32 s60, s60, 0x%x' % WS_ML)
        e('s_lshl_b64 exec, -1, 12')
        e('v_mov_b32 v21, s60')
        e('s_mov_b64 exec, 0x1fff')
        for t in range(cfg.nka):
            e('global_load_dword v18, v21, %s sc1' % sr(sWS), 'K%d' % t)
            if t == 0:
                e('s_mov_b64 exec, 1')
        e('s_mov_b64 exec, -1')
        e('v_mov_b32 v20, 0')
        e('v_mov_b32 v21, -1.0')
        e('v_lshlrev_b32 v22, 2, v%d' % vL)
        e('v_lshlrev_b32 v23, 3, v%d' % vL)
        e('ds_write2st64_b32 v22, v20, v20 offset0:%d offset1:%d' % (L_ST1 // 256, L_ST1 // 256 + 1))
        e('ds_write2st64_b32 v22, v20, v20 offset0:%d offset1:%d' % (L_ST2 // 256, L_ST2 // 256 + 1))
        e('ds_write_b64 v23, v[20:21] offset:%d' % L_LP)
        e.label('L_pre_join')
        e.restore(([], snapJ[1]))
        e('s_mov_b64 %s, %s' % (sr(sPB), sr(sWS)))
        self.add64(sWS2, sWS, '0x%x' % WS_DELTA)
        self.ts(1)
        e('v_and_b32 v%d, 3, v%d' % (vU + 2, vL))
        e('v_lshlrev_b32 v%d, 4, v%d' % (vU + 2, vU + 2))
        e('v_mov_b32 v%d, 0xffff' % (vU + 4))
        e('v_mov_b32 v%d, 0' % (vU + 5))
        e('v_lshlrev_b64 %s, v%d, %s' % (vr(vU + 4, 2), vU + 2, vr(vU + 4, 2)))
        e('v_bfe_i32 v%d, v%d, 2, 1' % (vU + 2, vL))
        e('v_and_b32 v%d, v%d, v%d' % (vM + 2, vU + 4, vU + 2))
        e('v_and_b32 v%d, v%d, v%d' % (vM + 3, vU + 5, vU + 2))
        e('v_xor_b32 v%d, v%d, v%d' % (vM + 0, vU + 4, vM + 2))
        e('v_xor_b32 v%d, v%d, v%d' % (vM + 1, vU + 5, vM + 3))
        e('v_lshrrev_b32 v%d, 5, v%d' % (vDQ, vL))
        e('v_lshlrev_b32 v%d, 8, v%d' % (vDQ, vDQ))
        e('v_lshl_add_u32 v%d, v%d, 1, v%d' % (vDQ, vC16, vDQ))
        e('v_and_b32 v%d, 16, v%d' % (vU + 2, vL))
        e('s_lshl_b32 s59, s%d, 9' % sW)
        e('v_add3_u32 v%d, v%d, v%d, s59' % (vDQ, vDQ, vU + 2))
        self.mask64(sVALID, 0x00ff00ff, 0xff00ff00)
        self.mask64(sL8, 0x01010101)
        e('s_mov_b32 s%d, %s' % (sLOG2E, f32(LOG2E)))
        e('s_mov_b32 s%d, 0x3f803f80' % sONES)
        vINV = vU + 6
        e('v_mov_b32 v%d, %s' % (vINV, f32(1.0 / 576)))
        e.wait_vm('XB')
        vS, vQ = vU + 2, vU + 3
        for k in range(5):
            e('v_dot2_f32_bf16 v%d, v%d, s%d, %s' % (vS, vX + k, sONES, '0' if k == 0 else 'v%d' % vS))
            e('v_dot2_f32_bf16 v%d, v%d, v%d, %s' % (vQ, vX + k, vX + k, '0' if k == 0 else 'v%d' % vQ))
        for d in (X1, X2, HM, MI):
            e('v_add_f32_dpp v%d, v%d, v%d %s' % (vS, vS, vS, d))
            e('v_add_f32_dpp v%d, v%d, v%d %s' % (vQ, vQ, vQ, d))
        for d in ('row_bcast:15 row_mask:0xa bank_mask:0xf', 'row_bcast:31 row_mask:0xc bank_mask:0xf'):
            e('v_add_f32_dpp v%d, v%d, v%d %s' % (vS, vS, vS, d))
            e('v_add_f32_dpp v%d, v%d, v%d %s' % (vQ, vQ, vQ, d))
        e('v_readlane_b32 s59, v%d, 63' % vS)
        e('v_readlane_b32 s60, v%d, 63' % vQ)
        e.wait_vm('XC')
        y0, y1 = vX, vX + 1
        e('v_lshlrev_b32 v%d, 16, v%d' % (y0, vX + 5))
        e('v_and_b32 v%d, 0xffff0000, v%d' % (y1, vX + 5))
        m, sd, r, t = vU + 2, vU + 3, vU + 4, vU + 5
        for x in self.ln_scalars('s59', 's60', vINV, m, sd, r, t):
            e(x)
        self.weave(self.ln_apply(y0, m, sd, r, vX + 2), self.ln_apply(y1, m, sd, r, vX + 3))
        e('v_cvt_pk_bf16_f32 v%d, v%d, v%d' % (y0, y0, y0))
        e('v_cvt_pk_bf16_f32 v%d, v%d, v%d' % (y1, y1, y1))
        A0, A1 = vT, vX + 4
        for x in self.a_ops_plain(A0, y0):
            e(x)
        for x in self.a_ops_plain(A1, y1):
            e(x)
        e.wait_vm('Q0')
        e(self.mfma(vD, A0, vWQ, True))
        e.wait_vm('Q1')
        e(self.mfma(vD, A1, vWQ + 4, False))
        e('s_waitcnt lgkmcnt(0)')
        e('s_add_u32 s%d, s%d, 0x01010101' % (sT, sT))
        e('s_and_b32 s%d, s%d, 0xff' % (sT0, sT))
        e('s_bfe_u32 s%d, s%d, 0x80008' % (sT0 + 1, sT))
        e('s_bfe_u32 s%d, s%d, 0x80010' % (sT0 + 2, sT))
        e('s_lshr_b32 s%d, s%d, 24' % (sT0 + 3, sT))
        e('s_mov_b64 exec, %s' % sr(sVALID))
        e('ds_write_b128 v%d, %s offset:%d' % (vDQ, vr(vD), L_QPART))
        e('s_mov_b64 exec, -1')
        self.ts(2)
        self.barrier()
        e('s_cmp_eq_u32 s%d, 8' % sW)
        e('s_cbranch_scc1 L_comm')
        e('s_cmp_lt_u32 s%d, %d' % (sIDX, NWO))
        e('s_cbranch_scc1 L_wo')
        snapB1 = e.snap()

        self.mlp_setup()
        self.attention(cfg.nb2, cfg.win, 16)
        self.mlp_masks()
        e('s_cmp_lt_u32 s%d, %d' % (sIDX, NWO + NML))
        e('s_cbranch_scc1 L_mlp')
        snapR = e.snap()
        self.pv(0)
        self.ts_store()
        e('s_endpgm')

        e.restore(snapR)
        e.label('L_mlp')
        self.L = L0 + self.mlp_loads()[:cfg.mpre]
        self.iss = 16
        self.pv(cfg.mpre)
        e('s_branch L_mlp_w')

        e.restore(snapB1)
        e.label('L_wo')
        t0, t1, t2 = vMA, vMA + 1, vMA + 2
        e('v_lshrrev_b32 v%d, 3, v%d' % (t0, vL))
        e('v_and_b32 v%d, 0x70, v%d' % (vWO, vKV))
        e('v_mov_b32 v%d, %d' % (t1, 8 * 1152))
        e('v_mad_u32_u24 v%d, v%d, v%d, v%d' % (vWO, t0, t1, vWO))
        e('s_lshl3_add_u32 s59, s%d, s%d' % (sXCD, sW))
        e('s_mul_i32 s59, s59, %d' % (64 * 1152))
        e('s_lshl_b32 s60, s%d, 7' % sIDX)
        e('s_add_u32 s59, s59, s60')
        e('s_add_u32 s59, s59, 4032')
        self.add64(sA, sWO, 's59')
        self.L = L0 + [('load', 'global_load_dwordx4 %s, v%d, %s offset:%d nt' % (vr(vW1 + 4 * j), vWO, sr(sA), 1152 * j - 4032), 'W%d' % j)
                       for j in range(8)]
        self.iss = cfg.nka
        e('v_and_b32 v%d, 3, v%d' % (t1, vL))
        e('v_lshrrev_b32 v%d, 2, v%d' % (t2, vL))
        e('v_lshlrev_b32 v%d, 4, v%d' % (vP0, t2))
        e('v_lshl_add_u32 v%d, v%d, 12, v%d' % (vP0, t1, vP0))
        e('s_lshr_b32 s59, s%d, 2' % sW)
        e('s_lshl1_add_u32 s59, s%d, s59' % sXCD)
        e('s_lshl_b32 s60, s59, 14')
        e('s_and_b32 s61, s%d, 3' % sW)
        e('s_lshl_b32 s61, s61, 8')
        e('s_add_u32 s60, s60, s61')
        e('s_add_u32 s60, s60, 0x%x' % WS_OP)
        e('v_add_u32 v%d, s60, v%d' % (vP0, vP0))
        e('v_and_b32 v%d, 3, v%d' % (t2, t2))
        e('v_lshl_add_u32 v%d, v%d, 2, v%d' % (t2, t1, t2))
        e('s_lshl_b32 s59, s59, 11')
        e('s_add_u32 s59, s59, 0x%x' % WS_ML)
        e('v_lshl_add_u32 v%d, v%d, 7, s59' % (vMLA, t2))
        self.attention(cfg.nb2w, cfg.winw, cfg.upw)
        self.pv(cfg.winp)
        e('s_barrier')
        self.issue_to(24)
        if cfg.diag == 1:
            e.wait_vm0()
            self.ts(13)
        G = vVt + 16
        F = vVt + 20
        self.poll('L_ml_poll', [('global_load_dwordx4 %s, v%d, %s sc1' % (vr(G), vMLA, sr(sPB)), G, 'f24', 44)], vT, fb=True)
        self.ts(14)
        opl = [('global_load_dwordx4 %s, v%d, %s offset:%d sc1' % (vr(vVt + 4 * k), vP0, sr(sPB), 1024 * k), vVt + 4 * k, 'f24',
                [44, 46, 48, 50][k]) for k in range(4)]
        for it in opl:
            e(it[0])
        e('s_bitcmp0_b32 s%d, 1' % sW)
        e('s_cbranch_scc1 L_wo_h0')
        e('v_mov_b32 v%d, v%d' % (G, G + 2))
        e('v_mov_b32 v%d, v%d' % (G + 1, G + 3))
        e.label('L_wo_h0')
        e('v_mov_b32 v%d, v%d' % (G + 2, G))
        for d in (X1, X2, HM, MI):
            e('v_max_f32_dpp v%d, v%d, v%d %s' % (G + 2, G + 2, G + 2, d))
        e('v_sub_f32 v%d, v%d, v%d' % (G, G, G + 2))
        e('v_mul_f32 v%d, s%d, v%d' % (G, sLOG2E, G))
        e('v_exp_f32 v%d, v%d' % (G, G))
        e('v_mul_f32 v%d, v%d, v%d' % (G + 1, G + 1, G))
        for d in (X1, X2, HM, MI):
            e('v_add_f32_dpp v%d, v%d, v%d %s' % (G + 1, G + 1, G + 1, d))
        e('v_rcp_f32 v%d, v%d' % (G + 1, G + 1))
        e('v_mul_f32 v%d, v%d, v%d' % (G, G, G + 1))
        for k in range(4):
            e('ds_swizzle_b32 v%d, v%d offset:0x%x' % (F + k, G, 0x13 | ((4 * k) << 5)))
        self.poll('L_wo_poll', opl, vT, first_issued=True, fb=True)
        self.ts(8)
        e('s_waitcnt lgkmcnt(0)')
        for k in range(4):
            hi = k & 1
            for hh in (0, 2):
                if k == 0:
                    e('v_pk_mul_f32 %s, %s, %s op_sel:[0,0] op_sel_hi:[1,0]' % (vr(vVt + hh, 2), vr(vVt + hh, 2), vr(F, 2)))
                else:
                    e('v_pk_fma_f32 %s, %s, %s, %s op_sel:[0,%d,0] op_sel_hi:[1,%d,1]' % (
                        vr(vVt + hh, 2), vr(vVt + 4 * k + hh, 2), vr(F + (k & 2), 2), vr(vVt + hh, 2), hi, hi))
        for d in (X1, X2):
            for c in range(4):
                e('v_add_f32_dpp v%d, v%d, v%d %s' % (vVt + c, vVt + c, vVt + c, d))
        for c in range(4):
            e('v_cvt_pk_bf16_f32 v%d, v%d, v%d' % (vVt + c, vVt + c, vVt + c))
        A = []
        for j in range(8):
            ops = []
            for p in range(4):
                own = (p >> 1) == (j >> 2)
                if own:
                    ops.append('v_and_b32 v%d, v%d, v%d' % (vKt + 4 * j + p, vVt + (j & 3), vM + p))
                else:
                    ops.append('v_and_b32_dpp v%d, v%d, v%d %s' % (vKt + 4 * j + p, vVt + (j & 3), vM + p, ROR(4 if j < 4 else 12)))
            A.append(ops)
        self.chain(A, [self.mfma(vD, vKt + 4 * j, vW1 + 4 * j, j == 0) for j in range(8)])
        e('s_mov_b64 exec, %s' % sr(sVALID))
        e('ds_write_b128 v%d, %s offset:%d' % (vDQ, vr(vD), L_QPART))
        e('s_mov_b64 exec, -1')
        self.ts(9)
        self.barrier()
        self.ts_store()
        e('s_endpgm')

        e.restore(snapB1)
        e.label('L_comm')
        vA = 24
        vMASK = 23
        e('v_lshlrev_b32 v%d, 3, v%d' % (vA, vL))
        for i in range(4):
            e('ds_read2_b64 %s, v%d offset0:%d offset1:%d' % (vr(32 + 4 * i), vA, 64 * i, 64 * i + 32))
        e('v_add_u32 v25, 0x800, v%d' % vA)
        for i in range(4):
            e('ds_read2_b64 %s, v25 offset0:%d offset1:%d' % (vr(48 + 4 * i), 64 * i, 64 * i + 32))
        e('v_add_u32 v25, 0x1000, v%d' % vA)
        e('ds_read2_b64 %s, v25 offset0:0 offset1:32' % vr(64))
        e('v_mov_b32 v%d, 0xffffff00' % vMASK)
        e('s_lshl_b32 s59, s%d, 13' % sG)
        e('s_lshl_b32 s60, s%d, 9' % sS)
        e('s_add_u32 s60, s60, s59')
        e('s_add_u32 s60, s60, 0x%x' % WS_QP)
        e('s_add_u32 s59, s59, 0x%x' % WS_QP)
        e('v_lshl_add_u32 v26, v%d, 4, s60' % vL)
        e('v_lshl_add_u32 v27, v%d, 4, s59' % vL)
        e('v_add_u32 v28, 0x1000, v27')
        e('s_waitcnt lgkmcnt(0)')
        regs = [32 + 2 * i for i in range(18)]
        while len(regs) > 1:
            nxt = []
            for i in range(0, len(regs) - 1, 2):
                e('v_pk_add_f32 %s, %s, %s' % (vr(regs[i], 2), vr(regs[i], 2), vr(regs[i + 1], 2)))
                nxt.append(regs[i])
            if len(regs) & 1:
                nxt.append(regs[-1])
            regs = nxt
        e('v_mov_b32 v34, s%d' % sT)
        e('v_mov_b32 v35, s%d' % sT)
        e('s_mov_b32 exec_hi, 0')
        self.publish(26, 32)
        e('s_mov_b64 exec, -1')
        self.ts(3)
        qitems = []
        for r_ in range(4):
            for h in range(2):
                off = (r_ & 1) * 2048 + h * 1024
                qitems.append(('global_load_dwordx4 %s, v%d, %s offset:%d sc1' % (vr(48 + 8 * r_ + 4 * h), 27 + (r_ >> 1), sr(sPB), off),
                               48 + 8 * r_ + 4 * h, 'tw', [44, 46, 48, 50, 52, 54, 14, 60][2 * r_ + h]))
        self.poll('L_q_poll', qitems, 25, fb=True)
        for h in range(2):
            b = 48 + 4 * h
            e('v_pk_add_f32 %s, %s, %s' % (vr(b, 2), vr(b, 2), vr(b + 8, 2)))
            e('v_pk_add_f32 %s, %s, %s' % (vr(b + 16, 2), vr(b + 16, 2), vr(b + 24, 2)))
        for h in range(2):
            b = 48 + 4 * h
            e('v_pk_add_f32 %s, %s, %s' % (vr(b, 2), vr(b, 2), vr(b + 16, 2)))
        e('v_cvt_pk_bf16_f32 v48, v48, v49')
        e('v_cvt_pk_bf16_f32 v52, v52, v53')
        e('v_lshlrev_b32 v22, 2, v%d' % vL)
        e('ds_write2st64_b32 v22, v48, v52 offset0:%d offset1:%d' % (L_QL // 256, L_QL // 256 + 1))
        self.ts(4)
        self.barrier()
        e('v_lshrrev_b32 v24, 5, v%d' % vL)
        e('v_lshlrev_b32 v24, 9, v24')
        e('v_and_b32 v25, 15, v%d' % vL)
        e('v_lshl_add_u32 v24, v25, 5, v24')
        e('v_bfe_u32 v25, v%d, 4, 1' % vL)
        e('v_lshl_add_u32 v24, v25, 4, v24')
        e('s_lshl_b32 s59, s%d, 14' % sG)
        e('s_lshl_b32 s60, s%d, 10' % sS)
        e('s_add_u32 s59, s59, s60')
        e('s_add_u32 s59, s59, 0x%x' % WS_OP)
        e('v_add_u32 v24, s59, v24')
        e('v_lshlrev_b32 v25, 4, v%d' % vL)
        e('s_lshl4_add_u32 s59, s%d, s%d' % (sG, sS))
        e('s_lshl_b32 s59, s59, 7')
        e('s_add_u32 s59, s59, 0x%x' % WS_ML)
        e('v_mov_b32 v26, s59')
        e('v_lshlrev_b32 v27, 3, v%d' % vL)
        e('v_lshrrev_b32 v28, 5, v%d' % vL)
        e('v_lshlrev_b32 v28, 5, v28')
        e('v_and_b32 v29, 0x3c, v%d' % vL)
        self.mlp_setup()
        self.mlp_masks()
        e('s_movk_i32 s%d, 0x%x' % (sSPIN, cfg.spin))
        e.label('L_lp_poll')
        e('ds_read_b64 v[32:33], v27 offset:%d' % L_LP)
        e('s_waitcnt lgkmcnt(0)')
        e('v_cmp_gt_f32 vcc, 0, v33')
        e('s_sub_u32 s%d, s%d, 1' % (sSPIN, sSPIN))
        e('s_cbranch_scc1 L_lp_poll_x')
        e('s_cbranch_vccnz L_lp_poll')
        e.label('L_lp_poll_x')
        e('v_max_f32_dpp v36, v32, v32 %s' % ROR(4))
        e('v_max_f32_dpp v36, v36, v36 %s' % ROR(8))
        e('v_mov_b32 v37, v36')
        e('v_permlane16_swap_b32 v37, v36')
        e('v_max_f32 v36, v36, v37')
        e('v_sub_f32 v37, v32, v36')
        e('v_mul_f32 v37, s%d, v37' % sLOG2E)
        e('v_exp_f32 v37, v37')
        e('v_mov_b32 v32, v36')
        e('v_mul_f32 v33, v33, v37')
        e('ds_write_b32 v29, v37 offset:%d' % L_F)
        for d in (X1, X2, ROR(4), ROR(8)):
            e('v_add_f32_dpp v33, v33, v33 %s' % d)
        e('v_mov_b32 v38, v33')
        e('v_permlane16_swap_b32 v38, v33')
        e('v_add_f32 v33, v33, v38')
        e('v_permlane32_swap_b32 v32, v34')
        e('v_permlane32_swap_b32 v33, v35')
        self.tag(32, vMASK)
        e('s_mov_b64 exec, 1')
        self.publish(26, 32)
        e('s_mov_b64 exec, -1')
        e('ds_read_b128 %s, v28 offset:%d' % (vr(64), L_F))
        e('ds_read_b128 %s, v28 offset:%d' % (vr(68), L_F + 16))
        e('v_lshrrev_b32 v26, 2, v%d' % vL)
        e('v_and_b32 v27, 3, v%d' % vL)
        e('v_lshlrev_b32 v28, 4, v26')
        e('v_lshl_add_u32 v28, v27, 8, v28')
        e('s_lshl_b32 s59, s%d, 11' % sIDX)
        e('s_lshl_b32 s60, s%d, 8' % sXCD)
        e('s_add_u32 s59, s59, s60')
        e('s_add_u32 s59, s59, 0x%x' % WS_HP)
        e('v_lshl_add_u32 v29, v26, 4, s59')
        self.ts(5)
        if cfg.mpre:
            e('s_sub_u32 s59, s%d, %d' % (sIDX, NWO))
            e('s_cmp_lt_u32 s59, %d' % NML)
            e('s_cbranch_scc0 L_c_nopre')
            self.L = self.mlp_loads()
            self.iss = 0
            self.issue_to(cfg.mpre)
            e.label('L_c_nopre')
            e.restore(([], []))
        e('s_barrier')
        self.ts(6)
        for w in range(8):
            e('ds_read_b128 %s, v25 offset:%d' % (vr(32 + 4 * w), L_OPART + 1024 * w))
        for w in range(8):
            e('s_waitcnt lgkmcnt(%d)' % (0 if cfg.diag == 1 else 7 - w))
            sel = 'op_sel:[0,1,0] op_sel_hi:[1,1,1]' if w & 1 else 'op_sel:[0,0,0] op_sel_hi:[1,0,1]'
            acc = 32 + 4 * (w & 1)
            for hh in (0, 2):
                if w < 2:
                    e('v_pk_mul_f32 %s, %s, %s %s' % (vr(acc + hh, 2), vr(32 + 4 * w + hh, 2), vr(64 + (w & ~1), 2),
                                                     'op_sel:[0,1] op_sel_hi:[1,1]' if w & 1 else 'op_sel:[0,0] op_sel_hi:[1,0]'))
                else:
                    e('v_pk_fma_f32 %s, %s, %s, %s %s' % (vr(acc + hh, 2), vr(32 + 4 * w + hh, 2), vr(64 + (w & ~1), 2),
                                                         vr(acc + hh, 2), sel))
        for hh in (0, 2):
            e('v_pk_add_f32 %s, %s, %s' % (vr(32 + hh, 2), vr(32 + hh, 2), vr(36 + hh, 2)))
        self.tag(32, vMASK)
        self.publish(24, 32)
        self.ts(7)
        e('s_cmp_lt_u32 s%d, %d' % (sIDX, NWO))
        e('s_cbranch_scc1 L_c_wo')
        e('s_cmp_lt_u32 s%d, %d' % (sIDX, NWO + NML))
        e('s_cbranch_scc1 L_mlp_w')
        snapC = e.snap()
        self.ts_store()
        e('s_endpgm')

        e.restore(snapC)
        e.label('L_c_wo')
        e('s_barrier')
        self.mask64(60, 0x11111111)
        e('s_barrier')
        self.ts(8)
        for k in range(4):
            e('ds_read_b128 %s, v28 offset:%d' % (vr(40 + 4 * k), L_QPART + 1024 * k))
        e('s_waitcnt lgkmcnt(%d)' % (0 if cfg.diag else 2))
        for hh in (0, 2):
            e('v_pk_add_f32 %s, %s, %s' % (vr(40 + hh, 2), vr(40 + hh, 2), vr(44 + hh, 2)))
        e('s_waitcnt lgkmcnt(0)')
        for hh in (0, 2):
            e('v_pk_add_f32 %s, %s, %s' % (vr(48 + hh, 2), vr(48 + hh, 2), vr(52 + hh, 2)))
        for hh in (0, 2):
            e('v_pk_add_f32 %s, %s, %s' % (vr(40 + hh, 2), vr(40 + hh, 2), vr(48 + hh, 2)))
        for d in (X1, X2):
            for c in range(4):
                e('v_add_f32_dpp v%d, v%d, v%d %s' % (40 + c, 40 + c, 40 + c, d))
        self.tag(40, vMASK)
        e('s_mov_b64 exec, s[60:61]')
        e('global_store_dwordx4 v29, %s, %s sc1' % (vr(40), sr(sWS)))
        e('s_mov_b64 exec, -1')
        self.ts(9)
        self.ts_store()
        e('s_endpgm')

        self.L = self.mlp_loads()
        self.iss = cfg.mpre
        e.label('L_mlp_w')
        e.restore(([], [it[2] for it in self.L[:cfg.mpre]]))
        e('s_barrier')
        self.issue_to(cfg.winm2)
        for i in range(8):
            if self.iss >= 8:
                break
            self.pace(i, cfg.winm2)
        self.ts(13)
        if cfg.diag == 1:
            e.wait_vm0()
            self.ts(14)
        vP = vVt
        self.poll('L_hp_poll', [('global_load_dwordx4 %s, v%d, %s offset:%d sc1' % (vr(vP + 4 * u), vHPA, sr(sWS), 1024 * u),
                                 vP + 4 * u, 'f24', [44, 46][u]) for u in range(2)], vT)
        self.ts(8)
        for hh in (0, 2):
            e('v_pk_add_f32 %s, %s, %s' % (vr(vP + hh, 2), vr(vP + hh, 2), vr(vP + 4 + hh, 2)))
        for c in range(4):
            e('v_add_f32_dpp v%d, v%d, v%d %s' % (vP + c, vP + c, vP + c, X2))
        e('v_cndmask_b32 v%d, v%d, v%d, %s' % (vP, vP, vP + 2, sr(sBIT1)))
        e('v_cndmask_b32 v%d, v%d, v%d, %s' % (vP + 1, vP + 1, vP + 3, sr(sBIT1)))
        y0, y1 = vP, vP + 1
        e('v_and_b32 v%d, 0xffff0000, v%d' % (vHX + 1, vHX))
        e('v_add_f32_dpp v%d, v%d, v%d %s' % (y0, y0, y0, X1))
        e('v_add_f32_dpp v%d, v%d, v%d %s' % (y1, y1, y1, X1))
        e('v_lshlrev_b32 v%d, 16, v%d' % (vHX, vHX))
        e(self.rnd(y0, y0))
        e(self.rnd(y1, y1))
        e('v_add_f32 v%d, v%d, v%d' % (y0, y0, vHX))
        e('v_add_f32 v%d, v%d, v%d' % (y1, y1, vHX + 1))
        for ln, lst in ((0, L_ST1), (1, L_ST2)):
            e(self.rnd(y0, y0))
            e(self.rnd(y1, y1))
            z, z2 = vP + 2, vP + 3
            e('v_add_f32 v%d, v%d, v%d' % (z, y0, y1))
            e('v_mul_f32 v%d, v%d, v%d' % (z2, y0, y0))
            e('v_fmac_f32 v%d, v%d, v%d' % (z2, y1, y1))
            e('v_cndmask_b32 v%d, v%d, v%d, %s' % (z, z, z2, sr(sBIT0)))
            if ln == 0:
                e('v_mov_b32 v%d, v%d' % (vH, y0))
                e('v_mov_b32 v%d, v%d' % (vH + 1, y1))
            for d in (X2, ROR(4), ROR(8)):
                e('v_add_f32_dpp v%d, v%d, v%d %s' % (z, z, z, d))
            e('s_mov_b64 exec, %s' % sr(sL2))
            e('ds_write_b32 v%d, v%d offset:%d' % (vSTW, z, lst))
            e('s_mov_b64 exec, -1')
            self.barrier()
            e('ds_read_b128 %s, v%d offset:%d' % (vr(vP + 4), vSTR, lst))
            e('ds_read_b128 %s, v%d offset:%d' % (vr(vP + 8), vSTR, lst + 16))
            e('s_waitcnt lgkmcnt(0)')
            e('v_pk_add_f32 %s, %s, %s' % (vr(vP + 4, 2), vr(vP + 4, 2), vr(vP + 8, 2)))
            e('v_pk_add_f32 %s, %s, %s' % (vr(vP + 6, 2), vr(vP + 6, 2), vr(vP + 10, 2)))
            e('v_pk_add_f32 %s, %s, %s' % (vr(vP + 4, 2), vr(vP + 4, 2), vr(vP + 6, 2)))
            e('v_add_f32 v%d, v%d, v%d' % (z, vP + 4, vP + 5))
            for d in (X2, ROR(4), ROR(8)):
                e('v_add_f32_dpp v%d, v%d, v%d %s' % (z, z, z, d))
            e('v_mov_b32_dpp v%d, v%d quad_perm:[1,1,3,3] %s' % (z2, z, DPP))
            e('v_mov_b32_dpp v%d, v%d quad_perm:[0,0,2,2] %s' % (z, z, DPP))
            m, sd, r, t = vP + 4, vP + 5, vP + 6, vP + 7
            sc = self.ln_scalars('v%d' % z, 'v%d' % z2, vINVM, m, sd, r, t)
            a0 = self.ln_apply(y0, m, sd, r, vP + 8, cfg.refine)
            a1 = self.ln_apply(y1, m, sd, r, vP + 9, cfg.refine)
            for x in sc[:4]:
                e(x)
            self.weave(sc[4:], a0[:2] + a1[:2])
            self.weave(a0[2:], a1[2:])
        e('v_cvt_pk_bf16_f32 v%d, v%d, v%d' % (y0, y0, y0))
        e('v_cvt_pk_bf16_f32 v%d, v%d, v%d' % (y1, y1, y1))
        self.ts(9)
        vD1 = vT
        self.chain([self.a_ops_rot(vKt + 4 * jj, y1 if (jj & 1) else y0, jj >> 1) for jj in range(8)],
                   [self.mfma(vD1 if (jj & 1) else vD, vKt + 4 * jj, vW1 + 4 * (jj >> 1), jj < 2) for jj in range(8)])
        e('v_lshlrev_b32 v%d, 16, v%d' % (vB1, vB1))
        for c in range(4):
            e('v_add_f32_dpp v%d, v%d, v%d %s' % (vD + c, vD1 + c, vD + c, ROR(8)))
        e('s_mov_b64 exec, %s' % sr(sM1))
        e('ds_write_b128 v%d, %s offset:%d' % (vM1W, vr(vD), L_QPART))
        e('s_mov_b64 exec, -1')
        self.barrier()
        self.ts(10)
        for i in range(4):
            e('ds_read2st64_b32 %s, v%d offset0:%d offset1:%d' % (vr(vP + 2 * i, 2), vM1R, 2 * i, 2 * i + 1))
        e('ds_read_b32 v%d, v%d offset:%d' % (vP + 8, vM1R, 2048))
        c1 = -2.0 * LOG2E * 0.7978845608028654
        e('s_waitcnt lgkmcnt(%d)' % (0 if cfg.diag else 3))
        e('v_pk_add_f32 %s, %s, %s' % (vr(vP, 2), vr(vP, 2), vr(vP + 2, 2)))
        e('s_waitcnt lgkmcnt(%d)' % (0 if cfg.diag else 1))
        e('v_pk_add_f32 %s, %s, %s' % (vr(vP + 4, 2), vr(vP + 4, 2), vr(vP + 6, 2)))
        e('v_pk_add_f32 %s, %s, %s' % (vr(vP, 2), vr(vP, 2), vr(vP + 4, 2)))
        e('s_waitcnt lgkmcnt(0)')
        e('v_add_f32 v%d, v%d, v%d' % (vP, vP, vP + 8))
        e('v_add_f32 v%d, v%d, v%d' % (vP, vP, vP + 1))
        u = vP + 2
        e('v_add_f32_dpp v%d, v%d, v%d %s' % (u, vP, vP, ROR(4, 0xa)))
        e('v_add_f32_dpp v%d, v%d, v%d %s' % (u, vP, vP, ROR(12, 0x5)))
        e(self.rnd(u, u))
        e('v_add_f32 v%d, v%d, v%d' % (u, u, vB1))
        e(self.rnd(u, u))
        e('v_mul_f32 v%d, v%d, v%d' % (u + 1, u, u))
        e('v_fmaak_f32 v%d, v%d, v%d, %s' % (u + 1, u + 1, vGC, f32(c1)))
        e('v_mul_f32 v%d, v%d, v%d' % (u + 1, u + 1, u))
        e('v_exp_f32 v%d, v%d' % (u + 1, u + 1))
        e('v_add_f32 v%d, 1.0, v%d' % (u + 1, u + 1))
        e('v_rcp_f32 v%d, v%d' % (u + 1, u + 1))
        e('v_mul_f32 v%d, v%d, v%d' % (u, u, u + 1))
        e('v_cvt_pk_bf16_f32 v%d, v%d, v%d' % (u, u, u))
        self.ts(11)
        self.chain([['v_and_b32_dpp v%d, v%d, v%d quad_perm:[%d,%d,%d,%d] %s' % (vKt + 4 * jj + p, u, vM + p, jj, jj, jj, jj, DPP)
                     for p in range(4)] for jj in range(4)],
                   [self.mfma(vD, vKt + 4 * jj, vW1 + 16 + 4 * jj, jj == 0) for jj in range(4)])
        e('s_lshr_b32 s59, s%d, 4' % sID)
        for c in range(4):
            e('v_permlane32_swap_b32 v%d, v%d' % (vD + c, vP + 4 + c))
        for c in range(4):
            e('v_add_f32_dpp v%d, v%d, v%d %s' % (vD + c, vP + 4 + c, vD + c, ROR(8)))
        self.tag(vD, vMASKM)
        e('s_mov_b64 exec, 0x00ff00ff')
        e('global_store_dwordx4 v%d, %s, %s sc1' % (vFPA, vr(vD), sr(sWS)))
        e('s_mov_b64 exec, -1')
        self.ts(12)
        e('s_cmp_lg_u32 s59, s%d' % sW)
        e('s_cbranch_scc1 L_m_done')
        fl = [('global_load_dwordx4 %s, v%d, %s sc1' % (vr(vP), vFF0, sr(sWS)), vP, 'f24', 44),
              ('global_load_dwordx4 %s, v%d, %s sc1' % (vr(vP + 4), vFF1, sr(sWS)), vP + 4, 'f24', 46),
              ('global_load_dwordx4 %s, v%d, %s sc1' % (vr(vP + 8), vFF2, sr(sWS)), vP + 8, 'f24', 52, '0xffff')]
        e('s_and_b32 s59, s%d, 15' % sID)
        e('s_lshl_b32 s59, s59, 2')
        e('v_readlane_b32 s60, v%d, s59' % vH)
        e('v_readlane_b32 s61, v%d, s59' % (vH + 1))
        e('s_add_u32 s59, s59, 2')
        e('v_readlane_b32 s62, v%d, s59' % vH)
        e('v_readlane_b32 s63, v%d, s59' % (vH + 1))
        e('v_lshlrev_b32 v%d, 16, v%d' % (vFB, vFB))
        e('v_writelane_b32 v%d, s60, 0' % vH)
        e('v_writelane_b32 v%d, s62, 16' % vH)
        e('v_writelane_b32 v%d, s61, 32' % vH)
        e('v_writelane_b32 v%d, s63, 48' % vH)
        self.mask64(60, 0x00010001)
        self.poll('L_ff_poll', fl, vT)
        self.ts(6)
        for hh in (0, 2):
            e('v_pk_add_f32 %s, %s, %s' % (vr(vP + hh, 2), vr(vP + hh, 2), vr(vP + 4 + hh, 2)))
        e('s_mov_b64 exec, 0xffff')
        for hh in (0, 2):
            e('v_pk_add_f32 %s, %s, %s' % (vr(vP + hh, 2), vr(vP + hh, 2), vr(vP + 8 + hh, 2)))
        e('s_mov_b64 exec, -1')
        e('v_permlane32_swap_b32 v%d, v%d' % (vP, vP + 1))
        e('v_permlane32_swap_b32 v%d, v%d' % (vP + 2, vP + 3))
        e('v_add_f32 v%d, v%d, v%d' % (vP, vP, vP + 1))
        e('v_add_f32 v%d, v%d, v%d' % (vP + 2, vP + 2, vP + 3))
        e('v_permlane16_swap_b32 v%d, v%d' % (vP, vP + 2))
        e('v_add_f32 v%d, v%d, v%d' % (vP, vP, vP + 2))
        for d in (X1, X2, HM, MI):
            e('v_add_f32_dpp v%d, v%d, v%d %s' % (vP, vP, vP, d))
        e(self.rnd(vP, vP))
        e('v_add_f32 v%d, v%d, v%d' % (vP, vP, vFB))
        e(self.rnd(vP, vP))
        e('v_add_f32 v%d, v%d, v%d' % (vP, vP, vH))
        e('v_cvt_pk_bf16_f32 v%d, v%d, v%d' % (vP, vP, vP))
        e('s_mov_b64 exec, s[60:61]')
        e('global_store_short v%d, v%d, %s' % (vOUT, vP, sr(sOUT)))
        e('s_cmp_lg_u32 s%d, 0' % sID)
        e('s_cbranch_scc1 L_m_done')
        e('s_mov_b64 exec, 1')
        e('v_mov_b32 v%d, 0' % (vP + 1))
        e('v_mov_b32 v%d, s%d' % (vP + 2, sT))
        e('global_store_dword v%d, v%d, %s sc1' % (vP + 1, vP + 2, sr(sWS)))
        e.label('L_m_done')
        e('s_mov_b64 exec, -1')
        self.ts(15)
        self.ts_store()
        e.label('L_end')
        e('s_endpgm')

        e.raw('.section .rodata,"a"')
        e.raw('.p2align 6')
        e.raw('.amdhsa_kernel %s' % K)
        e.raw('  .amdhsa_next_free_vgpr 168')
        e.raw('  .amdhsa_next_free_sgpr 102')
        e.raw('  .amdhsa_accum_offset 168')
        e.raw('  .amdhsa_group_segment_fixed_size 0')
        e.raw('  .amdhsa_kernarg_size 104')
        e.raw('  .amdhsa_user_sgpr_count 2')
        e.raw('  .amdhsa_user_sgpr_kernarg_segment_ptr 1')
        e.raw('  .amdhsa_system_sgpr_workgroup_id_x 1')
        e.raw('.end_amdhsa_kernel')
        return e.text()

    def mlp_masks(self):
        self.mask64(sBIT0, 0xaaaaaaaa)
        self.mask64(sBIT1, 0xcccccccc)
        self.mask64(sL2, 0x00030003)
        self.mask64(sM1, 0x000f000f, 0x00f000f0)

    def mlp_setup(self):
        e = self.e
        e('s_mul_i32 s%d, s%d, %d' % (sID, sXCD, NML))
        e('s_max_u32 s59, s%d, %d' % (sIDX, NWO))
        e('s_add_u32 s%d, s%d, s59' % (sID, sID))
        e('s_sub_u32 s%d, s%d, %d' % (sID, sID, NWO))
        e('s_min_u32 s%d, s%d, 143' % (sID, sID))
        rho, c16, t2, t3 = vMA, vMA + 1, vMA + 2, vMA + 3
        e('v_lshrrev_b32 v%d, 3, v%d' % (rho, vL))
        e('v_and_b32 v%d, 0x70, v%d' % (c16, vKV))
        e('v_and_b32 v%d, 3, v%d' % (t2, vL))
        e('v_and_b32 v%d, 0x30, v%d' % (vW1O, vL))
        e('v_and_b32 v%d, 4, v%d' % (t3, vL))
        e('v_lshl_add_u32 v%d, v%d, 1, v%d' % (vW1O, t3, vW1O))
        e('v_and_b32 v%d, 1, v%d' % (vW2O, rho))
        e('v_add_u32 v%d, v%d, v%d' % (vW1O, vW1O, vW2O))
        e('v_mov_b32 v%d, 9216' % vW2O)
        e('v_lshlrev_b32 v%d, 4, v%d' % (vM1R, t2))
        e('v_mad_u32_u24 v%d, v%d, v%d, v%d' % (vW1O, vW1O, vW2O, vM1R))
        e('v_mov_b32 v%d, %d' % (vW2O, 4 * 1152))
        e('v_mad_u32_u24 v%d, v%d, v%d, v%d' % (vW2O, rho, vW2O, c16))
        e('s_mul_i32 s59, s%d, %d' % (sW, 64 * 9216))
        e('s_lshl_b32 s60, s%d, 6' % sID)
        e('s_add_u32 s59, s59, s60')
        self.add64(sA, sW1, 's59')
        e('v_lshl_add_u32 v%d, v%d, 2, v%d' % (vM1R, rho, t2))
        e('v_lshl_add_u32 v%d, v%d, 1, s60' % (vB1, vM1R))
        e('global_load_ushort v%d, v%d, %s' % (vB1, vB1, sr(sB1)), 'B1')
        e('v_lshlrev_b32 v%d, 2, v%d' % (vM1R, vM1R))
        e('v_lshl_add_u32 v%d, v%d, 5, v%d' % (vM1R, t3, vM1R))
        e('s_mul_i32 s59, s%d, %d' % (sID, 32 * 1152))
        e('s_lshl_b32 s60, s%d, 7' % sW)
        e('s_add_u32 s59, s59, s60')
        self.add64(sB, sW2, 's59')
        e('v_lshrrev_b32 v%d, 1, v%d' % (vHX, vL))
        e('v_lshl_add_u32 v%d, v%d, 2, s60' % (vHX, vHX))
        e('global_load_dword v%d, v%d, %s' % (vHX, vHX, sr(sX)), 'HX')
        e('s_lshl_b32 s59, s%d, 11' % sW)
        e('s_add_u32 s59, s59, 0x%x' % WS_HP)
        e('v_lshrrev_b32 v%d, 2, v%d' % (vHPA, vL))
        e('v_lshl_add_u32 v%d, v%d, 4, s59' % (vHPA, vHPA))
        e('v_lshl_add_u32 v%d, v%d, 8, v%d' % (vHPA, t2, vHPA))
        e('v_lshrrev_b32 v%d, 5, v%d' % (vM1W, vL))
        e('v_lshlrev_b32 v%d, 7, v%d' % (vM1W, vM1W))
        e('v_lshl_add_u32 v%d, v%d, 5, v%d' % (vM1W, t2, vM1W))
        e('v_and_b32 v%d, 16, v%d' % (t3, vL))
        e('s_lshl_b32 s61, s%d, 8' % sW)
        e('v_add3_u32 v%d, v%d, v%d, s61' % (vM1W, vM1W, t3))
        e('s_mul_i32 s59, s%d, 2304' % sID)
        e('s_add_u32 s59, s59, s61')
        e('s_add_u32 s59, s59, 0x%x' % WS_FP)
        e('v_lshl_add_u32 v%d, v%d, 1, v%d' % (vFPA, c16, t3))
        e('v_add_u32 v%d, s59, v%d' % (vFPA, vFPA))
        e('v_and_b32 v%d, 1, v%d' % (vSTW, vL))
        e('v_lshlrev_b32 v%d, 8, v%d' % (vSTW, vSTW))
        e('v_bfe_u32 v%d, v%d, 1, 3' % (vSTR, vL))
        e('v_lshl_add_u32 v%d, v%d, 5, v%d' % (vSTR, vSTR, vSTW))
        e('v_lshrrev_b32 v%d, 4, v%d' % (rho, vL))
        e('v_lshl_add_u32 v%d, v%d, 2, v%d' % (vSTW, rho, vSTW))
        e('s_lshl_b32 s59, s%d, 4' % sW)
        e('v_add_u32 v%d, s59, v%d' % (vSTW, vSTW))
        e('v_lshrrev_b32 v%d, 5, v%d' % (vOUT, vL))
        e('v_lshrrev_b32 v%d, 3, v%d' % (t3, t3))
        e('v_add_u32 v%d, v%d, v%d' % (vOUT, vOUT, t3))
        e('s_lshl_b32 s59, s%d, 3' % sID)
        e('v_lshl_add_u32 v%d, v%d, 1, s59' % (vOUT, vOUT))
        e('global_load_ushort v%d, v%d, %s' % (vFB, vOUT, sr(sB2)), 'FB')
        e('s_lshl_b32 s59, s%d, 4' % sID)
        e('s_add_u32 s59, s59, 0x%x' % WS_FP)
        e('v_mov_b32 v%d, 2304' % t3)
        e('v_mad_u32_u24 v%d, v%d, v%d, s59' % (vFF0, vL, t3))
        e('v_add_u32 v%d, %d, v%d' % (vFF1, 64 * 2304, vFF0))
        e('v_and_b32 v%d, 15, v%d' % (vFF2, vL))
        e('s_add_u32 s59, s59, %d' % (128 * 2304))
        e('v_mad_u32_u24 v%d, v%d, v%d, s59' % (vFF2, vFF2, t3))
        e('v_mov_b32 v%d, %s' % (vINVM, f32(1.0 / 576)))
        e('v_mov_b32 v%d, %s' % (vGC, f32(-2.0 * LOG2E * 0.7978845608028654 * 0.044715)))
        e('v_mov_b32 v%d, 0xffffff00' % vMASKM)

    def mlp_loads(self):
        out = []
        for t in range(4):
            it = ('load', 'global_load_dwordx4 %s, v%d, %s nt' % (vr(vW1 + 4 * t), vW1O, sr(sA)), 'A%d' % t)
            if t < 3:
                it += ('s_add_u32 s%d, s%d, 18432' % (sA, sA), 's_addc_u32 s%d, s%d, 0' % (sA + 1, sA + 1))
            out.append(it)
        for jj in range(4):
            out.append(('load', 'global_load_dwordx4 %s, v%d, %s offset:%d nt' % (vr(vW1 + 16 + 4 * jj), vW2O, sr(sB), 1152 * jj), 'B%d' % jj))
        return out


def main():
    ap = argparse.ArgumentParser()
    ap.add_argument('-o', default='k.s')
    ap.add_argument('--diag', type=int, default=0)
    ap.add_argument('--spin', type=int, default=0x2000)
    ap.add_argument('--nka', type=int, default=2)
    ap.add_argument('--win', type=int, default=2)
    ap.add_argument('--nb2', type=int, default=8)
    ap.add_argument('--nb2w', type=int, default=12)
    ap.add_argument('--winw', type=int, default=3)
    ap.add_argument('--upw', type=int, default=16)
    ap.add_argument('--winp', type=int, default=4)
    ap.add_argument('--mpre', type=int, default=0)
    ap.add_argument('--winm2', type=int, default=8)
    ap.add_argument('--nfb', type=int, default=64)
    ap.add_argument('--refine', type=int, default=0)
    cfg = ap.parse_args()
    g = Gen(cfg)
    txt = g.build()
    open(cfg.o, 'w').write(txt)
    print('wrote', cfg.o, 'instructions', g.e.nins)


if __name__ == '__main__':
    main()
```

```python
import sys, struct, argparse
sys.path.insert(0, 'dev')
from emit import Em, Ins, need

NAME = 'sequential_preLN__sliding_block_cached__mixer_channel_mlp__decode'


def f32(x):
    return '0x%08x' % struct.unpack('<I', struct.pack('<f', x))[0]


WS_QP = 0x10000
WS_ML = 0x30000
WS_OP = 0x40000
WS_HP = 0x80000
WS_FP = 0x90000
WS_TS = 0x100000
WS_DELTA = 0x200000

L_QPART = 0x0000
L_QL = 0x1200
L_LP = 0x1400
L_F = 0x1600
L_ST1 = 0x1700
L_ST2 = 0x1900
L_OPART = 0x2000
L_CP = 0x2000
LDS_SIZE = 0x4000

LOG2E = 1.4426950408889634
SCALE = 128 ** -0.5

DPP = 'row_mask:0xf bank_mask:0xf'
X1 = 'quad_perm:[1,0,3,2] ' + DPP
X2 = 'quad_perm:[2,3,0,1] ' + DPP
HM = 'row_half_mirror ' + DPP
MI = 'row_mirror ' + DPP


def ROR(n, bank=0xf):
    return 'row_ror:%d row_mask:0xf bank_mask:0x%x' % (n, bank)


def vr(a, n=4):
    return 'v[%d:%d]' % (a, a + n - 1)


def sr(a, n=2):
    return 's[%d:%d]' % (a, a + n - 1)


sX, sK, sV, sWQ, sWO, sW1, sB1, sW2, sB2, sOUT, sDBG, sWS = 4, 6, 8, 10, 12, 16, 18, 20, 22, 24, 26, 28
sW = 3
sT = 30
sT0 = 31
sLOG2E = 35
sONES = 36
sG, sS, sIDX, sXCD, sID = 39, 40, 41, 42, 43
sN, sVID = 37, 38
sKB, sVB, sQ0, sQ1 = 44, 46, 48, 50
sA, sB = 52, 54
sVALID = 56
sSPIN = 58
sTS = 64
sL8 = 98
sWS2 = 100
sPB = 0
sBIT0, sBIT1, sL2, sM1 = 48, 50, 14, 96

vL = 1
vM = 2
vKV = 6
vDQ = 7
vD = 8
vT = 12
vKt = 16
vVt = 48
vW1 = 80
vWQ = 112
vQO, vQX = 144, 148
vSC = 152
vU = 160
vWO, vP0, vMLA = 112, 113, 114
vA1 = 88
vA2 = 104
vW1O, vW2O = 120, 121
vEA = 122
(vHPA, vSTW, vSTR, vFPA, vM1W, vM1R, vINVM, vB1, vFF0, vFF1, vFF2, vOUT, vFB, vGC) = range(60, 74)
vHX = 74
vH = 76
vMA = 78
vMASKM = 82
vCS = 83
vONE = 84
SC = list(range(152, 160)) + list(range(137, 144))

NWO, NML = 9, 18


class Gen:
    def __init__(self, cfg):
        self.cfg = cfg
        self.e = Em()

    def ts(self, k):
        if self.cfg.diag == 1:
            self.e('s_memrealtime %s' % sr(sTS + 2 * k))

    def ts_store(self, nslots=16):
        e = self.e
        if self.cfg.diag != 1:
            return
        e('s_waitcnt lgkmcnt(0)')
        e('s_mul_i32 s59, s2, 9')
        e('s_add_u32 s59, s59, s%d' % sW)
        e('s_lshl_b32 s59, s59, 7')
        e('s_add_u32 s59, s59, 0x%x' % WS_TS)
        e('s_mov_b64 exec, 1')
        e('v_mov_b32 v0, s59')
        for k in range(0, nslots, 4):
            for j in range(4):
                e('v_mov_b32 v%d, s%d' % (vU + j, sTS + 2 * (k + j)))
            e('global_store_dwordx4 v0, %s, %s offset:%d' % (vr(vU), sr(sWS), 4 * k))
            e('s_nop 1')
        e('s_mov_b64 exec, -1')

    def pad_needed(self, text):
        ins = Ins(text)
        dist = 0
        pad = 0
        for p in reversed(self.e.hist):
            n = need(p, ins)
            if n > dist:
                pad = max(pad, n - dist)
            dist += p.ws
            if dist >= 12:
                break
        return pad

    def emit_item(self, it):
        if isinstance(it, str):
            self.e(it)
        elif it[0] == 'wait':
            self.e.wait_vm(it[1])
        elif it[0] == 'issue':
            self.issue_to(it[1])

    def weave(self, *streams):
        streams = [list(s) for s in streams if s]
        while any(streams):
            best = None
            for k, s in enumerate(streams):
                if not s:
                    continue
                it = s[0]
                p = self.pad_needed(it) if isinstance(it, str) else 0
                if best is None or p < best[0]:
                    best = (p, k)
                if p == 0:
                    break
            self.emit_item(streams[best[1]].pop(0))

    def issue_to(self, n):
        while self.iss < min(n, len(self.L)):
            it = self.L[self.iss]
            self.e(it[1], it[2])
            for x in it[3:]:
                self.e(x)
            self.iss += 1

    def pace(self, i, win):
        self.e.wait_vm(self.L[i][2])
        self.issue_to(i + 1 + win)

    def barrier(self):
        self.e('s_waitcnt lgkmcnt(0)')
        self.e('s_barrier')

    def add64(self, dst, base, off):
        self.e('s_add_u32 s%d, s%d, %s' % (dst, base, off))
        self.e('s_addc_u32 s%d, s%d, 0' % (dst + 1, base + 1))

    def mask64(self, s, lo, hi=None):
        self.e('s_mov_b32 s%d, 0x%08x' % (s, lo))
        self.e('s_mov_b32 s%d, 0x%08x' % (s + 1, lo if hi is None else hi))

    def rnd(self, d, s):
        return 'v_cvt_pk_bf16_f32 v%d, 0, v%d' % (d, s)

    def ln_scalars(self, S, Q, inv, m, sd, r, t):
        return [
            'v_mul_f32 v%d, %s, v%d' % (m, S, inv),
            'v_mul_f32 v%d, %s, v%d' % (t, Q, inv),
            'v_fma_f32 v%d, -v%d, v%d, v%d' % (t, m, m, t),
            self.rnd(m, m),
            self.rnd(t, t),
            'v_add_f32 v%d, %s, v%d' % (t, f32(1e-5), t),
            self.rnd(t, t),
            'v_sqrt_f32 v%d, v%d' % (sd, t),
            self.rnd(sd, sd),
            'v_rcp_f32 v%d, v%d' % (r, sd),
        ]

    def ln_apply(self, x, m, sd, r, t, refine=True):
        out = ['v_sub_f32 v%d, v%d, v%d' % (x, x, m), self.rnd(x, x)]
        if refine:
            out += ['v_mul_f32 v%d, v%d, v%d' % (t, x, r),
                    'v_fma_f32 v%d, -v%d, v%d, v%d' % (x, t, sd, x),
                    'v_fma_f32 v%d, v%d, v%d, v%d' % (x, x, r, t)]
        else:
            out += ['v_mul_f32 v%d, v%d, v%d' % (x, x, r)]
        return out

    def poll(self, name, items, acc, first_issued=False, fb=False, init=True, exit_on=None):
        e = self.e
        if init:
            for it in items:
                e('s_mov_b64 %s, %s' % (sr(it[3]), it[4] if len(it) > 4 else '-1'))
        e('s_movk_i32 s%d, 0x%x' % (sSPIN, self.cfg.spin))
        if first_issued:
            e('s_branch %s_w' % name)
        e.label(name)
        for it in items:
            e('s_mov_b64 exec, %s' % sr(it[3]))
            e(it[0])
        e.label(name + '_w')
        n = len(items)
        for k, it in enumerate(items):
            e('s_waitcnt vmcnt(%d)' % (n - 1 - k))
            e('s_mov_b64 exec, %s' % sr(it[3]))
            self.strip(it[1], acc)
            e('v_and_b32 v%d, 0xff, v%d' % (acc, acc))
            e('v_cmp_ne_u32 %s, 0, v%d' % (sr(it[3]), acc))
        e.vm = []
        ex = [items[k] for k in exit_on] if exit_on is not None else items
        if len(ex) == 1:
            e('s_cmp_lg_u64 %s, 0' % sr(ex[0][3]))
        else:
            e('s_or_b64 vcc, %s, %s' % (sr(ex[0][3]), sr(ex[1][3])))
            for it in ex[2:]:
                e('s_or_b64 vcc, vcc, %s' % sr(it[3]))
        e('s_cbranch_scc0 %s_x' % name)
        e('s_sub_u32 s%d, s%d, 1' % (sSPIN, sSPIN))
        if fb:
            e('s_cbranch_scc1 %s_x' % name)
            e('s_cmp_lg_u32 s%d, 0x%x' % (sSPIN, self.cfg.spin - self.cfg.nfb))
            e('s_cbranch_scc1 %s' % name)
            e('s_mov_b64 %s, %s' % (sr(sPB), sr(sWS2)))
            e('s_branch %s' % name)
        else:
            e('s_cbranch_scc0 %s' % name)
        e.label(name + '_x')
        e('s_mov_b64 exec, -1')

    def strip(self, base, acc):
        e = self.e
        for i in range(4):
            e('v_xor_b32 v%d, s%d, v%d' % (base + i, sT0 + i, base + i))
        e('v_or3_b32 v%d, v%d, v%d, v%d' % (acc, base, base + 1, base + 2))
        e('v_or_b32 v%d, v%d, v%d' % (acc, acc, base + 3))

    def publish(self, addr, data):
        e = self.e
        e('global_store_dwordx4 v%d, %s, %s' % (addr, vr(data), sr(sWS)))
        e('global_store_dwordx4 v%d, %s, %s sc1' % (addr, vr(data), sr(sWS2)))

    def tag(self, base, vmask):
        for i in range(4):
            self.e('v_and_or_b32 v%d, v%d, v%d, s%d' % (base + i, base + i, vmask, sT0 + i))

    def a_ops_plain(self, dst, src):
        return ['v_and_b32 v%d, v%d, v%d' % (dst + p, src, vM + p) for p in range(4)]

    def a_ops_rot(self, dst, src, j):
        out = []
        for p in range(4):
            n = (2 * (p - j)) % 16
            if n == 0:
                out.append('v_and_b32 v%d, v%d, v%d' % (dst + p, src, vM + p))
            else:
                out.append('v_and_b32_dpp v%d, v%d, v%d %s' % (dst + p, src, vM + p, ROR(n)))
        return out

    def mfma(self, d, a, b, first):
        return 'v_mfma_f32_16x16x32_bf16 %s, %s, %s, %s' % (vr(d), vr(a), vr(b), '0' if first else vr(d))

    def chain(self, A, M):
        e = self.e
        for x in A[0]:
            e(x)
        for j in range(len(M)):
            if j + 1 < len(M):
                for x in A[j + 1]:
                    e(x)
            e(M[j])

    def kvload(self, dst, base, t, tok):
        return ('load', 'global_load_dwordx4 %s, v%d, %s offset:%d nt' % (vr(dst), vKV, sr(base), 256 * t), tok)

    def kvlist(self, n):
        return [self.kvload(vKt + 4 * t, sKB, t, 'K%d' % t) for t in range(n)] + \
               [self.kvload(vKt + 4 * (n + t), sVB, t, 'V%d' % t) for t in range(n)]

    def pos(self, tok):
        return [it[2] for it in self.L].index(tok)

    def attention(self, n, nb2, win, pre, upto, after):
        e = self.e
        vQA, vLPA = vU, vU + 2
        e('v_and_b32 v%d, 8, v%d' % (vU + 1, vL))
        e('v_lshlrev_b32 v%d, 5, v%d' % (vQA, vU + 1))
        e('v_and_b32 v%d, 0xf0, v%d' % (vU + 3, vKV))
        e('v_lshrrev_b32 v%d, 4, v%d' % (vU + 4, vL))
        e('v_lshl_add_u32 v%d, v%d, 3, v%d' % (vLPA, vU + 4, vQA))
        e('v_add_u32 v%d, v%d, v%d' % (vQA, vQA, vU + 3))
        e('v_xor_b32 v%d, 0x100, v%d' % (vU + 3, vQA))
        e('s_lshl_b32 s59, s%d, 5' % sW)
        e('v_add_u32 v%d, s59, v%d' % (vLPA, vLPA))
        vSCL = vU + 4
        e('v_mov_b32 v%d, %s' % (vSCL, f32(SCALE)))
        self.vOPA = vU + 1
        e('s_lshl_b32 s59, s%d, 10' % sW)
        e('v_lshl_add_u32 v%d, v%d, 4, s59' % (self.vOPA, vL))
        for i in range(min(nb2, len(self.L))):
            self.pace(i, win)
        self.issue_to(max(pre, n))
        self.ts(3)
        e('s_barrier')
        e('ds_read_b128 %s, v%d offset:%d' % (vr(vQO), vQA, L_QL))
        e('ds_read_b128 %s, v%d offset:%d' % (vr(vQX), vU + 3, L_QL))
        self.issue_to(upto)
        self.ts(4)
        e('s_waitcnt lgkmcnt(0)')
        prevR = []
        for t in range(n):
            a, b = SC[t], (vT + (t & 1))
            D = [('wait', 'K%d' % t)]
            for k in range(4):
                D.append('v_dot2_f32_bf16 v%d, v%d, v%d, %s' % (a, vKt + 4 * t + k, vQO + k, '0' if k == 0 else 'v%d' % a))
                D.append('v_dot2_f32_bf16 v%d, v%d, v%d, %s' % (b, vKt + 4 * t + k, vQX + k, '0' if k == 0 else 'v%d' % b))
            self.weave(prevR, D)
            prevR = [
                'v_add_f32_dpp v%d, v%d, v%d %s' % (a, b, a, ROR(8)),
                'v_add_f32_dpp v%d, v%d, v%d %s' % (a, a, a, X1),
                'v_add_f32_dpp v%d, v%d, v%d %s' % (a, a, a, X2),
                'v_add_f32_dpp v%d, v%d, v%d %s' % (a, a, a, HM),
                self.rnd(a, a),
                'v_mul_f32 v%d, v%d, v%d' % (a, a, vSCL),
                self.rnd(a, a),
            ]
        mx = vT + 2
        rest = list(SC[:n - 1])
        pre_ = []
        cur = rest.pop(0)
        while len(rest) >= 2:
            pre_.append('v_max3_f32 v%d, v%d, v%d, v%d' % (mx, cur, rest[0], rest[1]))
            cur = mx
            rest = rest[2:]
        self.weave(prevR, pre_)
        if rest:
            e('v_max3_f32 v%d, v%d, v%d, v%d' % (mx, cur, rest[0], SC[n - 1]))
        else:
            e('v_max_f32 v%d, v%d, v%d' % (mx, cur, SC[n - 1]))
        e('v_mov_b32 v%d, v%d' % (vT, mx))
        e('v_permlane32_swap_b32 v%d, v%d' % (vT, mx))
        e('v_max_f32 v%d, v%d, v%d' % (mx, mx, vT))
        e('v_mov_b32 v%d, v%d' % (vT, mx))
        e('v_permlane16_swap_b32 v%d, v%d' % (vT, mx))
        e('v_max_f32 v%d, v%d, v%d' % (mx, mx, vT))
        self.ts(5)
        e('v_mul_f32 v%d, s%d, v%d' % (vT, sLOG2E, mx))
        for t in range(n):
            e('v_fma_f32 v%d, v%d, s%d, -v%d' % (SC[t], SC[t], sLOG2E, vT))
        for t in range(n):
            e('v_exp_f32 v%d, v%d' % (SC[t], SC[t]))
        ls = vT + 3
        acc = [vT, vT + 1, ls]
        assert n >= 2
        nacc = min(3, n // 2)
        acc = acc[3 - nacc:]
        for k in range(nacc):
            e('v_add_f32 v%d, v%d, v%d' % (acc[k], SC[2 * k], SC[2 * k + 1]))
        for t in range(2 * nacc, n):
            k = (t - 2 * nacc) % nacc
            e('v_add_f32 v%d, v%d, v%d' % (acc[k], acc[k], SC[t]))
        for k in range(nacc - 1):
            e('v_add_f32 v%d, v%d, v%d' % (ls, ls, acc[k]))
        e('s_mov_b64 exec, %s' % sr(sL8))
        e('ds_write_b64 v%d, %s offset:%d' % (vLPA, vr(mx, 2), L_LP))
        e('s_mov_b64 exec, -1')
        for t in range(n):
            e('v_cvt_pk_bf16_f32 v%d, v%d, v%d' % (SC[t], SC[t], SC[t]))
        for t in range(n):
            for x in self.a_ops_plain(vKt + 4 * t, SC[t]):
                e(x)
        self.issue_to(max(after, self.pos('V%d' % (n - 1)) + 1))
        self.ts(6)

    def pv(self, n, win, lim):
        e = self.e
        for t in range(n):
            assert self.pos('V%d' % t) < self.iss
            e.wait_vm('V%d' % t)
            e(self.mfma(vD, vKt + 4 * t, vKt + 4 * (n + t), t == 0))
            self.issue_to(min(lim, self.pos('V%d' % t) + 1 + win))
        e('ds_write_b128 v%d, %s offset:%d' % (self.vOPA, vr(vD), L_OPART))
        self.ts(7)
        self.barrier()

    def build(self):
        e = self.e
        cfg = self.cfg
        K = NAME + '_kernel'
        plan = self.plan
        e.raw('; @launch grid=(256,1,1) block=(576,1,1) lds=%d' % LDS_SIZE)
        e.raw('; plan ' + ' '.join('%d,%d,%d' % x for x in plan))
        e.raw('.amdgcn_target "amdgcn-amd-amdhsa--gfx950"')
        e.raw('.text')
        e.raw('.globl %s' % K)
        e.raw('.p2align 8')
        e.raw('.type %s,@function' % K)
        e.label(K)
        e('s_cmp_ge_u32 s2, 0x100')
        e('s_cbranch_scc1 L_end')
        e('s_load_dwordx16 s[4:19], s[0:1], 0')
        e('s_load_dwordx8 s[20:27], s[0:1], 64')
        e('s_load_dwordx2 s[28:29], s[0:1], 96')
        self.ts(0)
        e('s_getpc_b64 s[60:61]')
        e.label('L_pc')
        e('v_lshlrev_b32 v12, 7, v0')
        e('v_min_u32 v12, L_end-L_pc, v12')
        e('v_mov_b32 v14, s60')
        e('v_mov_b32 v15, s61')
        e('v_add_co_u32 v14, vcc, v14, v12')
        e('v_lshrrev_b32 v13, 6, v0')
        e('v_and_b32 v%d, 63, v0' % vL)
        e('v_addc_co_u32 v15, vcc, 0, v15, vcc')
        e('v_readfirstlane_b32 s%d, v13' % sW)
        e('global_load_dword v%d, v[14:15], off' % (vU + 7), 'PF')
        e('s_lshr_b32 m0, s2, 4')
        ent = [b | (n << 7) | (v << 11) for b, n, v in plan]
        for i in range(16):
            e('s_mov_b32 s%d, 0x%08x' % (80 + i, ent[2 * i] | (ent[2 * i + 1] << 16)))
        e('s_movrels_b32 s62, s80')
        e('s_lshl_b32 s59, s2, 1')
        e('s_and_b32 s59, s59, 16')
        e('s_lshr_b32 s62, s62, s59')
        e('s_bfe_u32 s%d, s62, 0x40007' % sN)
        e('s_bfe_u32 s%d, s62, 0x5000b' % sVID)
        e('s_and_b32 s62, s62, 127')
        e('s_and_b32 s%d, s2, 7' % sXCD)
        e('s_lshr_b32 s%d, s2, 3' % sIDX)
        e('s_lshr_b32 s%d, s%d, 4' % (sG, sIDX))
        e('s_lshl1_add_u32 s%d, s%d, s%d' % (sG, sXCD, sG))
        e('s_and_b32 s%d, s%d, 15' % (sS, sIDX))
        e('s_lshr_b32 s59, s%d, 2' % sS)
        e('s_mul_i32 s59, s59, 144')
        e('s_lshl4_add_u32 s59, s%d, s59' % sW)
        e('s_lshl_b32 s60, s59, 13')
        e('s_lshl_b32 s61, s%d, 9' % sG)
        e('s_add_u32 s60, s60, s61')
        e('s_and_b32 s61, s%d, 3' % sS)
        e('s_lshl_b32 s61, s61, 7')
        e('s_add_u32 s60, s60, s61')
        e('s_lshl_b32 s59, s59, 1')
        e('s_lshl_b32 s61, s%d, 24' % sG)
        e('s_lshl_b32 s62, s62, 13')
        e('s_add_u32 s61, s61, s62')
        e('s_and_b32 s62, s%d, 7' % sW)
        e('s_mul_i32 s62, s62, s%d' % sN)
        e('s_lshl_b32 s62, s62, 10')
        e('s_add_u32 s61, s61, s62')
        e('s_add_u32 s61, s61, 0x%x' % (61440 * 256))
        e('s_lshl_b32 s62, s%d, 8' % sN)
        vRHO, vC16, vXA, vXB, vXC, vQOFF = 12, 13, 14, 15, vU, vU + 1
        e('v_lshrrev_b32 v%d, 3, v%d' % (vRHO, vL))
        e('v_and_b32 v%d, 7, v%d' % (vC16, vL))
        e('v_lshlrev_b32 v%d, 4, v%d' % (vC16, vC16))
        e('v_lshlrev_b32 v%d, 4, v%d' % (vXA, vL))
        e('v_lshlrev_b32 v%d, 1, v%d' % (vXB, vL))
        e('v_lshl_add_u32 v%d, v%d, 2, s59' % (vXC, vRHO))
        e('v_lshl_add_u32 v%d, v%d, 14, v%d' % (vQOFF, vRHO, vC16))
        e('v_lshrrev_b32 v%d, 4, v%d' % (vKV, vL))
        e('v_and_b32 v%d, 0xf0, v%d' % (vU + 2, vXA))
        e('v_mad_u32_u24 v%d, v%d, s62, v%d' % (vKV, vKV, vU + 2))
        e('s_waitcnt lgkmcnt(0)')
        e('s_load_dword s%d, %s, 0' % (sT, sr(sWS)))
        vX = vWQ + 8
        e('global_load_dwordx4 %s, v%d, %s' % (vr(vX), vXA, sr(sX)), 'XA')
        e('global_load_ushort v%d, v%d, %s offset:1024' % (vX + 4, vXB, sr(sX)), 'XB')
        e('global_load_dword v%d, v%d, %s' % (vX + 5, vXC, sr(sX)), 'XC')
        self.add64(sQ0, sWQ, 's60')
        e('global_load_dwordx4 %s, v%d, %s nt' % (vr(vWQ), vQOFF, sr(sQ0)), 'Q0')
        self.add64(sQ1, sQ0, '0x2000')
        e('global_load_dwordx4 %s, v%d, %s nt' % (vr(vWQ + 4), vQOFF, sr(sQ1)), 'Q1')
        self.add64(sKB, sK, 's61')
        self.add64(sVB, sV, 's61')
        nmin = min(n for _, n, _ in plan)
        assert cfg.nka <= nmin and cfg.nkb <= nmin
        self.L = self.kvlist(nmin)
        self.iss = 0
        e('s_cmp_eq_u32 s%d, 8' % sW)
        e('s_cbranch_scc1 L_w8_pre')
        snapA = e.snap()
        if cfg.b0:
            e('s_barrier')
        self.issue_to(cfg.nka)
        e('s_branch L_pre_join')
        snapJ = e.snap()
        e.restore(snapA)
        e.label('L_w8_pre')
        e('s_lshl4_add_u32 s59, s%d, s%d' % (sG, sS))
        e('s_lshl_b32 s60, s59, 8')
        e('s_add_u32 s60, s60, 0x%x' % WS_QP)
        e('v_lshl_add_u32 v21, v%d, 7, s60' % vL)
        e('s_lshl_b32 s60, s59, 10')
        e('s_add_u32 s60, s60, 0x%x' % (WS_OP - 256))
        e('s_mov_b64 exec, -4')
        e('v_lshl_add_u32 v21, v%d, 7, s60' % vL)
        e('s_lshl_b32 s60, s59, 7')
        e('s_add_u32 s60, s60, 0x%x' % WS_ML)
        e('s_lshl_b64 exec, -1, 10')
        e('v_mov_b32 v21, s60')
        e('s_mov_b64 exec, 0x7ff')
        for t in range(max(1, cfg.nka)):
            e('global_load_dword v18, v21, %s sc1' % sr(sWS), 'K%d' % t)
            if t == 0:
                e('s_mov_b64 exec, 1')
        e('s_mov_b64 exec, -1')
        if cfg.b0:
            e('s_barrier')
        e('v_mov_b32 v20, 0')
        e('v_mov_b32 v21, -1.0')
        e('v_lshlrev_b32 v22, 2, v%d' % vL)
        e('v_lshlrev_b32 v23, 3, v%d' % vL)
        e('ds_write2st64_b32 v22, v20, v20 offset0:%d offset1:%d' % (L_ST1 // 256, L_ST1 // 256 + 1))
        e('ds_write2st64_b32 v22, v20, v20 offset0:%d offset1:%d' % (L_ST2 // 256, L_ST2 // 256 + 1))
        e('ds_write_b64 v23, v[20:21] offset:%d' % L_LP)
        e.label('L_pre_join')
        e.restore(([], snapJ[1]))
        e('s_mov_b64 %s, %s' % (sr(sPB), sr(sWS)))
        self.add64(sWS2, sWS, '0x%x' % WS_DELTA)
        self.ts(1)
        e('v_and_b32 v%d, 3, v%d' % (vU + 2, vL))
        e('v_lshlrev_b32 v%d, 4, v%d' % (vU + 2, vU + 2))
        e('v_mov_b32 v%d, 0xffff' % (vU + 4))
        e('v_mov_b32 v%d, 0' % (vU + 5))
        e('v_lshlrev_b64 %s, v%d, %s' % (vr(vU + 4, 2), vU + 2, vr(vU + 4, 2)))
        e('v_bfe_i32 v%d, v%d, 2, 1' % (vU + 2, vL))
        e('v_and_b32 v%d, v%d, v%d' % (vM + 2, vU + 4, vU + 2))
        e('v_and_b32 v%d, v%d, v%d' % (vM + 3, vU + 5, vU + 2))
        e('v_xor_b32 v%d, v%d, v%d' % (vM + 0, vU + 4, vM + 2))
        e('v_xor_b32 v%d, v%d, v%d' % (vM + 1, vU + 5, vM + 3))
        e('v_lshrrev_b32 v%d, 5, v%d' % (vDQ, vL))
        e('v_lshlrev_b32 v%d, 8, v%d' % (vDQ, vDQ))
        e('v_lshl_add_u32 v%d, v%d, 1, v%d' % (vDQ, vC16, vDQ))
        e('v_and_b32 v%d, 16, v%d' % (vU + 2, vL))
        e('s_lshl_b32 s59, s%d, 9' % sW)
        e('v_add3_u32 v%d, v%d, v%d, s59' % (vDQ, vDQ, vU + 2))
        self.mask64(sVALID, 0x00ff00ff, 0xff00ff00)
        self.mask64(sL8, 0x01010101)
        e('s_mov_b32 s%d, %s' % (sLOG2E, f32(LOG2E)))
        e('s_mov_b32 s%d, 0x3f803f80' % sONES)
        vINV = vU + 6
        e('v_mov_b32 v%d, %s' % (vINV, f32(1.0 / 576)))
        e.wait_vm('XB')
        vS, vQ = vU + 2, vU + 3
        for k in range(5):
            e('v_dot2_f32_bf16 v%d, v%d, s%d, %s' % (vS, vX + k, sONES, '0' if k == 0 else 'v%d' % vS))
            e('v_dot2_f32_bf16 v%d, v%d, v%d, %s' % (vQ, vX + k, vX + k, '0' if k == 0 else 'v%d' % vQ))
        for d in (X1, X2, HM, MI):
            e('v_add_f32_dpp v%d, v%d, v%d %s' % (vS, vS, vS, d))
            e('v_add_f32_dpp v%d, v%d, v%d %s' % (vQ, vQ, vQ, d))
        for d in ('row_bcast:15 row_mask:0xa bank_mask:0xf', 'row_bcast:31 row_mask:0xc bank_mask:0xf'):
            e('v_add_f32_dpp v%d, v%d, v%d %s' % (vS, vS, vS, d))
            e('v_add_f32_dpp v%d, v%d, v%d %s' % (vQ, vQ, vQ, d))
        e('v_readlane_b32 s59, v%d, 63' % vS)
        e('v_readlane_b32 s60, v%d, 63' % vQ)
        e.wait_vm('XC')
        y0, y1 = vX, vX + 1
        e('v_lshlrev_b32 v%d, 16, v%d' % (y0, vX + 5))
        e('v_and_b32 v%d, 0xffff0000, v%d' % (y1, vX + 5))
        m, sd, r, t = vU + 2, vU + 3, vU + 4, vU + 5
        for x in self.ln_scalars('s59', 's60', vINV, m, sd, r, t):
            e(x)
        self.weave(self.ln_apply(y0, m, sd, r, vX + 2), self.ln_apply(y1, m, sd, r, vX + 3))
        e('v_cvt_pk_bf16_f32 v%d, v%d, v%d' % (y0, y0, y0))
        e('v_cvt_pk_bf16_f32 v%d, v%d, v%d' % (y1, y1, y1))
        A0, A1 = vT, vX + 4
        for x in self.a_ops_plain(A0, y0):
            e(x)
        for x in self.a_ops_plain(A1, y1):
            e(x)
        e.wait_vm('Q0')
        e(self.mfma(vD, A0, vWQ, True))
        e.wait_vm('Q1')
        e(self.mfma(vD, A1, vWQ + 4, False))
        e('s_waitcnt lgkmcnt(0)')
        e('s_add_u32 s%d, s%d, 0x01010101' % (sT, sT))
        e('s_and_b32 s%d, s%d, 0xff' % (sT0, sT))
        e('s_bfe_u32 s%d, s%d, 0x80008' % (sT0 + 1, sT))
        e('s_bfe_u32 s%d, s%d, 0x80010' % (sT0 + 2, sT))
        e('s_lshr_b32 s%d, s%d, 24' % (sT0 + 3, sT))
        e('s_mov_b64 exec, %s' % sr(sVALID))
        e('ds_write_b128 v%d, %s offset:%d' % (vDQ, vr(vD), L_QPART))
        e('s_mov_b64 exec, -1')
        self.ts(2)
        e('s_cmp_eq_u32 s%d, 8' % sW)
        e('s_cbranch_scc1 L_comm')
        snapC0 = e.snap()
        self.issue_to(cfg.nkb)
        iss0 = self.iss
        self.barrier()
        e('s_cmp_lt_u32 s%d, %d' % (sVID, NWO))
        e('s_cbranch_scc1 L_wo')
        e('s_cmp_lt_u32 s%d, %d' % (sVID, NWO + NML))
        e('s_cbranch_scc1 L_mlp')
        snapB1 = e.snap()

        def variants(lo, hi):
            return sorted({n for _, n, v in plan if lo <= v < hi})

        def dispatch(tag, ns):
            for n in ns[1:]:
                e('s_cmp_eq_u32 s%d, %d' % (sN, n))
                e('s_cbranch_scc1 L_%s_%d' % (tag, n))

        ns = variants(NWO + NML, 32)
        dispatch('idle', ns)
        for n in ns:
            e.restore(snapB1)
            e.label('L_idle_%d' % n)
            self.L = self.kvlist(n)
            self.iss = iss0
            self.attention(n, n + cfg.nb2i, cfg.wini, n + cfg.prei, n + cfg.upi, 2 * n)
            self.pv(n, 0, 2 * n)
            self.ts_store()
            e('s_endpgm')

        e.restore(snapB1)
        e.label('L_mlp')
        self.mlp_early()
        ns = variants(NWO, NWO + NML)
        dispatch('mlp', ns)
        snapM = e.snap()
        for n in ns:
            e.restore(snapM)
            e.label('L_mlp_%d' % n)
            assert n <= 9
            L = self.kvlist(n)
            W = self.mlp_loads()
            for k, x in enumerate(cfg.ains):
                at = [it[2] for it in L].index('V%d' % (n - 1 - x)) + 1
                while at < len(L) and L[at][2][0] in 'AB':
                    at += 1
                L.insert(at, W[k])
            lim = len(L)
            self.L = L + W[len(cfg.ains):]
            self.iss = iss0
            self.attention(n, n + cfg.nb2, cfg.win, n + cfg.pre, n + cfg.up, min(lim, n + cfg.aft))
            self.pv(n, cfg.winm, lim)
            e('s_barrier')
            self.issue_to(len(self.L))
            e('s_branch L_mlp_w')

        e.restore(snapB1)
        e.label('L_wo')
        t0, t1, t2 = vEA, vEA + 1, vEA + 2
        e('v_lshrrev_b32 v%d, 3, v%d' % (t0, vL))
        e('v_and_b32 v%d, 0x70, v%d' % (vWO, vKV))
        e('v_mov_b32 v%d, %d' % (t1, 8 * 1152))
        e('v_mad_u32_u24 v%d, v%d, v%d, v%d' % (vWO, t0, t1, vWO))
        e('s_lshl3_add_u32 s59, s%d, s%d' % (sXCD, sW))
        e('s_mul_i32 s59, s59, %d' % (64 * 1152))
        e('s_lshl_b32 s60, s%d, 7' % sVID)
        e('s_add_u32 s59, s59, s60')
        e('s_add_u32 s59, s59, 4032')
        self.add64(sA, sWO, 's59')
        e('v_and_b32 v%d, 3, v%d' % (t1, vL))
        e('v_lshrrev_b32 v%d, 2, v%d' % (t2, vL))
        e('v_lshlrev_b32 v%d, 4, v%d' % (vP0, t2))
        e('v_lshl_add_u32 v%d, v%d, 12, v%d' % (vP0, t1, vP0))
        e('s_lshr_b32 s59, s%d, 2' % sW)
        e('s_lshl1_add_u32 s59, s%d, s59' % sXCD)
        e('s_lshl_b32 s60, s59, 14')
        e('s_and_b32 s61, s%d, 3' % sW)
        e('s_lshl_b32 s61, s61, 8')
        e('s_add_u32 s60, s60, s61')
        e('s_add_u32 s60, s60, 0x%x' % WS_OP)
        e('v_add_u32 v%d, s60, v%d' % (vP0, vP0))
        e('v_and_b32 v%d, 3, v%d' % (t2, t2))
        e('v_lshl_add_u32 v%d, v%d, 2, v%d' % (t2, t1, t2))
        e('s_lshl_b32 s59, s59, 11')
        e('s_add_u32 s59, s59, 0x%x' % WS_ML)
        e('v_lshl_add_u32 v%d, v%d, 7, s59' % (vMLA, t2))
        ns = variants(0, NWO)
        dispatch('wo', ns)
        snapW = e.snap()
        for n in ns:
            e.restore(snapW)
            e.label('L_wo_%d' % n)
            assert n <= 8
            W = [('load', 'global_load_dwordx4 %s, v%d, %s offset:%d nt' % (vr(vW1 + 4 * j), vWO, sr(sA), 1152 * j - 4032), 'W%d' % j)
                 for j in range(8)]
            L = self.kvlist(n)
            self.L = L[:n] + W[:cfg.wmid] + L[n:] + W[cfg.wmid:]
            self.iss = iss0
            self.attention(n, n + cfg.nb2w, cfg.winw, n + cfg.prew, n + cfg.upw, n + cfg.aftw)
            self.pv(n, cfg.winp, len(self.L))
            e('s_barrier')
            self.issue_to(len(self.L))
            if n != ns[-1]:
                e('s_branch L_wo_w')
        e.label('L_wo_w')
        e.restore(([], ['W7']))
        if cfg.diag == 1:
            e.wait_vm0()
            self.ts(13)
        G = vVt + 16
        F = vVt + 20
        opl = [('global_load_dwordx4 %s, v%d, %s offset:%d sc1' % (vr(vVt + 4 * k), vP0, sr(sPB), 1024 * k), vVt + 4 * k, 'f24',
                [44, 46, 48, 50][k]) for k in range(4)]
        mli = ('global_load_dwordx4 %s, v%d, %s sc1' % (vr(G), vMLA, sr(sPB)), G, 'f24', 52)
        self.poll('L_ml_poll', [mli] + opl, vT, fb=True, exit_on=[0])
        self.ts(14)
        for it in opl:
            e('s_mov_b64 exec, %s' % sr(it[3]))
            e(it[0])
        e('s_mov_b64 exec, -1')
        e('s_bitcmp0_b32 s%d, 1' % sW)
        e('s_cbranch_scc1 L_wo_h0')
        e('v_mov_b32 v%d, v%d' % (G, G + 2))
        e('v_mov_b32 v%d, v%d' % (G + 1, G + 3))
        e.label('L_wo_h0')
        e('v_mov_b32 v%d, v%d' % (G + 2, G))
        for d in (X1, X2, HM, MI):
            e('v_max_f32_dpp v%d, v%d, v%d %s' % (G + 2, G + 2, G + 2, d))
        e('v_sub_f32 v%d, v%d, v%d' % (G, G, G + 2))
        e('v_mul_f32 v%d, s%d, v%d' % (G, sLOG2E, G))
        e('v_exp_f32 v%d, v%d' % (G, G))
        e('v_mul_f32 v%d, v%d, v%d' % (G + 1, G + 1, G))
        for d in (X1, X2, HM, MI):
            e('v_add_f32_dpp v%d, v%d, v%d %s' % (G + 1, G + 1, G + 1, d))
        e('v_rcp_f32 v%d, v%d' % (G + 1, G + 1))
        e('v_mul_f32 v%d, v%d, v%d' % (G, G, G + 1))
        for k in range(4):
            e('ds_swizzle_b32 v%d, v%d offset:0x%x' % (F + k, G, 0x13 | ((4 * k) << 5)))
        self.poll('L_wo_poll', opl, vT, first_issued=True, fb=True, init=False)
        self.ts(8)
        e('s_waitcnt lgkmcnt(0)')
        for k in range(4):
            hi = k & 1
            for hh in (0, 2):
                if k == 0:
                    e('v_pk_mul_f32 %s, %s, %s op_sel:[0,0] op_sel_hi:[1,0]' % (vr(vVt + hh, 2), vr(vVt + hh, 2), vr(F, 2)))
                else:
                    e('v_pk_fma_f32 %s, %s, %s, %s op_sel:[0,%d,0] op_sel_hi:[1,%d,1]' % (
                        vr(vVt + hh, 2), vr(vVt + 4 * k + hh, 2), vr(F + (k & 2), 2), vr(vVt + hh, 2), hi, hi))
        for d in (X1, X2):
            for c in range(4):
                e('v_add_f32_dpp v%d, v%d, v%d %s' % (vVt + c, vVt + c, vVt + c, d))
        for c in range(4):
            e('v_cvt_pk_bf16_f32 v%d, v%d, v%d' % (vVt + c, vVt + c, vVt + c))
        A = []
        for j in range(8):
            ops = []
            for p in range(4):
                own = (p >> 1) == (j >> 2)
                if own:
                    ops.append('v_and_b32 v%d, v%d, v%d' % (vKt + 4 * j + p, vVt + (j & 3), vM + p))
                else:
                    ops.append('v_and_b32_dpp v%d, v%d, v%d %s' % (vKt + 4 * j + p, vVt + (j & 3), vM + p, ROR(4 if j < 4 else 12)))
            A.append(ops)
        self.chain(A, [self.mfma(vD, vKt + 4 * j, vW1 + 4 * j, j == 0) for j in range(8)])
        e('s_mov_b64 exec, %s' % sr(sVALID))
        e('ds_write_b128 v%d, %s offset:%d' % (vDQ, vr(vD), L_QPART))
        e('s_mov_b64 exec, -1')
        self.ts(9)
        self.barrier()
        self.ts_store()
        e('s_endpgm')

        e.restore(snapC0)
        e.label('L_comm')
        vMASK = 23
        e('v_lshrrev_b32 v26, 2, v%d' % vL)
        e('v_and_b32 v27, 3, v%d' % vL)
        e('v_lshlrev_b32 v22, 4, v26')
        e('v_lshl_add_u32 v22, v27, 8, v22')
        e('v_mov_b32 v%d, 0xffffff00' % vMASK)
        e('s_lshl_b32 s59, s%d, 12' % sG)
        e('s_add_u32 s59, s59, 0x%x' % WS_QP)
        e('s_lshl_b32 s60, s%d, 8' % sS)
        e('s_add_u32 s60, s60, s59')
        e('v_lshl_add_u32 v26, v26, 4, s60')
        e('v_lshl_add_u32 v27, v%d, 4, s59' % vL)
        e('v_lshlrev_b32 v28, 3, v%d' % vL)
        for c in range(4):
            e('v_mov_b32 v%d, 0' % (48 + c))
        self.mask64(60, 0x33333333)
        self.mask64(62, 0x11111111)
        self.barrier()
        for k in range(4):
            e('ds_read_b128 %s, v22 offset:%d' % (vr(32 + 4 * k), L_QPART + 1024 * k))
        e('s_mov_b64 exec, s[60:61]')
        e('ds_read_b128 %s, v22 offset:%d' % (vr(48), L_QPART + 4096))
        e('s_mov_b64 exec, -1')
        e('s_waitcnt lgkmcnt(%d)' % (0 if cfg.diag else 3))
        for hh in (0, 2):
            e('v_pk_add_f32 %s, %s, %s' % (vr(32 + hh, 2), vr(32 + hh, 2), vr(36 + hh, 2)))
        e('s_waitcnt lgkmcnt(%d)' % (0 if cfg.diag else 1))
        for hh in (0, 2):
            e('v_pk_add_f32 %s, %s, %s' % (vr(40 + hh, 2), vr(40 + hh, 2), vr(44 + hh, 2)))
        for hh in (0, 2):
            e('v_pk_add_f32 %s, %s, %s' % (vr(32 + hh, 2), vr(32 + hh, 2), vr(40 + hh, 2)))
        e('s_waitcnt lgkmcnt(0)')
        for hh in (0, 2):
            e('v_pk_add_f32 %s, %s, %s' % (vr(32 + hh, 2), vr(32 + hh, 2), vr(48 + hh, 2)))
        for d in (X1, X2):
            for c in range(4):
                e('v_add_f32_dpp v%d, v%d, v%d %s' % (32 + c, 32 + c, 32 + c, d))
        self.tag(32, vMASK)
        e('s_mov_b64 exec, s[62:63]')
        self.publish(26, 32)
        e('s_mov_b64 exec, -1')
        self.ts(3)
        qitems = [('global_load_dwordx4 %s, v27, %s offset:%d sc1' % (vr(48 + 4 * r_), sr(sPB), 1024 * r_), 48 + 4 * r_, 'f24',
                   [44, 46, 48, 50][r_]) for r_ in range(4)]
        self.poll('L_q_poll', qitems, 25, fb=True)
        for hh in (0, 2):
            e('v_pk_add_f32 %s, %s, %s' % (vr(48 + hh, 2), vr(48 + hh, 2), vr(52 + hh, 2)))
            e('v_pk_add_f32 %s, %s, %s' % (vr(56 + hh, 2), vr(56 + hh, 2), vr(60 + hh, 2)))
        for hh in (0, 2):
            e('v_pk_add_f32 %s, %s, %s' % (vr(48 + hh, 2), vr(48 + hh, 2), vr(56 + hh, 2)))
        e('v_cvt_pk_bf16_f32 v48, v48, v49')
        e('v_cvt_pk_bf16_f32 v49, v50, v51')
        e('ds_write_b64 v28, v[48:49] offset:%d' % L_QL)
        self.ts(4)
        self.barrier()
        self.mlp_early()
        e('s_sub_u32 s59, s%d, %d' % (sVID, NWO))
        e('s_cmp_lt_u32 s59, %d' % NML)
        e('s_cbranch_scc0 L_c_nopre')
        self.L = self.mlp_loads()
        self.iss = 0
        self.issue_to(8)
        e.label('L_c_nopre')
        e.restore(([], []))
        e('v_lshrrev_b32 v24, 5, v%d' % vL)
        e('v_lshlrev_b32 v24, 9, v24')
        e('v_and_b32 v25, 15, v%d' % vL)
        e('v_lshl_add_u32 v24, v25, 5, v24')
        e('v_bfe_u32 v25, v%d, 4, 1' % vL)
        e('v_lshl_add_u32 v24, v25, 4, v24')
        e('s_lshl_b32 s59, s%d, 14' % sG)
        e('s_lshl_b32 s60, s%d, 10' % sS)
        e('s_add_u32 s59, s59, s60')
        e('s_add_u32 s59, s59, 0x%x' % WS_OP)
        e('v_add_u32 v24, s59, v24')
        e('v_lshlrev_b32 v25, 4, v%d' % vL)
        e('s_lshl4_add_u32 s59, s%d, s%d' % (sG, sS))
        e('s_lshl_b32 s59, s59, 7')
        e('s_add_u32 s59, s59, 0x%x' % WS_ML)
        e('v_mov_b32 v26, s59')
        e('v_lshlrev_b32 v27, 3, v%d' % vL)
        e('v_lshrrev_b32 v28, 5, v%d' % vL)
        e('v_lshlrev_b32 v28, 5, v28')
        e('v_and_b32 v29, 0x3c, v%d' % vL)
        e('s_movk_i32 s%d, 0x%x' % (sSPIN, cfg.spin))
        e.label('L_lp_poll')
        e('ds_read_b64 v[32:33], v27 offset:%d' % L_LP)
        e('s_waitcnt lgkmcnt(0)')
        e('v_cmp_gt_f32 vcc, 0, v33')
        e('s_sub_u32 s%d, s%d, 1' % (sSPIN, sSPIN))
        e('s_cbranch_scc1 L_lp_poll_x')
        e('s_cbranch_vccnz L_lp_poll')
        e.label('L_lp_poll_x')
        e('v_max_f32_dpp v36, v32, v32 %s' % ROR(4))
        e('v_max_f32_dpp v36, v36, v36 %s' % ROR(8))
        e('v_mov_b32 v37, v36')
        e('v_permlane16_swap_b32 v37, v36')
        e('v_max_f32 v36, v36, v37')
        e('v_sub_f32 v37, v32, v36')
        e('v_mul_f32 v37, s%d, v37' % sLOG2E)
        e('v_exp_f32 v37, v37')
        e('v_mov_b32 v32, v36')
        e('v_mul_f32 v33, v33, v37')
        e('ds_write_b32 v29, v37 offset:%d' % L_F)
        for d in (X1, X2, ROR(4), ROR(8)):
            e('v_add_f32_dpp v33, v33, v33 %s' % d)
        e('v_mov_b32 v38, v33')
        e('v_permlane16_swap_b32 v38, v33')
        e('v_add_f32 v33, v33, v38')
        e('v_permlane32_swap_b32 v32, v34')
        e('v_permlane32_swap_b32 v33, v35')
        self.tag(32, vMASK)
        e('s_mov_b64 exec, 1')
        self.publish(26, 32)
        e('s_mov_b64 exec, -1')
        e('ds_read_b128 %s, v28 offset:%d' % (vr(64), L_F))
        e('ds_read_b128 %s, v28 offset:%d' % (vr(68), L_F + 16))
        e('v_lshrrev_b32 v26, 2, v%d' % vL)
        e('s_lshl_b32 s59, s%d, 11' % sVID)
        e('s_lshl_b32 s60, s%d, 8' % sXCD)
        e('s_add_u32 s59, s59, s60')
        e('s_add_u32 s59, s59, 0x%x' % WS_HP)
        e('v_lshl_add_u32 v29, v26, 4, s59')
        self.ts(5)
        e('s_barrier')
        self.ts(6)
        for w in range(8):
            e('ds_read_b128 %s, v25 offset:%d' % (vr(32 + 4 * w), L_OPART + 1024 * w))
        for w in range(8):
            e('s_waitcnt lgkmcnt(%d)' % (0 if cfg.diag == 1 else 7 - w))
            sel = 'op_sel:[0,1,0] op_sel_hi:[1,1,1]' if w & 1 else 'op_sel:[0,0,0] op_sel_hi:[1,0,1]'
            acc = 32 + 4 * (w & 1)
            for hh in (0, 2):
                if w < 2:
                    e('v_pk_mul_f32 %s, %s, %s %s' % (vr(acc + hh, 2), vr(32 + 4 * w + hh, 2), vr(64 + (w & ~1), 2),
                                                     'op_sel:[0,1] op_sel_hi:[1,1]' if w & 1 else 'op_sel:[0,0] op_sel_hi:[1,0]'))
                else:
                    e('v_pk_fma_f32 %s, %s, %s, %s %s' % (vr(acc + hh, 2), vr(32 + 4 * w + hh, 2), vr(64 + (w & ~1), 2),
                                                         vr(acc + hh, 2), sel))
        for hh in (0, 2):
            e('v_pk_add_f32 %s, %s, %s' % (vr(32 + hh, 2), vr(32 + hh, 2), vr(36 + hh, 2)))
        self.tag(32, vMASK)
        self.publish(24, 32)
        self.ts(7)
        e('s_cmp_lt_u32 s%d, %d' % (sVID, NWO))
        e('s_cbranch_scc1 L_c_wo')
        e('s_cmp_lt_u32 s%d, %d' % (sVID, NWO + NML))
        e('s_cbranch_scc1 L_c_mlp')
        snapC = e.snap()
        self.ts_store()
        e('s_endpgm')

        e.restore(snapC)
        e.label('L_c_wo')
        e('s_barrier')
        e('s_barrier')
        self.ts(8)
        for k in range(4):
            e('ds_read_b128 %s, v22 offset:%d' % (vr(40 + 4 * k), L_QPART + 1024 * k))
        e('s_waitcnt lgkmcnt(%d)' % (0 if cfg.diag else 2))
        for hh in (0, 2):
            e('v_pk_add_f32 %s, %s, %s' % (vr(40 + hh, 2), vr(40 + hh, 2), vr(44 + hh, 2)))
        e('s_waitcnt lgkmcnt(0)')
        for hh in (0, 2):
            e('v_pk_add_f32 %s, %s, %s' % (vr(48 + hh, 2), vr(48 + hh, 2), vr(52 + hh, 2)))
        for hh in (0, 2):
            e('v_pk_add_f32 %s, %s, %s' % (vr(40 + hh, 2), vr(40 + hh, 2), vr(48 + hh, 2)))
        for d in (X1, X2):
            for c in range(4):
                e('v_add_f32_dpp v%d, v%d, v%d %s' % (40 + c, 40 + c, 40 + c, d))
        self.tag(40, vMASK)
        e('s_mov_b64 exec, s[62:63]')
        e('global_store_dwordx4 v29, %s, %s sc1' % (vr(40), sr(sWS)))
        e('s_mov_b64 exec, -1')
        self.ts(9)
        self.ts_store()
        e('s_endpgm')

        e.restore(snapC)
        e.label('L_c_mlp')
        e('s_barrier')
        e.wait_vm0()

        e.label('L_mlp_w')
        e.restore(([], [it[2] for it in self.mlp_loads()]))
        self.mlp_late()
        self.mlp_masks()
        self.ts(13)
        vP = vVt
        c1 = -2.0 * LOG2E * 0.7978845608028654

        def m1_read(base):
            for i in range(4):
                e('ds_read2st64_b32 %s, v%d offset0:%d offset1:%d' % (vr(vP + 2 * i, 2), vM1R, base // 256 + 2 * i, base // 256 + 2 * i + 1))
            e('ds_read_b32 v%d, v%d offset:%d' % (vP + 8, vM1R, base + 2048))

        def m1_sum(u, extra=0):
            out = ['s_waitcnt lgkmcnt(%d)' % (0 if cfg.diag else 3 + extra),
                   'v_pk_add_f32 %s, %s, %s' % (vr(vP, 2), vr(vP, 2), vr(vP + 2, 2)),
                   's_waitcnt lgkmcnt(%d)' % (0 if cfg.diag else 1 + extra),
                   'v_pk_add_f32 %s, %s, %s' % (vr(vP + 4, 2), vr(vP + 4, 2), vr(vP + 6, 2)),
                   'v_pk_add_f32 %s, %s, %s' % (vr(vP, 2), vr(vP, 2), vr(vP + 4, 2)),
                   's_waitcnt lgkmcnt(%d)' % (0 if cfg.diag else extra),
                   'v_add_f32 v%d, v%d, v%d' % (vP, vP, vP + 8),
                   'v_add_f32 v%d, v%d, v%d' % (vP, vP, vP + 1),
                   'v_add_f32_dpp v%d, v%d, v%d %s' % (u, vP, vP, ROR(4, 0xa)),
                   'v_add_f32_dpp v%d, v%d, v%d %s' % (u, vP, vP, ROR(12, 0x5))]
            return out

        if cfg.fold:
            for p_ in range(4):
                e('v_and_b32 v%d, s%d, v%d' % (vONE + p_, sONES, vM + p_))
            for t in range(4):
                e.wait_vm('A%d' % t)
                e(self.mfma(vD, vONE, vA1 + 4 * t, t == 0))
            for c in range(4):
                e('v_add_f32_dpp v%d, v%d, v%d %s' % (vD + c, vD + c, vD + c, ROR(8)))
            e('s_mov_b64 exec, %s' % sr(sM1))
            e('ds_write_b128 v%d, %s offset:%d' % (vM1W, vr(vD), L_CP))
            e('s_mov_b64 exec, -1')
            self.barrier()
            m1_read(L_CP)
            for x in m1_sum(vCS):
                e(x)
        hpl = [('global_load_dwordx4 %s, v%d, %s offset:%d sc1' % (vr(vP + 4 * u), vHPA, sr(sWS), 1024 * u),
                vP + 4 * u, 'f24', [44, 46][u]) for u in range(2)]
        for it in hpl:
            e(it[0])
        e.wait_vm('FB')
        self.ts(14)
        e('v_and_b32 v%d, 0xffff0000, v%d' % (vHX + 1, vHX))
        e('v_lshlrev_b32 v%d, 16, v%d' % (vHX, vHX))
        e('v_lshlrev_b32 v%d, 16, v%d' % (vB1, vB1))
        e('v_lshlrev_b32 v%d, 16, v%d' % (vFB, vFB))
        self.poll('L_hp_poll', hpl, vT, first_issued=True)
        self.ts(8)
        for hh in (0, 2):
            e('v_pk_add_f32 %s, %s, %s' % (vr(vP + hh, 2), vr(vP + hh, 2), vr(vP + 4 + hh, 2)))
        for c in range(4):
            e('v_add_f32_dpp v%d, v%d, v%d %s' % (vP + c, vP + c, vP + c, X2))
        e('v_cndmask_b32 v%d, v%d, v%d, %s' % (vP, vP, vP + 2, sr(sBIT1)))
        e('v_cndmask_b32 v%d, v%d, v%d, %s' % (vP + 1, vP + 1, vP + 3, sr(sBIT1)))
        y0, y1 = vP, vP + 1
        e('v_add_f32_dpp v%d, v%d, v%d %s' % (y0, y0, y0, X1))
        e('v_add_f32_dpp v%d, v%d, v%d %s' % (y1, y1, y1, X1))
        e(self.rnd(y0, y0))
        e(self.rnd(y1, y1))
        e('v_add_f32 v%d, v%d, v%d' % (y0, y0, vHX))
        e('v_add_f32 v%d, v%d, v%d' % (y1, y1, vHX + 1))
        vD1 = vT
        u = vP + 2

        def stat_write(a0, a1, z, z2, lst):
            out = ['v_add_f32 v%d, v%d, v%d' % (z, a0, a1),
                   'v_mul_f32 v%d, v%d, v%d' % (z2, a0, a0),
                   'v_fmac_f32 v%d, v%d, v%d' % (z2, a1, a1),
                   'v_cndmask_b32 v%d, v%d, v%d, %s' % (z, z, z2, sr(sBIT0))]
            out += ['v_add_f32_dpp v%d, v%d, v%d %s' % (z, z, z, d) for d in (X2, ROR(4), ROR(8))]
            return out

        def stat_sum(b, z, z2):
            out = ['v_pk_add_f32 %s, %s, %s' % (vr(b, 2), vr(b, 2), vr(b + 4, 2)),
                   'v_pk_add_f32 %s, %s, %s' % (vr(b + 2, 2), vr(b + 2, 2), vr(b + 6, 2)),
                   'v_pk_add_f32 %s, %s, %s' % (vr(b, 2), vr(b, 2), vr(b + 2, 2)),
                   'v_add_f32 v%d, v%d, v%d' % (z, b, b + 1)]
            out += ['v_add_f32_dpp v%d, v%d, v%d %s' % (z, z, z, d) for d in (X2, ROR(4), ROR(8))]
            out += ['v_mov_b32_dpp v%d, v%d quad_perm:[1,1,3,3] %s' % (z2, z, DPP),
                    'v_mov_b32_dpp v%d, v%d quad_perm:[0,0,2,2] %s' % (z, z, DPP)]
            return out

        Aops = [self.a_ops_rot(vKt + 4 * jj, y1 if (jj & 1) else y0, jj >> 1) for jj in range(8)]
        Mops = [self.mfma(vD1 if (jj & 1) else vD, vKt + 4 * jj, vA1 + 4 * (jj >> 1), jj < 2) for jj in range(8)]
        if cfg.fold:
            e(self.rnd(vH, y0))
            e(self.rnd(vH + 1, y1))
            e('v_cvt_pk_bf16_f32 v%d, v%d, v%d' % (y0, y0, y0))
            e('v_cvt_pk_bf16_f32 v%d, v%d, v%d' % (y1, y1, y1))
            self.ts(9)
            z, z2 = vP + 2, vP + 3
            seq = list(Aops[0])
            for j in range(8):
                if j + 1 < 8:
                    seq += Aops[j + 1]
                seq.append(Mops[j])
            self.weave(stat_write(vH, vH + 1, z, z2, L_ST1), seq)
            e('s_mov_b64 exec, %s' % sr(sL2))
            e('ds_write_b32 v%d, v%d offset:%d' % (vSTW, z, L_ST1))
            e('s_mov_b64 exec, -1')
            for c in range(4):
                e('v_add_f32_dpp v%d, v%d, v%d %s' % (vD + c, vD1 + c, vD + c, ROR(8)))
            e('s_mov_b64 exec, %s' % sr(sM1))
            e('ds_write_b128 v%d, %s offset:%d' % (vM1W, vr(vD), L_QPART))
            e('s_mov_b64 exec, -1')
            self.barrier()
            self.ts(10)
            b = vKt
            e('ds_read_b128 %s, v%d offset:%d' % (vr(b), vSTR, L_ST1))
            e('ds_read_b128 %s, v%d offset:%d' % (vr(b + 4), vSTR, L_ST1 + 16))
            m1_read(L_QPART)
            e('s_waitcnt lgkmcnt(%d)' % (0 if cfg.diag else 5))
            z, z2, mu, va, m1, sd, r1, t, m2, r2 = range(b + 8, b + 18)
            st = stat_sum(b, z, z2) + [
                'v_mul_f32 v%d, v%d, v%d' % (mu, z, vINVM),
                'v_mul_f32 v%d, v%d, v%d' % (va, z2, vINVM),
                'v_fma_f32 v%d, -v%d, v%d, v%d' % (va, mu, mu, va),
                self.rnd(m1, mu),
                self.rnd(t, va),
                'v_add_f32 v%d, %s, v%d' % (t, f32(1e-5), t),
                self.rnd(t, t),
                'v_sqrt_f32 v%d, v%d' % (sd, t),
                'v_sub_f32 v%d, v%d, v%d' % (mu, mu, m1),
                self.rnd(sd, sd),
                'v_rcp_f32 v%d, v%d' % (r1, sd),
                'v_mul_f32 v%d, v%d, v%d' % (va, va, r1),
                'v_mul_f32 v%d, v%d, v%d' % (mu, mu, r1),
                'v_mul_f32 v%d, v%d, v%d' % (va, va, r1),
                self.rnd(m2, mu),
                self.rnd(t, va),
                'v_fma_f32 v%d, v%d, v%d, v%d' % (m2, m1, r1, m2),
                'v_add_f32 v%d, %s, v%d' % (t, f32(1e-5), t),
                'v_mul_f32 v%d, v%d, v%d' % (m2, m2, vCS),
                self.rnd(t, t),
                'v_sqrt_f32 v%d, v%d' % (t, t),
                self.rnd(t, t),
                'v_rcp_f32 v%d, v%d' % (r2, t),
            ]
            k = 4
            for x in st[:k]:
                e(x)
            self.weave(st[k:], m1_sum(u))
            e('v_fma_f32 v%d, v%d, v%d, -v%d' % (u, u, r1, m2))
            e('v_mul_f32 v%d, v%d, v%d' % (u, u, r2))
        else:
            for ln, lst in ((0, L_ST1), (1, L_ST2)):
                e(self.rnd(y0, y0))
                e(self.rnd(y1, y1))
                z, z2 = vP + 2, vP + 3
                sw = stat_write(y0, y1, z, z2, lst)
                for x in sw[:4]:
                    e(x)
                if ln == 0:
                    e('v_mov_b32 v%d, v%d' % (vH, y0))
                    e('v_mov_b32 v%d, v%d' % (vH + 1, y1))
                for x in sw[4:]:
                    e(x)
                e('s_mov_b64 exec, %s' % sr(sL2))
                e('ds_write_b32 v%d, v%d offset:%d' % (vSTW, z, lst))
                e('s_mov_b64 exec, -1')
                self.barrier()
                e('ds_read_b128 %s, v%d offset:%d' % (vr(vP + 4), vSTR, lst))
                e('ds_read_b128 %s, v%d offset:%d' % (vr(vP + 8), vSTR, lst + 16))
                e('s_waitcnt lgkmcnt(0)')
                for x in stat_sum(vP + 4, z, z2):
                    e(x)
                m, sd, r, t = vP + 4, vP + 5, vP + 6, vP + 7
                sc = self.ln_scalars('v%d' % z, 'v%d' % z2, vINVM, m, sd, r, t)
                a0 = self.ln_apply(y0, m, sd, r, vP + 8, cfg.refine)
                a1 = self.ln_apply(y1, m, sd, r, vP + 9, cfg.refine)
                for x in sc[:4]:
                    e(x)
                self.weave(sc[4:], a0[:2] + a1[:2])
                self.weave(a0[2:], a1[2:])
            e('v_cvt_pk_bf16_f32 v%d, v%d, v%d' % (y0, y0, y0))
            e('v_cvt_pk_bf16_f32 v%d, v%d, v%d' % (y1, y1, y1))
            self.ts(9)
            self.chain(Aops, Mops)
            for c in range(4):
                e('v_add_f32_dpp v%d, v%d, v%d %s' % (vD + c, vD1 + c, vD + c, ROR(8)))
            e('s_mov_b64 exec, %s' % sr(sM1))
            e('ds_write_b128 v%d, %s offset:%d' % (vM1W, vr(vD), L_QPART))
            e('s_mov_b64 exec, -1')
            self.barrier()
            self.ts(10)
            m1_read(L_QPART)
            for x in m1_sum(u):
                e(x)
        e(self.rnd(u, u))
        e('v_add_f32 v%d, v%d, v%d' % (u, u, vB1))
        e(self.rnd(u, u))
        e('v_mul_f32 v%d, v%d, v%d' % (u + 1, u, u))
        e('v_fmaak_f32 v%d, v%d, v%d, %s' % (u + 1, u + 1, vGC, f32(c1)))
        e('v_mul_f32 v%d, v%d, v%d' % (u + 1, u + 1, u))
        e('v_exp_f32 v%d, v%d' % (u + 1, u + 1))
        e('v_add_f32 v%d, 1.0, v%d' % (u + 1, u + 1))
        e('v_rcp_f32 v%d, v%d' % (u + 1, u + 1))
        e('v_mul_f32 v%d, v%d, v%d' % (u, u, u + 1))
        e('v_cvt_pk_bf16_f32 v%d, v%d, v%d' % (u, u, u))
        self.ts(11)
        self.chain([['v_and_b32_dpp v%d, v%d, v%d quad_perm:[%d,%d,%d,%d] %s' % (vKt + 4 * jj + p, u, vM + p, jj, jj, jj, jj, DPP)
                     for p in range(4)] for jj in range(4)],
                   [self.mfma(vD, vKt + 4 * jj, vA2 + 4 * jj, jj == 0) for jj in range(4)])
        e('s_lshr_b32 s59, s%d, 4' % sID)
        for c in range(4):
            e('v_permlane32_swap_b32 v%d, v%d' % (vD + c, vP + 4 + c))
        for c in range(4):
            e('v_add_f32_dpp v%d, v%d, v%d %s' % (vD + c, vP + 4 + c, vD + c, ROR(8)))
        self.tag(vD, vMASKM)
        e('s_mov_b64 exec, 0x00ff00ff')
        e('global_store_dwordx4 v%d, %s, %s sc1' % (vFPA, vr(vD), sr(sWS)))
        e('s_mov_b64 exec, -1')
        self.ts(12)
        if cfg.b9:
            e('s_barrier')
        e('s_cmp_lg_u32 s59, s%d' % sW)
        e('s_cbranch_scc1 L_m_done')
        fl = [('global_load_dwordx4 %s, v%d, %s sc1' % (vr(vP), vFF0, sr(sWS)), vP, 'f24', 44),
              ('global_load_dwordx4 %s, v%d, %s sc1' % (vr(vP + 4), vFF1, sr(sWS)), vP + 4, 'f24', 46),
              ('global_load_dwordx4 %s, v%d, %s sc1' % (vr(vP + 8), vFF2, sr(sWS)), vP + 8, 'f24', 52, '0xffff')]
        e('s_and_b32 s59, s%d, 15' % sID)
        e('s_lshl_b32 s59, s59, 2')
        e('v_readlane_b32 s60, v%d, s59' % vH)
        e('v_readlane_b32 s61, v%d, s59' % (vH + 1))
        e('s_add_u32 s59, s59, 2')
        e('v_readlane_b32 s62, v%d, s59' % vH)
        e('v_readlane_b32 s63, v%d, s59' % (vH + 1))
        e('v_writelane_b32 v%d, s60, 0' % vH)
        e('v_writelane_b32 v%d, s62, 16' % vH)
        e('v_writelane_b32 v%d, s61, 32' % vH)
        e('v_writelane_b32 v%d, s63, 48' % vH)
        self.mask64(60, 0x00010001)
        self.poll('L_ff_poll', fl, vT)
        self.ts(6)
        for hh in (0, 2):
            e('v_pk_add_f32 %s, %s, %s' % (vr(vP + hh, 2), vr(vP + hh, 2), vr(vP + 4 + hh, 2)))
        e('s_mov_b64 exec, 0xffff')
        for hh in (0, 2):
            e('v_pk_add_f32 %s, %s, %s' % (vr(vP + hh, 2), vr(vP + hh, 2), vr(vP + 8 + hh, 2)))
        e('s_mov_b64 exec, -1')
        e('v_permlane32_swap_b32 v%d, v%d' % (vP, vP + 1))
        e('v_permlane32_swap_b32 v%d, v%d' % (vP + 2, vP + 3))
        e('v_add_f32 v%d, v%d, v%d' % (vP, vP, vP + 1))
        e('v_add_f32 v%d, v%d, v%d' % (vP + 2, vP + 2, vP + 3))
        e('v_permlane16_swap_b32 v%d, v%d' % (vP, vP + 2))
        e('v_add_f32 v%d, v%d, v%d' % (vP, vP, vP + 2))
        for d in (X1, X2, HM, MI):
            e('v_add_f32_dpp v%d, v%d, v%d %s' % (vP, vP, vP, d))
        e(self.rnd(vP, vP))
        e('v_add_f32 v%d, v%d, v%d' % (vP, vP, vFB))
        e(self.rnd(vP, vP))
        e('v_add_f32 v%d, v%d, v%d' % (vP, vP, vH))
        e('v_cvt_pk_bf16_f32 v%d, v%d, v%d' % (vP, vP, vP))
        e('s_mov_b64 exec, s[60:61]')
        e('global_store_short v%d, v%d, %s' % (vOUT, vP, sr(sOUT)))
        e('s_cmp_lg_u32 s%d, 0' % sID)
        e('s_cbranch_scc1 L_m_done')
        e('s_mov_b64 exec, 1')
        e('v_mov_b32 v%d, 0' % (vP + 1))
        e('v_mov_b32 v%d, s%d' % (vP + 2, sT))
        e('global_store_dword v%d, v%d, %s sc1' % (vP + 1, vP + 2, sr(sWS)))
        e.label('L_m_done')
        e('s_mov_b64 exec, -1')
        self.ts(15)
        self.ts_store()
        e.label('L_end')
        e('s_endpgm')

        e.raw('.section .rodata,"a"')
        e.raw('.p2align 6')
        e.raw('.amdhsa_kernel %s' % K)
        e.raw('  .amdhsa_next_free_vgpr 168')
        e.raw('  .amdhsa_next_free_sgpr 102')
        e.raw('  .amdhsa_accum_offset 168')
        e.raw('  .amdhsa_group_segment_fixed_size 0')
        e.raw('  .amdhsa_kernarg_size 104')
        e.raw('  .amdhsa_user_sgpr_count 2')
        e.raw('  .amdhsa_user_sgpr_kernarg_segment_ptr 1')
        e.raw('  .amdhsa_system_sgpr_workgroup_id_x 1')
        e.raw('.end_amdhsa_kernel')
        return e.text()

    def mlp_masks(self):
        self.mask64(sBIT0, 0xaaaaaaaa)
        self.mask64(sBIT1, 0xcccccccc)
        self.mask64(sL2, 0x00030003)
        self.mask64(sM1, 0x000f000f, 0x00f000f0)

    def mlp_early(self):
        e = self.e
        e('s_max_u32 s59, s%d, %d' % (sVID, NWO))
        e('s_sub_u32 s59, s59, %d' % NWO)
        e('s_min_u32 s59, s59, %d' % (NML - 1))
        e('s_lshr_b32 s60, s59, 1')
        e('s_lshl3_add_u32 s61, s%d, s60' % sXCD)
        e('s_add_u32 s%d, s%d, 64' % (sID, sXCD))
        e('s_cmp_lt_u32 s60, 8')
        e('s_cselect_b32 s61, s61, s%d' % sID)
        e('s_and_b32 s59, s59, 1')
        e('s_lshl1_add_u32 s%d, s61, s59' % sID)
        rho, c16, t2, t3 = vEA, vEA + 1, vEA + 2, vEA + 3
        e('v_lshrrev_b32 v%d, 3, v%d' % (rho, vL))
        e('v_and_b32 v%d, 0x70, v%d' % (c16, vKV))
        e('v_and_b32 v%d, 3, v%d' % (t2, vL))
        e('v_and_b32 v%d, 0x30, v%d' % (vW1O, vL))
        e('v_and_b32 v%d, 4, v%d' % (t3, vL))
        e('v_lshl_add_u32 v%d, v%d, 1, v%d' % (vW1O, t3, vW1O))
        e('v_and_b32 v%d, 1, v%d' % (vW2O, rho))
        e('v_add_u32 v%d, v%d, v%d' % (vW1O, vW1O, vW2O))
        e('v_mov_b32 v%d, 9216' % vW2O)
        e('v_lshlrev_b32 v%d, 4, v%d' % (t2, t2))
        e('v_mad_u32_u24 v%d, v%d, v%d, v%d' % (vW1O, vW1O, vW2O, t2))
        e('v_mov_b32 v%d, %d' % (vW2O, 4 * 1152))
        e('v_mad_u32_u24 v%d, v%d, v%d, v%d' % (vW2O, rho, vW2O, c16))
        e('s_mul_i32 s59, s%d, %d' % (sW, 64 * 9216))
        e('s_lshl_b32 s60, s%d, 6' % sID)
        e('s_add_u32 s59, s59, s60')
        self.add64(sA, sW1, 's59')
        e('s_mul_i32 s59, s%d, %d' % (sID, 32 * 1152))
        e('s_lshl_b32 s60, s%d, 7' % sW)
        e('s_add_u32 s59, s59, s60')
        self.add64(sB, sW2, 's59')

    def mlp_late(self):
        e = self.e
        rho, c16, t2, t3 = vMA, vMA + 1, vMA + 2, vMA + 3
        e('v_lshrrev_b32 v%d, 3, v%d' % (rho, vL))
        e('v_and_b32 v%d, 0x70, v%d' % (c16, vKV))
        e('v_and_b32 v%d, 3, v%d' % (t2, vL))
        e('v_and_b32 v%d, 4, v%d' % (t3, vL))
        e('s_lshl_b32 s60, s%d, 6' % sID)
        e('v_lshl_add_u32 v%d, v%d, 2, v%d' % (vM1R, rho, t2))
        e('v_lshl_add_u32 v%d, v%d, 1, s60' % (vB1, vM1R))
        e('global_load_ushort v%d, v%d, %s' % (vB1, vB1, sr(sB1)), 'BI')
        e('v_lshlrev_b32 v%d, 2, v%d' % (vM1R, vM1R))
        e('v_lshl_add_u32 v%d, v%d, 5, v%d' % (vM1R, t3, vM1R))
        e('s_lshl_b32 s60, s%d, 7' % sW)
        e('v_lshrrev_b32 v%d, 1, v%d' % (vHX, vL))
        e('v_lshl_add_u32 v%d, v%d, 2, s60' % (vHX, vHX))
        e('global_load_dword v%d, v%d, %s' % (vHX, vHX, sr(sX)), 'HX')
        e('v_lshrrev_b32 v%d, 5, v%d' % (vOUT, vL))
        e('v_and_b32 v%d, 16, v%d' % (t3, vL))
        e('v_lshrrev_b32 v%d, 3, v%d' % (vFB, t3))
        e('v_add_u32 v%d, v%d, v%d' % (vOUT, vOUT, vFB))
        e('s_lshl_b32 s59, s%d, 3' % sID)
        e('v_lshl_add_u32 v%d, v%d, 1, s59' % (vOUT, vOUT))
        e('global_load_ushort v%d, v%d, %s' % (vFB, vOUT, sr(sB2)), 'FB')
        e('s_lshl_b32 s59, s%d, 11' % sW)
        e('s_add_u32 s59, s59, 0x%x' % WS_HP)
        e('v_lshrrev_b32 v%d, 2, v%d' % (vHPA, vL))
        e('v_lshl_add_u32 v%d, v%d, 4, s59' % (vHPA, vHPA))
        e('v_lshl_add_u32 v%d, v%d, 8, v%d' % (vHPA, t2, vHPA))
        e('v_lshrrev_b32 v%d, 5, v%d' % (vM1W, vL))
        e('v_lshlrev_b32 v%d, 7, v%d' % (vM1W, vM1W))
        e('v_lshl_add_u32 v%d, v%d, 5, v%d' % (vM1W, t2, vM1W))
        e('s_lshl_b32 s61, s%d, 8' % sW)
        e('v_add3_u32 v%d, v%d, v%d, s61' % (vM1W, vM1W, t3))
        e('s_mul_i32 s59, s%d, 2304' % sID)
        e('s_add_u32 s59, s59, s61')
        e('s_add_u32 s59, s59, 0x%x' % WS_FP)
        e('v_lshl_add_u32 v%d, v%d, 1, v%d' % (vFPA, c16, t3))
        e('v_add_u32 v%d, s59, v%d' % (vFPA, vFPA))
        e('v_and_b32 v%d, 1, v%d' % (vSTW, vL))
        e('v_lshlrev_b32 v%d, 8, v%d' % (vSTW, vSTW))
        e('v_bfe_u32 v%d, v%d, 1, 3' % (vSTR, vL))
        e('v_lshl_add_u32 v%d, v%d, 5, v%d' % (vSTR, vSTR, vSTW))
        e('v_lshrrev_b32 v%d, 4, v%d' % (rho, vL))
        e('v_lshl_add_u32 v%d, v%d, 2, v%d' % (vSTW, rho, vSTW))
        e('s_lshl_b32 s59, s%d, 4' % sW)
        e('v_add_u32 v%d, s59, v%d' % (vSTW, vSTW))
        e('s_lshl_b32 s59, s%d, 4' % sID)
        e('s_add_u32 s59, s59, 0x%x' % WS_FP)
        e('v_mov_b32 v%d, 2304' % t3)
        e('v_mad_u32_u24 v%d, v%d, v%d, s59' % (vFF0, vL, t3))
        e('v_add_u32 v%d, %d, v%d' % (vFF1, 64 * 2304, vFF0))
        e('v_and_b32 v%d, 15, v%d' % (vFF2, vL))
        e('s_add_u32 s59, s59, %d' % (128 * 2304))
        e('v_mad_u32_u24 v%d, v%d, v%d, s59' % (vFF2, vFF2, t3))
        e('v_mov_b32 v%d, %s' % (vINVM, f32(1.0 / 576)))
        e('v_mov_b32 v%d, %s' % (vGC, f32(-2.0 * LOG2E * 0.7978845608028654 * 0.044715)))
        e('v_mov_b32 v%d, 0xffffff00' % vMASKM)

    def mlp_loads(self):
        out = []
        for t in range(4):
            it = ('load', 'global_load_dwordx4 %s, v%d, %s nt' % (vr(vA1 + 4 * t), vW1O, sr(sA)), 'A%d' % t)
            if t < 3:
                it += ('s_add_u32 s%d, s%d, 18432' % (sA, sA), 's_addc_u32 s%d, s%d, 0' % (sA + 1, sA + 1))
            out.append(it)
        for jj in range(4):
            out.append(('load', 'global_load_dwordx4 %s, v%d, %s offset:%d nt' % (vr(vA2 + 4 * jj), vW2O, sr(sB), 1152 * jj), 'B%d' % jj))
        return out


def make_plan(text):
    wo = list(range(NWO))
    slow = [6, 7, 16, 17]
    norm = [j for j in range(NML) if j not in slow]
    plan = []
    for half in text.split('|'):
        base = 0
        cnt = 0
        for tok in half.split(','):
            r = tok[0]
            n, _, k = tok[1:].partition('*')
            for _ in range(int(k or 1)):
                if r == 'w':
                    v = wo.pop(0)
                elif r == 'm':
                    v = NWO + (norm.pop(0) if norm else slow.pop())
                elif r == 's':
                    v = NWO + slow.pop(0)
                else:
                    v = 31
                plan.append((base, int(n), v))
                base += int(n)
                cnt += 1
        assert base == 128 and cnt == 16, (half, base, cnt)
    assert not wo and not slow and not norm
    return plan


def main():
    ap = argparse.ArgumentParser()
    ap.add_argument('-o', default='k.s')
    ap.add_argument('--diag', type=int, default=0)
    ap.add_argument('--spin', type=int, default=0x2000)
    ap.add_argument('--plan', default='i10*4,m9*7,w5*5|i9,m9*7,s9*4,w5*4')
    ap.add_argument('--b0', type=int, default=1)
    ap.add_argument('--nka', type=int, default=2)
    ap.add_argument('--nkb', type=int, default=3)
    ap.add_argument('--win', type=int, default=2)
    ap.add_argument('--nb2', type=int, default=2)
    ap.add_argument('--pre', type=int, default=0)
    ap.add_argument('--up', type=int, default=7)
    ap.add_argument('--aft', type=int, default=20)
    ap.add_argument('--winm', type=int, default=4)
    ap.add_argument('--ains', default='2,0')
    ap.add_argument('--wini', type=int, default=3)
    ap.add_argument('--nb2i', type=int, default=2)
    ap.add_argument('--prei', type=int, default=0)
    ap.add_argument('--upi', type=int, default=8)
    ap.add_argument('--winw', type=int, default=2)
    ap.add_argument('--nb2w', type=int, default=6)
    ap.add_argument('--prew', type=int, default=0)
    ap.add_argument('--upw', type=int, default=11)
    ap.add_argument('--aftw', type=int, default=13)
    ap.add_argument('--winp', type=int, default=8)
    ap.add_argument('--wmid', type=int, default=0)
    ap.add_argument('--nfb', type=int, default=64)
    ap.add_argument('--refine', type=int, default=0)
    ap.add_argument('--fold', type=int, default=1)
    ap.add_argument('--b9', type=int, default=1)
    cfg = ap.parse_args()
    cfg.ains = [int(x) for x in cfg.ains.split(',') if x != '']
    g = Gen(cfg)
    g.plan = make_plan(cfg.plan)
    txt = g.build()
    open(cfg.o, 'w').write(txt)
    print('wrote', cfg.o, 'instructions', g.e.nins)


if __name__ == '__main__':
    main()
```

```python
import sys, struct, argparse
sys.path.insert(0, 'dev')
from emit import Em, Ins, need

NAME = 'sequential_preLN__sliding_block_cached__mixer_channel_mlp__decode'


def f32(x):
    return '0x%08x' % struct.unpack('<I', struct.pack('<f', x))[0]


WS_QP = 0x10000
WS_ML = 0x30000
WS_OP = 0x40000
WS_HP = 0x80000
WS_FP = 0x90000
WS_TS = 0x100000
WS_DELTA = 0x200000

L_QPART = 0x0000
QS = 320
L_QL = 0x1700
L_LP = 0x1900
L_F = 0x1b00
L_ST1 = 0x1c00
L_ST2 = 0x1e00
L_OPART = 0x2000
L_CP = 0x2000
LDS_SIZE = 0x4000

LOG2E = 1.4426950408889634
SCALE = 128 ** -0.5

DPP = 'row_mask:0xf bank_mask:0xf'
X1 = 'quad_perm:[1,0,3,2] ' + DPP
X2 = 'quad_perm:[2,3,0,1] ' + DPP
HM = 'row_half_mirror ' + DPP
MI = 'row_mirror ' + DPP


def ROR(n, bank=0xf):
    return 'row_ror:%d row_mask:0xf bank_mask:0x%x' % (n, bank)


def vr(a, n=4):
    return 'v[%d:%d]' % (a, a + n - 1)


def sr(a, n=2):
    return 's[%d:%d]' % (a, a + n - 1)


sX, sK, sV, sWQ, sWO, sW1, sB1, sW2, sB2, sOUT, sDBG, sWS = 4, 6, 8, 10, 12, 16, 18, 20, 22, 24, 26, 28
sW = 3
sT = 30
sT0 = 31
sLOG2E = 35
sONES = 36
sG, sS, sIDX, sXCD, sID = 39, 40, 41, 42, 43
sN, sVID = 37, 38
sKB, sVB, sQ0, sQ1 = 44, 46, 48, 50
sA, sB = 52, 54
sVALID = 56
sSPIN = 58
sTS = 64
sL8 = 98
sWS2 = 100
sPB = 0
sBIT0, sBIT1, sL2, sM1 = 48, 50, 14, 96

vL = 1
vM = 2
vKV = 6
vDQ = 7
vD = 8
vT = 12
vKt = 16
vVt = 48
vW1 = 80
vWQ = 112
vQO, vQX = 144, 148
vSC = 152
vU = 160
vWO, vP0, vMLA = 112, 113, 114
vA1 = 88
vA2 = 104
vW1O, vW2O = 120, 121
vEA = 122
(vHPA, vSTW, vSTR, vFPA, vM1W, vM1R, vINVM, vB1, vFF0, vFF1, vFF2, vOUT, vFB, vGC) = range(60, 74)
vHX = 74
vH = 76
vMA = 78
vMASKM = 82
vCS = 83
vONE = 84
SC = list(range(152, 160)) + list(range(137, 144))

NWO, NML = 9, 18


class Gen:
    def __init__(self, cfg):
        self.cfg = cfg
        self.e = Em()

    def ts(self, k):
        if self.cfg.diag == 1:
            self.e('s_memrealtime %s' % sr(sTS + 2 * k))

    def cnt(self, k):
        if self.cfg.diag == 1:
            self.e('s_waitcnt lgkmcnt(0)')
            self.e('s_sub_u32 s%d, 0x%x, s%d' % (sTS + 2 * k, self.cfg.spin + 1, sSPIN))

    def ts_store(self, nslots=16):
        e = self.e
        if self.cfg.diag != 1:
            return
        e('s_waitcnt lgkmcnt(0)')
        e('s_mul_i32 s59, s2, 9')
        e('s_add_u32 s59, s59, s%d' % sW)
        e('s_lshl_b32 s59, s59, 7')
        e('s_add_u32 s59, s59, 0x%x' % WS_TS)
        e('s_mov_b64 exec, 1')
        e('v_mov_b32 v0, s59')
        for k in range(0, nslots, 4):
            for j in range(4):
                e('v_mov_b32 v%d, s%d' % (vU + j, sTS + 2 * (k + j)))
            e('global_store_dwordx4 v0, %s, %s offset:%d' % (vr(vU), sr(sWS), 4 * k))
            e('s_nop 1')
        e('s_mov_b64 exec, -1')

    def pad_needed(self, text):
        ins = Ins(text)
        dist = 0
        pad = 0
        for p in reversed(self.e.hist):
            n = need(p, ins)
            if n > dist:
                pad = max(pad, n - dist)
            dist += p.ws
            if dist >= 12:
                break
        return pad

    def emit_item(self, it):
        if isinstance(it, str):
            self.e(it)
        elif it[0] == 'wait':
            self.e.wait_vm(it[1])
        elif it[0] == 'issue':
            self.issue_to(it[1])

    def weave(self, *streams):
        streams = [list(s) for s in streams if s]
        while any(streams):
            best = None
            for k, s in enumerate(streams):
                if not s:
                    continue
                it = s[0]
                p = self.pad_needed(it) if isinstance(it, str) else 0
                if best is None or p < best[0]:
                    best = (p, k)
                if p == 0:
                    break
            self.emit_item(streams[best[1]].pop(0))

    def issue_to(self, n):
        while self.iss < min(n, len(self.L)):
            it = self.L[self.iss]
            self.e(it[1], it[2])
            for x in it[3:]:
                self.e(x)
            self.iss += 1

    def pace(self, i, win):
        self.e.wait_vm(self.L[i][2])
        self.issue_to(i + 1 + win)

    def barrier(self):
        self.e('s_waitcnt lgkmcnt(0)')
        self.e('s_barrier')

    def add64(self, dst, base, off):
        self.e('s_add_u32 s%d, s%d, %s' % (dst, base, off))
        self.e('s_addc_u32 s%d, s%d, 0' % (dst + 1, base + 1))

    def mask64(self, s, lo, hi=None):
        self.e('s_mov_b32 s%d, 0x%08x' % (s, lo))
        self.e('s_mov_b32 s%d, 0x%08x' % (s + 1, lo if hi is None else hi))

    def rnd(self, d, s):
        return 'v_cvt_pk_bf16_f32 v%d, 0, v%d' % (d, s)

    def ln_scalars(self, S, Q, inv, m, sd, r, t):
        return [
            'v_mul_f32 v%d, %s, v%d' % (m, S, inv),
            'v_mul_f32 v%d, %s, v%d' % (t, Q, inv),
            'v_fma_f32 v%d, -v%d, v%d, v%d' % (t, m, m, t),
            self.rnd(m, m),
            self.rnd(t, t),
            'v_add_f32 v%d, %s, v%d' % (t, f32(1e-5), t),
            self.rnd(t, t),
            'v_sqrt_f32 v%d, v%d' % (sd, t),
            self.rnd(sd, sd),
            'v_rcp_f32 v%d, v%d' % (r, sd),
        ]

    def ln_apply(self, x, m, sd, r, t, refine=True):
        out = ['v_sub_f32 v%d, v%d, v%d' % (x, x, m), self.rnd(x, x)]
        if refine:
            out += ['v_mul_f32 v%d, v%d, v%d' % (t, x, r),
                    'v_fma_f32 v%d, -v%d, v%d, v%d' % (x, t, sd, x),
                    'v_fma_f32 v%d, v%d, v%d, v%d' % (x, x, r, t)]
        else:
            out += ['v_mul_f32 v%d, v%d, v%d' % (x, x, r)]
        return out

    def poll(self, name, items, acc, first_issued=False, fb=False, init=True, exit_on=None):
        e = self.e
        if init:
            for it in items:
                e('s_mov_b64 %s, %s' % (sr(it[3]), it[4] if len(it) > 4 else '-1'))
        e('s_movk_i32 s%d, 0x%x' % (sSPIN, self.cfg.spin))
        if first_issued:
            e('s_branch %s_w' % name)
        e.label(name)
        for it in items:
            e('s_mov_b64 exec, %s' % sr(it[3]))
            e(it[0])
        e.label(name + '_w')
        n = len(items)
        for k, it in enumerate(items):
            e('s_waitcnt vmcnt(%d)' % (n - 1 - k))
            e('s_mov_b64 exec, %s' % sr(it[3]))
            self.strip(it[1], acc)
            e('v_and_b32 v%d, 0xff, v%d' % (acc, acc))
            e('v_cmp_ne_u32 %s, 0, v%d' % (sr(it[3]), acc))
        e.vm = []
        ex = [items[k] for k in exit_on] if exit_on is not None else items
        if len(ex) == 1:
            e('s_cmp_lg_u64 %s, 0' % sr(ex[0][3]))
        else:
            e('s_or_b64 vcc, %s, %s' % (sr(ex[0][3]), sr(ex[1][3])))
            for it in ex[2:]:
                e('s_or_b64 vcc, vcc, %s' % sr(it[3]))
        e('s_cbranch_scc0 %s_x' % name)
        e('s_sub_u32 s%d, s%d, 1' % (sSPIN, sSPIN))
        if fb:
            e('s_cbranch_scc1 %s_x' % name)
            e('s_cmp_lg_u32 s%d, 0x%x' % (sSPIN, self.cfg.spin - self.cfg.nfb))
            e('s_cbranch_scc1 %s' % name)
            e('s_mov_b64 %s, %s' % (sr(sPB), sr(sWS2)))
            e('s_branch %s' % name)
        else:
            e('s_cbranch_scc0 %s' % name)
        e.label(name + '_x')
        e('s_mov_b64 exec, -1')

    def strip(self, base, acc):
        e = self.e
        for i in range(4):
            e('v_xor_b32 v%d, s%d, v%d' % (base + i, sT0 + i, base + i))
        e('v_or3_b32 v%d, v%d, v%d, v%d' % (acc, base, base + 1, base + 2))
        e('v_or_b32 v%d, v%d, v%d' % (acc, acc, base + 3))

    def publish(self, addr, data):
        e = self.e
        e('global_store_dwordx4 v%d, %s, %s' % (addr, vr(data), sr(sWS)))
        e('global_store_dwordx4 v%d, %s, %s sc1' % (addr, vr(data), sr(sWS2)))

    def tag(self, base, vmask):
        for i in range(4):
            self.e('v_and_or_b32 v%d, v%d, v%d, s%d' % (base + i, base + i, vmask, sT0 + i))

    def a_ops_plain(self, dst, src):
        return ['v_and_b32 v%d, v%d, v%d' % (dst + p, src, vM + p) for p in range(4)]

    def a_ops_rot(self, dst, src, j):
        out = []
        for p in range(4):
            n = (2 * (p - j)) % 16
            if n == 0:
                out.append('v_and_b32 v%d, v%d, v%d' % (dst + p, src, vM + p))
            else:
                out.append('v_and_b32_dpp v%d, v%d, v%d %s' % (dst + p, src, vM + p, ROR(n)))
        return out

    def a_ops_quad(self, dst, src, j):
        return ['v_and_b32_dpp v%d, v%d, v%d quad_perm:[%d,%d,%d,%d] %s' % (dst + p, src, vM + p, j, j, j, j, DPP) for p in range(4)]

    def bank_reduce(self, r, t, d):
        e = self.e
        for c in range(2):
            e('v_add_f32_dpp v%d, v%d, v%d %s' % (t + c, r + c, r + c, ROR(8, 0x3)))
        for c in range(2):
            e('v_add_f32_dpp v%d, v%d, v%d %s' % (t + c, r + 2 + c, r + 2 + c, ROR(8, 0xc)))
        for c in range(2):
            e('v_add_f32_dpp v%d, v%d, v%d %s' % (d + c, t + c, t + c, ROR(4, 0xa)))
        for c in range(2):
            e('v_add_f32_dpp v%d, v%d, v%d %s' % (d + c, t + c, t + c, ROR(12, 0x5)))
        return d

    def mfma(self, d, a, b, first):
        return 'v_mfma_f32_16x16x32_bf16 %s, %s, %s, %s' % (vr(d), vr(a), vr(b), '0' if first else vr(d))

    def chain(self, A, M):
        e = self.e
        for x in A[0]:
            e(x)
        for j in range(len(M)):
            if j + 1 < len(M):
                for x in A[j + 1]:
                    e(x)
            e(M[j])

    def kvload(self, dst, base, t, tok):
        return ('load', 'global_load_dwordx4 %s, v%d, %s offset:%d nt' % (vr(dst), vKV, sr(base), 256 * t), tok)

    def kvlist(self, n):
        return [self.kvload(vKt + 4 * t, sKB, t, 'K%d' % t) for t in range(n)] + \
               [self.kvload(vKt + 4 * (n + t), sVB, t, 'V%d' % t) for t in range(n)]

    def pos(self, tok):
        return [it[2] for it in self.L].index(tok)

    def attention(self, n, nb2, win, pre, upto, after):
        e = self.e
        vQA, vLPA = vU, vU + 2
        e('v_and_b32 v%d, 8, v%d' % (vU + 1, vL))
        e('v_lshlrev_b32 v%d, 5, v%d' % (vQA, vU + 1))
        e('v_and_b32 v%d, 0xf0, v%d' % (vU + 3, vKV))
        e('v_lshrrev_b32 v%d, 4, v%d' % (vU + 4, vL))
        e('v_lshl_add_u32 v%d, v%d, 3, v%d' % (vLPA, vU + 4, vQA))
        e('v_add_u32 v%d, v%d, v%d' % (vQA, vQA, vU + 3))
        e('v_xor_b32 v%d, 0x100, v%d' % (vU + 3, vQA))
        e('s_lshl_b32 s59, s%d, 5' % sW)
        e('v_add_u32 v%d, s59, v%d' % (vLPA, vLPA))
        vSCL = vU + 4
        e('v_mov_b32 v%d, %s' % (vSCL, f32(SCALE)))
        self.vOPA = vU + 1
        e('s_lshl_b32 s59, s%d, 10' % sW)
        e('v_lshl_add_u32 v%d, v%d, 4, s59' % (self.vOPA, vL))
        for i in range(min(nb2, len(self.L))):
            self.pace(i, win)
        self.issue_to(max(pre, n))
        self.ts(3)
        e('s_barrier')
        e('ds_read_b128 %s, v%d offset:%d' % (vr(vQO), vQA, L_QL))
        e('ds_read_b128 %s, v%d offset:%d' % (vr(vQX), vU + 3, L_QL))
        self.issue_to(upto)
        self.ts(4)
        e('s_waitcnt lgkmcnt(0)')
        prevR = []
        for t in range(n):
            a, b = SC[t], (vT + (t & 1))
            D = [('wait', 'K%d' % t)]
            for k in range(4):
                D.append('v_dot2_f32_bf16 v%d, v%d, v%d, %s' % (a, vKt + 4 * t + k, vQO + k, '0' if k == 0 else 'v%d' % a))
                D.append('v_dot2_f32_bf16 v%d, v%d, v%d, %s' % (b, vKt + 4 * t + k, vQX + k, '0' if k == 0 else 'v%d' % b))
            self.weave(prevR, D)
            prevR = [
                'v_add_f32_dpp v%d, v%d, v%d %s' % (a, b, a, ROR(8)),
                'v_add_f32_dpp v%d, v%d, v%d %s' % (a, a, a, X1),
                'v_add_f32_dpp v%d, v%d, v%d %s' % (a, a, a, X2),
                'v_add_f32_dpp v%d, v%d, v%d %s' % (a, a, a, HM),
                self.rnd(a, a),
                'v_mul_f32 v%d, v%d, v%d' % (a, a, vSCL),
                self.rnd(a, a),
            ]
        mx = vT + 2
        rest = list(SC[:n - 1])
        pre_ = []
        cur = rest.pop(0)
        while len(rest) >= 2:
            pre_.append('v_max3_f32 v%d, v%d, v%d, v%d' % (mx, cur, rest[0], rest[1]))
            cur = mx
            rest = rest[2:]
        self.weave(prevR, pre_)
        if rest:
            e('v_max3_f32 v%d, v%d, v%d, v%d' % (mx, cur, rest[0], SC[n - 1]))
        else:
            e('v_max_f32 v%d, v%d, v%d' % (mx, cur, SC[n - 1]))
        e('v_mov_b32 v%d, v%d' % (vT, mx))
        e('v_permlane32_swap_b32 v%d, v%d' % (vT, mx))
        e('v_max_f32 v%d, v%d, v%d' % (mx, mx, vT))
        e('v_mov_b32 v%d, v%d' % (vT, mx))
        e('v_permlane16_swap_b32 v%d, v%d' % (vT, mx))
        e('v_max_f32 v%d, v%d, v%d' % (mx, mx, vT))
        self.ts(5)
        e('v_mul_f32 v%d, s%d, v%d' % (vT, sLOG2E, mx))
        for t in range(n):
            e('v_fma_f32 v%d, v%d, s%d, -v%d' % (SC[t], SC[t], sLOG2E, vT))
        for t in range(n):
            e('v_exp_f32 v%d, v%d' % (SC[t], SC[t]))
        ls = vT + 3
        acc = [vT, vT + 1, ls]
        assert n >= 2
        nacc = min(3, n // 2)
        acc = acc[3 - nacc:]
        for k in range(nacc):
            e('v_add_f32 v%d, v%d, v%d' % (acc[k], SC[2 * k], SC[2 * k + 1]))
        for t in range(2 * nacc, n):
            k = (t - 2 * nacc) % nacc
            e('v_add_f32 v%d, v%d, v%d' % (acc[k], acc[k], SC[t]))
        for k in range(nacc - 1):
            e('v_add_f32 v%d, v%d, v%d' % (ls, ls, acc[k]))
        e('s_mov_b64 exec, %s' % sr(sL8))
        e('ds_write_b64 v%d, %s offset:%d' % (vLPA, vr(mx, 2), L_LP))
        e('s_mov_b64 exec, -1')
        for t in range(n):
            e('v_cvt_pk_bf16_f32 v%d, v%d, v%d' % (SC[t], SC[t], SC[t]))
        for t in range(n):
            for x in self.a_ops_plain(vKt + 4 * t, SC[t]):
                e(x)
        self.issue_to(max(after, self.pos('V%d' % (n - 1)) + 1))
        self.ts(6)

    def pv(self, n, win, lim, rest=False):
        e = self.e
        for t in range(n):
            assert self.pos('V%d' % t) < self.iss
            e.wait_vm('V%d' % t)
            e(self.mfma(vD, vKt + 4 * t, vKt + 4 * (n + t), t == 0))
            self.issue_to(min(lim, self.pos('V%d' % t) + 1 + win))
        if rest:
            self.issue_to(len(self.L))
        e('ds_write_b128 v%d, %s offset:%d' % (self.vOPA, vr(vD), L_OPART))
        self.ts(7)
        self.barrier()

    def build(self):
        e = self.e
        cfg = self.cfg
        K = NAME + '_kernel'
        plan = self.plan
        e.raw('; @launch grid=(256,1,1) block=(576,1,1) lds=%d' % LDS_SIZE)
        e.raw('; plan ' + ' '.join('%d,%d,%d' % x for x in plan))
        e.raw('.amdgcn_target "amdgcn-amd-amdhsa--gfx950"')
        e.raw('.text')
        e.raw('.globl %s' % K)
        e.raw('.p2align 8')
        e.raw('.type %s,@function' % K)
        e.label(K)
        e('s_cmp_ge_u32 s2, 0x100')
        e('s_cbranch_scc1 L_end')
        e('s_load_dwordx16 s[4:19], s[0:1], 0')
        e('s_load_dwordx8 s[20:27], s[0:1], 64')
        e('s_load_dwordx2 s[28:29], s[0:1], 96')
        self.ts(0)
        e('s_getpc_b64 s[60:61]')
        e.label('L_pc')
        e('v_lshlrev_b32 v12, 7, v0')
        e('v_min_u32 v12, L_end-L_pc, v12')
        e('v_mov_b32 v14, s60')
        e('v_mov_b32 v15, s61')
        e('v_add_co_u32 v14, vcc, v14, v12')
        e('v_lshrrev_b32 v13, 6, v0')
        e('v_and_b32 v%d, 63, v0' % vL)
        e('v_addc_co_u32 v15, vcc, 0, v15, vcc')
        e('v_readfirstlane_b32 s%d, v13' % sW)
        e('global_load_dword v%d, v[14:15], off' % (vU + 7), 'PF')
        e('s_lshr_b32 m0, s2, 4')
        ent = [b | (n << 7) | (v << 11) for b, n, v in plan]
        for i in range(16):
            e('s_mov_b32 s%d, 0x%08x' % (80 + i, ent[2 * i] | (ent[2 * i + 1] << 16)))
        e('s_movrels_b32 s62, s80')
        e('s_lshl_b32 s59, s2, 1')
        e('s_and_b32 s59, s59, 16')
        e('s_lshr_b32 s62, s62, s59')
        e('s_bfe_u32 s%d, s62, 0x40007' % sN)
        e('s_bfe_u32 s%d, s62, 0x5000b' % sVID)
        e('s_and_b32 s62, s62, 127')
        e('s_and_b32 s%d, s2, 7' % sXCD)
        e('s_lshr_b32 s%d, s2, 3' % sIDX)
        e('s_lshr_b32 s%d, s%d, 4' % (sG, sIDX))
        e('s_lshl1_add_u32 s%d, s%d, s%d' % (sG, sXCD, sG))
        e('s_and_b32 s%d, s%d, 15' % (sS, sIDX))
        e('s_lshr_b32 s59, s%d, 2' % sS)
        e('s_mul_i32 s59, s59, 144')
        e('s_lshl4_add_u32 s59, s%d, s59' % sW)
        e('s_lshl_b32 s60, s59, 13')
        e('s_lshl_b32 s61, s%d, 9' % sG)
        e('s_add_u32 s60, s60, s61')
        e('s_and_b32 s61, s%d, 3' % sS)
        e('s_lshl_b32 s61, s61, 7')
        e('s_add_u32 s60, s60, s61')
        e('s_lshl_b32 s59, s59, 1')
        e('s_lshl_b32 s61, s%d, 24' % sG)
        e('s_lshl_b32 s62, s62, 13')
        e('s_add_u32 s61, s61, s62')
        e('s_and_b32 s62, s%d, 7' % sW)
        e('s_mul_i32 s62, s62, s%d' % sN)
        e('s_lshl_b32 s62, s62, 10')
        e('s_add_u32 s61, s61, s62')
        e('s_add_u32 s61, s61, 0x%x' % (61440 * 256))
        e('s_lshl_b32 s62, s%d, 8' % sN)
        vRHO, vC16, vXA, vXB, vXC, vQOFF = 12, 13, 14, 15, vU, vU + 1
        e('v_lshrrev_b32 v%d, 3, v%d' % (vRHO, vL))
        e('v_and_b32 v%d, 7, v%d' % (vC16, vL))
        e('v_lshlrev_b32 v%d, 4, v%d' % (vC16, vC16))
        e('v_lshlrev_b32 v%d, 4, v%d' % (vXA, vL))
        e('v_lshlrev_b32 v%d, 1, v%d' % (vXB, vL))
        e('v_lshl_add_u32 v%d, v%d, 2, s59' % (vXC, vRHO))
        e('v_lshl_add_u32 v%d, v%d, 14, v%d' % (vQOFF, vRHO, vC16))
        e('v_lshrrev_b32 v%d, 4, v%d' % (vKV, vL))
        e('v_and_b32 v%d, 0xf0, v%d' % (vU + 2, vXA))
        e('v_mad_u32_u24 v%d, v%d, s62, v%d' % (vKV, vKV, vU + 2))
        e('s_waitcnt lgkmcnt(0)')
        e('s_load_dword s%d, %s, 0' % (sT, sr(sWS)))
        vX = vWQ + 8
        e('global_load_dwordx4 %s, v%d, %s' % (vr(vX), vXA, sr(sX)), 'XA')
        e('global_load_ushort v%d, v%d, %s offset:1024' % (vX + 4, vXB, sr(sX)), 'XB')
        e('global_load_dword v%d, v%d, %s' % (vX + 5, vXC, sr(sX)), 'XC')
        self.add64(sQ0, sWQ, 's60')
        e('global_load_dwordx4 %s, v%d, %s nt' % (vr(vWQ), vQOFF, sr(sQ0)), 'Q0')
        self.add64(sQ1, sQ0, '0x2000')
        e('global_load_dwordx4 %s, v%d, %s nt' % (vr(vWQ + 4), vQOFF, sr(sQ1)), 'Q1')
        self.add64(sKB, sK, 's61')
        self.add64(sVB, sV, 's61')
        nmin = min(n for _, n, _ in plan)
        assert cfg.nka <= nmin and cfg.nkb <= nmin
        self.L = self.kvlist(nmin)
        self.iss = 0
        e('s_cmp_eq_u32 s%d, 8' % sW)
        e('s_cbranch_scc1 L_w8_pre')
        snapA = e.snap()
        if cfg.b0:
            e('s_barrier')
        self.issue_to(cfg.nka)
        e('s_branch L_pre_join')
        snapJ = e.snap()
        e.restore(snapA)
        e.label('L_w8_pre')
        e('s_lshl4_add_u32 s59, s%d, s%d' % (sG, sS))
        e('s_lshl_b32 s60, s59, 8')
        e('s_add_u32 s60, s60, 0x%x' % WS_QP)
        e('v_lshl_add_u32 v21, v%d, 7, s60' % vL)
        e('s_lshl_b32 s60, s59, 10')
        e('s_add_u32 s60, s60, 0x%x' % (WS_OP - 256))
        e('s_mov_b64 exec, -4')
        e('v_lshl_add_u32 v21, v%d, 7, s60' % vL)
        e('s_lshl_b32 s60, s59, 4')
        e('s_add_u32 s60, s60, 0x%x' % WS_ML)
        e('s_lshl_b64 exec, -1, 10')
        e('v_mov_b32 v21, s60')
        e('s_mov_b64 exec, 0x7ff')
        for t in range(max(1, cfg.nka)):
            e('global_load_dword v18, v21, %s sc1' % sr(sWS), 'K%d' % t)
            if t == 0:
                e('s_mov_b64 exec, 1')
        e('s_mov_b64 exec, -1')
        if cfg.b0:
            e('s_barrier')
        e('v_mov_b32 v20, 0')
        e('v_mov_b32 v21, -1.0')
        e('v_lshlrev_b32 v22, 2, v%d' % vL)
        e('v_lshlrev_b32 v23, 3, v%d' % vL)
        e('ds_write2st64_b32 v22, v20, v20 offset0:%d offset1:%d' % (L_ST1 // 256, L_ST1 // 256 + 1))
        e('ds_write2st64_b32 v22, v20, v20 offset0:%d offset1:%d' % (L_ST2 // 256, L_ST2 // 256 + 1))
        e('ds_write_b64 v23, v[20:21] offset:%d' % L_LP)
        e.label('L_pre_join')
        e.restore(([], snapJ[1]))
        e('s_mov_b64 %s, %s' % (sr(sPB), sr(sWS)))
        self.add64(sWS2, sWS, '0x%x' % WS_DELTA)
        self.ts(1)
        e('v_and_b32 v%d, 3, v%d' % (vU + 2, vL))
        e('v_lshlrev_b32 v%d, 4, v%d' % (vU + 2, vU + 2))
        e('v_mov_b32 v%d, 0xffff' % (vU + 4))
        e('v_mov_b32 v%d, 0' % (vU + 5))
        e('v_lshlrev_b64 %s, v%d, %s' % (vr(vU + 4, 2), vU + 2, vr(vU + 4, 2)))
        e('v_bfe_i32 v%d, v%d, 2, 1' % (vU + 2, vL))
        e('v_and_b32 v%d, v%d, v%d' % (vM + 2, vU + 4, vU + 2))
        e('v_and_b32 v%d, v%d, v%d' % (vM + 3, vU + 5, vU + 2))
        e('v_xor_b32 v%d, v%d, v%d' % (vM + 0, vU + 4, vM + 2))
        e('v_xor_b32 v%d, v%d, v%d' % (vM + 1, vU + 5, vM + 3))
        e('v_lshrrev_b32 v%d, 5, v%d' % (vDQ, vL))
        e('v_mul_u32_u24 v%d, %d, v%d' % (vDQ, QS, vDQ))
        e('v_lshl_add_u32 v%d, v%d, 1, v%d' % (vDQ, vC16, vDQ))
        e('v_and_b32 v%d, 16, v%d' % (vU + 2, vL))
        e('s_mul_i32 s59, s%d, %d' % (sW, 2 * QS))
        e('v_add3_u32 v%d, v%d, v%d, s59' % (vDQ, vDQ, vU + 2))
        self.mask64(sVALID, 0x00ff00ff, 0xff00ff00)
        self.mask64(sL8, 0x01010101)
        e('s_mov_b32 s%d, %s' % (sLOG2E, f32(LOG2E)))
        e('s_mov_b32 s%d, 0x3f803f80' % sONES)
        vINV = vU + 6
        e('v_mov_b32 v%d, %s' % (vINV, f32(1.0 / 576)))
        e.wait_vm('XB')
        vS, vQ = vU + 2, vU + 3
        for k in range(5):
            e('v_dot2_f32_bf16 v%d, v%d, s%d, %s' % (vS, vX + k, sONES, '0' if k == 0 else 'v%d' % vS))
            e('v_dot2_f32_bf16 v%d, v%d, v%d, %s' % (vQ, vX + k, vX + k, '0' if k == 0 else 'v%d' % vQ))
        for d in (X1, X2, HM, MI):
            e('v_add_f32_dpp v%d, v%d, v%d %s' % (vS, vS, vS, d))
            e('v_add_f32_dpp v%d, v%d, v%d %s' % (vQ, vQ, vQ, d))
        for d in ('row_bcast:15 row_mask:0xa bank_mask:0xf', 'row_bcast:31 row_mask:0xc bank_mask:0xf'):
            e('v_add_f32_dpp v%d, v%d, v%d %s' % (vS, vS, vS, d))
            e('v_add_f32_dpp v%d, v%d, v%d %s' % (vQ, vQ, vQ, d))
        e('v_readlane_b32 s59, v%d, 63' % vS)
        e('v_readlane_b32 s60, v%d, 63' % vQ)
        e.wait_vm('XC')
        y0, y1 = vX, vX + 1
        e('v_lshlrev_b32 v%d, 16, v%d' % (y0, vX + 5))
        e('v_and_b32 v%d, 0xffff0000, v%d' % (y1, vX + 5))
        m, sd, r, t = vU + 2, vU + 3, vU + 4, vU + 5
        for x in self.ln_scalars('s59', 's60', vINV, m, sd, r, t):
            e(x)
        self.weave(self.ln_apply(y0, m, sd, r, vX + 2), self.ln_apply(y1, m, sd, r, vX + 3))
        e('v_cvt_pk_bf16_f32 v%d, v%d, v%d' % (y0, y0, y0))
        e('v_cvt_pk_bf16_f32 v%d, v%d, v%d' % (y1, y1, y1))
        A0, A1 = vT, vX + 4
        for x in self.a_ops_plain(A0, y0):
            e(x)
        for x in self.a_ops_plain(A1, y1):
            e(x)
        e.wait_vm('Q0')
        e(self.mfma(vD, A0, vWQ, True))
        e.wait_vm('Q1')
        e(self.mfma(vD, A1, vWQ + 4, False))
        e('s_waitcnt lgkmcnt(0)')
        e('s_add_u32 s%d, s%d, 0x01010101' % (sT, sT))
        e('s_and_b32 s%d, s%d, 0xff' % (sT0, sT))
        e('s_bfe_u32 s%d, s%d, 0x80008' % (sT0 + 1, sT))
        e('s_bfe_u32 s%d, s%d, 0x80010' % (sT0 + 2, sT))
        e('s_lshr_b32 s%d, s%d, 24' % (sT0 + 3, sT))
        e('s_mov_b64 exec, %s' % sr(sVALID))
        e('ds_write_b128 v%d, %s offset:%d' % (vDQ, vr(vD), L_QPART))
        e('s_mov_b64 exec, -1')
        self.ts(2)
        e('s_cmp_eq_u32 s%d, 8' % sW)
        e('s_cbranch_scc1 L_comm')
        snapC0 = e.snap()
        self.issue_to(cfg.nkb)
        iss0 = self.iss
        self.barrier()
        e('s_cmp_lt_u32 s%d, %d' % (sVID, NWO))
        e('s_cbranch_scc1 L_wo')
        e('s_cmp_lt_u32 s%d, %d' % (sVID, NWO + NML))
        e('s_cbranch_scc1 L_mlp')
        snapB1 = e.snap()

        def variants(lo, hi):
            return sorted({n for _, n, v in plan if lo <= v < hi})

        def dispatch(tag, ns):
            for n in ns[1:]:
                e('s_cmp_eq_u32 s%d, %d' % (sN, n))
                e('s_cbranch_scc1 L_%s_%d' % (tag, n))

        ns = variants(NWO + NML, 32)
        if cfg.pf2:
            e('s_sub_u32 s59, s%d, %d' % (sVID, NWO + NML))
            e('s_lshl3_add_u32 s59, s59, s%d' % sW)
            e('s_lshl_b32 s60, s59, 14')
            e('s_mul_i32 s61, s%d, %d' % (sXCD, 16 * 36864))
            e('s_mul_i32 s62, s%d, %d' % (sXCD, 2 * 36864))
            e('s_add_u32 s62, s62, %d' % (128 * 36864 - 36 * 16384))
            e('s_cmp_lt_u32 s59, 36')
            e('s_cselect_b32 s61, s61, s62')
            e('s_add_u32 s60, s60, s61')
            self.add64(sA, sW2, 's60')
            e('v_lshlrev_b32 v%d, 8, v%d' % (vEA, vL))
            snapB1i = e.snap()
        else:
            snapB1i = snapB1
        dispatch('idle', ns)
        for n in ns:
            e.restore(snapB1i)
            e.label('L_idle_%d' % n)
            self.L = self.kvlist(n)
            if cfg.pf2:
                P = [('load', 'global_load_dword v%d, v%d, %s offset:%d' % (vEA + 1 + i, vEA, sr(sA), 128 * i), 'P%d' % i) for i in range(2)]
                self.L += P
            self.iss = iss0
            self.attention(n, n + cfg.nb2i, cfg.wini, n + cfg.prei, n + cfg.upi, 2 * n + (2 if cfg.pf2 == 1 else 0))
            self.pv(n, 0, 2 * n, cfg.pf2 == 2)
            self.ts_store()
            e('s_endpgm')

        e.restore(snapB1)
        e.label('L_mlp')
        self.mlp_early()
        ns = variants(NWO, NWO + NML)
        dispatch('mlp', ns)
        snapM = e.snap()
        for n in ns:
            e.restore(snapM)
            e.label('L_mlp_%d' % n)
            assert n <= 9
            L = self.kvlist(n)
            W = self.mlp_loads()[:self.nw]
            for k, x in enumerate(cfg.ains):
                at = [it[2] for it in L].index('V%d' % (n - 1 - x)) + 1
                while at < len(L) and L[at][2][0] in 'AB':
                    at += 1
                L.insert(at, W[k])
            lim = len(L)
            self.L = L + W[len(cfg.ains):]
            self.iss = iss0
            self.attention(n, n + cfg.nb2, cfg.win, n + cfg.pre, n + cfg.up, min(lim, n + cfg.aft))
            self.pv(n, cfg.winm, lim)
            e('s_barrier')
            self.issue_to(len(self.L))
            e('s_branch L_mlp_w')

        e.restore(snapB1)
        e.label('L_wo')
        t0, t1, t2 = vEA, vEA + 1, vEA + 2
        e('v_and_b32 v%d, 0x30, v%d' % (t0, vL))
        e('v_bfe_u32 v%d, v%d, 3, 1' % (t1, vL))
        e('v_lshl_add_u32 v%d, v%d, 1, v%d' % (t1, t1, t0))
        e('v_and_b32 v%d, 0x70, v%d' % (vWO, vKV))
        e('v_mov_b32 v%d, %d' % (t2, 1152))
        e('v_mad_u32_u24 v%d, v%d, v%d, v%d' % (vWO, t1, t2, vWO))
        e('s_lshl3_add_u32 s59, s%d, s%d' % (sXCD, sW))
        e('s_mul_i32 s59, s59, %d' % (64 * 1152))
        e('s_lshl_b32 s60, s%d, 7' % sVID)
        e('s_add_u32 s59, s59, s60')
        e('s_add_u32 s59, s59, 2880')
        self.add64(sA, sWO, 's59')
        self.add64(sB, sA, '%d' % (8 * 1152))
        e('v_and_b32 v%d, 0x30, v%d' % (vP0, vKV))
        e('v_lshl_add_u32 v%d, v%d, 2, v%d' % (vP0, t0, vP0))
        e('v_and_b32 v%d, 12, v%d' % (t1, vL))
        e('v_lshl_add_u32 v%d, v%d, 10, v%d' % (vP0, t1, vP0))
        e('s_lshr_b32 s59, s%d, 2' % sW)
        e('s_lshl1_add_u32 s59, s%d, s59' % sXCD)
        e('s_lshl_b32 s60, s59, 14')
        e('s_and_b32 s61, s%d, 3' % sW)
        e('s_lshl_b32 s61, s61, 8')
        e('s_add_u32 s60, s60, s61')
        e('s_add_u32 s60, s60, 0x%x' % WS_OP)
        e('v_add_u32 v%d, s60, v%d' % (vP0, vP0))
        e('s_lshl_b32 s59, s59, 8')
        e('s_add_u32 s59, s59, 0x%x' % WS_ML)
        e('v_and_b32 v%d, 0xf0, v%d' % (vMLA, vKV))
        e('v_add_u32 v%d, s59, v%d' % (vMLA, vMLA))
        ns = variants(0, NWO)
        dispatch('wo', ns)
        snapW = e.snap()
        for n in ns:
            e.restore(snapW)
            e.label('L_wo_%d' % n)
            assert n <= 8
            W = [('load', 'global_load_dwordx4 %s, v%d, %s offset:%d nt' % (
                vr(vW1 + 4 * j), vWO, sr(sB if j >= 4 else sA), 1152 * (4 * ((j >> 1) & 1) + (j & 1)) - 2880), 'W%d' % j) for j in range(8)]
            L = self.kvlist(n)
            self.L = L[:n] + W[:cfg.wmid] + L[n:] + W[cfg.wmid:]
            self.iss = iss0
            self.attention(n, n + cfg.nb2w, cfg.winw, n + cfg.prew, n + cfg.upw, n + cfg.aftw)
            self.pv(n, cfg.winp, len(self.L))
            e('s_barrier')
            self.issue_to(len(self.L))
            if n != ns[-1]:
                e('s_branch L_wo_w')
        e.label('L_wo_w')
        e.restore(([], ['W7']))
        if cfg.diag == 1:
            e.wait_vm0()
            self.ts(13)
        G = vVt + 16
        F = vVt + 20
        opl = [('global_load_dwordx4 %s, v%d, %s offset:%d sc1' % (vr(vVt + 4 * k), vP0, sr(sPB), 1024 * k), vVt + 4 * k, 'f24',
                [44, 46, 48, 50][k]) for k in range(4)]
        mli = ('global_load_dwordx4 %s, v%d, %s sc1' % (vr(G), vMLA, sr(sPB)), G, 'f24', 52)
        self.poll('L_ml_poll', [mli] + opl, vT, fb=True, exit_on=[0])
        self.ts(14)
        self.cnt(10)
        for it in opl:
            e('s_mov_b64 exec, %s' % sr(it[3]))
            e(it[0])
        e('s_mov_b64 exec, -1')
        e('s_bitcmp0_b32 s%d, 1' % sW)
        e('s_cbranch_scc1 L_wo_h0')
        e('v_mov_b32 v%d, v%d' % (G, G + 2))
        e('v_mov_b32 v%d, v%d' % (G + 1, G + 3))
        e.label('L_wo_h0')
        e('v_mov_b32 v%d, v%d' % (G + 2, G))
        for d in (X1, X2, HM, MI):
            e('v_max_f32_dpp v%d, v%d, v%d %s' % (G + 2, G + 2, G + 2, d))
        e('v_sub_f32 v%d, v%d, v%d' % (G, G, G + 2))
        e('v_mul_f32 v%d, s%d, v%d' % (G, sLOG2E, G))
        e('v_exp_f32 v%d, v%d' % (G, G))
        e('v_mul_f32 v%d, v%d, v%d' % (G + 1, G + 1, G))
        for d in (X1, X2, HM, MI):
            e('v_add_f32_dpp v%d, v%d, v%d %s' % (G + 1, G + 1, G + 1, d))
        e('v_rcp_f32 v%d, v%d' % (G + 1, G + 1))
        e('v_mul_f32 v%d, v%d, v%d' % (G, G, G + 1))
        for k in range(4):
            e('v_mov_b32_dpp v%d, v%d quad_perm:[%d,%d,%d,%d] %s' % (F + k, G, k, k, k, k, DPP))
        self.poll('L_wo_poll', opl, vT, first_issued=True, fb=True, init=False)
        self.ts(8)
        self.cnt(11)
        e('s_waitcnt lgkmcnt(0)')
        for k in range(4):
            hi = k & 1
            for hh in (0, 2):
                if k == 0:
                    e('v_pk_mul_f32 %s, %s, %s op_sel:[0,0] op_sel_hi:[1,0]' % (vr(vVt + hh, 2), vr(vVt + hh, 2), vr(F, 2)))
                else:
                    e('v_pk_fma_f32 %s, %s, %s, %s op_sel:[0,%d,0] op_sel_hi:[1,%d,1]' % (
                        vr(vVt + hh, 2), vr(vVt + 4 * k + hh, 2), vr(F + (k & 2), 2), vr(vVt + hh, 2), hi, hi))
        u0 = self.bank_reduce(vVt, G, G + 2)
        for c in range(2):
            e('v_cvt_pk_bf16_f32 v%d, v%d, v%d' % (u0 + c, u0 + c, u0 + c))
        A = [self.a_ops_quad(vKt + 4 * j, u0 + (j & 1), j >> 1) for j in range(8)]
        self.chain(A, [self.mfma(vD, vKt + 4 * j, vW1 + 4 * j, j == 0) for j in range(8)])
        e('s_mov_b64 exec, %s' % sr(sVALID))
        e('ds_write_b128 v%d, %s offset:%d' % (vDQ, vr(vD), L_QPART))
        e('s_mov_b64 exec, -1')
        self.ts(9)
        self.barrier()
        self.ts_store()
        e('s_endpgm')

        e.restore(snapC0)
        e.label('L_comm')
        vMASK = 23
        e('v_lshrrev_b32 v26, 2, v%d' % vL)
        e('v_and_b32 v27, 3, v%d' % vL)
        e('v_mul_u32_u24 v22, %d, v27' % QS)
        e('v_lshl_add_u32 v22, v26, 4, v22')
        e('v_mov_b32 v%d, 0xffffff00' % vMASK)
        e('s_lshl_b32 s59, s%d, 12' % sG)
        e('s_add_u32 s59, s59, 0x%x' % WS_QP)
        e('s_lshl_b32 s60, s%d, 8' % sS)
        e('s_add_u32 s60, s60, s59')
        e('v_lshl_add_u32 v26, v26, 4, s60')
        e('v_lshl_add_u32 v27, v%d, 4, s59' % vL)
        e('v_lshlrev_b32 v28, 3, v%d' % vL)
        for c in range(4):
            e('v_mov_b32 v%d, 0' % (48 + c))
        self.mask64(60, 0x33333333)
        self.mask64(62, 0x11111111)
        self.barrier()
        for k in range(4):
            e('ds_read_b128 %s, v22 offset:%d' % (vr(32 + 4 * k), L_QPART + 4 * QS * k))
        e('s_mov_b64 exec, s[60:61]')
        e('ds_read_b128 %s, v22 offset:%d' % (vr(48), L_QPART + 16 * QS))
        e('s_mov_b64 exec, -1')
        e('s_waitcnt lgkmcnt(%d)' % (0 if cfg.diag else 3))
        for hh in (0, 2):
            e('v_pk_add_f32 %s, %s, %s' % (vr(32 + hh, 2), vr(32 + hh, 2), vr(36 + hh, 2)))
        e('s_waitcnt lgkmcnt(%d)' % (0 if cfg.diag else 1))
        for hh in (0, 2):
            e('v_pk_add_f32 %s, %s, %s' % (vr(40 + hh, 2), vr(40 + hh, 2), vr(44 + hh, 2)))
        for hh in (0, 2):
            e('v_pk_add_f32 %s, %s, %s' % (vr(32 + hh, 2), vr(32 + hh, 2), vr(40 + hh, 2)))
        e('s_waitcnt lgkmcnt(0)')
        for hh in (0, 2):
            e('v_pk_add_f32 %s, %s, %s' % (vr(32 + hh, 2), vr(32 + hh, 2), vr(48 + hh, 2)))
        for d in (X1, X2):
            for c in range(4):
                e('v_add_f32_dpp v%d, v%d, v%d %s' % (32 + c, 32 + c, 32 + c, d))
        self.tag(32, vMASK)
        e('s_mov_b64 exec, s[62:63]')
        self.publish(26, 32)
        e('s_mov_b64 exec, -1')
        self.ts(3)
        qitems = [('global_load_dwordx4 %s, v27, %s offset:%d sc1' % (vr(48 + 4 * r_), sr(sPB), 1024 * r_), 48 + 4 * r_, 'f24',
                   [44, 46, 48, 50][r_]) for r_ in range(4)]
        self.poll('L_q_poll', qitems, 25, fb=True)
        self.cnt(1)
        for hh in (0, 2):
            e('v_pk_add_f32 %s, %s, %s' % (vr(48 + hh, 2), vr(48 + hh, 2), vr(52 + hh, 2)))
            e('v_pk_add_f32 %s, %s, %s' % (vr(56 + hh, 2), vr(56 + hh, 2), vr(60 + hh, 2)))
        for hh in (0, 2):
            e('v_pk_add_f32 %s, %s, %s' % (vr(48 + hh, 2), vr(48 + hh, 2), vr(56 + hh, 2)))
        e('v_cvt_pk_bf16_f32 v48, v48, v49')
        e('v_cvt_pk_bf16_f32 v49, v50, v51')
        e('ds_write_b64 v28, v[48:49] offset:%d' % L_QL)
        self.ts(4)
        self.barrier()
        self.mlp_early()
        e('s_sub_u32 s59, s%d, %d' % (sVID, NWO))
        e('s_cmp_lt_u32 s59, %d' % NML)
        e('s_cbranch_scc0 L_c_nopre')
        self.L = self.mlp_loads()[:self.nw]
        self.iss = 0
        self.issue_to(8)
        e.label('L_c_nopre')
        e.restore(([], []))
        e('v_lshrrev_b32 v24, 5, v%d' % vL)
        e('v_lshlrev_b32 v24, 9, v24')
        e('v_and_b32 v25, 15, v%d' % vL)
        e('v_lshl_add_u32 v24, v25, 5, v24')
        e('v_bfe_u32 v25, v%d, 4, 1' % vL)
        e('v_lshl_add_u32 v24, v25, 4, v24')
        e('s_lshl_b32 s59, s%d, 14' % sG)
        e('s_lshl_b32 s60, s%d, 10' % sS)
        e('s_add_u32 s59, s59, s60')
        e('s_add_u32 s59, s59, 0x%x' % WS_OP)
        e('v_add_u32 v24, s59, v24')
        e('v_lshlrev_b32 v25, 4, v%d' % vL)
        e('s_lshl4_add_u32 s59, s%d, s%d' % (sG, sS))
        e('s_lshl_b32 s59, s59, 4')
        e('s_add_u32 s59, s59, 0x%x' % WS_ML)
        e('v_mov_b32 v26, s59')
        e('v_lshlrev_b32 v27, 3, v%d' % vL)
        e('v_lshrrev_b32 v28, 5, v%d' % vL)
        e('v_lshlrev_b32 v28, 5, v28')
        e('v_and_b32 v29, 0x3c, v%d' % vL)
        e('s_movk_i32 s%d, 0x%x' % (sSPIN, cfg.spin))
        e.label('L_lp_poll')
        e('ds_read_b64 v[32:33], v27 offset:%d' % L_LP)
        e('s_waitcnt lgkmcnt(0)')
        e('v_cmp_gt_f32 vcc, 0, v33')
        e('s_sub_u32 s%d, s%d, 1' % (sSPIN, sSPIN))
        e('s_cbranch_scc1 L_lp_poll_x')
        e('s_cbranch_vccnz L_lp_poll')
        e.label('L_lp_poll_x')
        e('v_max_f32_dpp v36, v32, v32 %s' % ROR(4))
        e('v_max_f32_dpp v36, v36, v36 %s' % ROR(8))
        e('v_mov_b32 v37, v36')
        e('v_permlane16_swap_b32 v37, v36')
        e('v_max_f32 v36, v36, v37')
        e('v_sub_f32 v37, v32, v36')
        e('v_mul_f32 v37, s%d, v37' % sLOG2E)
        e('v_exp_f32 v37, v37')
        e('v_mov_b32 v32, v36')
        e('v_mul_f32 v33, v33, v37')
        e('ds_write_b32 v29, v37 offset:%d' % L_F)
        for d in (X1, X2, ROR(4), ROR(8)):
            e('v_add_f32_dpp v33, v33, v33 %s' % d)
        e('v_mov_b32 v38, v33')
        e('v_permlane16_swap_b32 v38, v33')
        e('v_add_f32 v33, v33, v38')
        e('v_permlane32_swap_b32 v32, v34')
        e('v_permlane32_swap_b32 v33, v35')
        self.tag(32, vMASK)
        e('s_mov_b64 exec, 1')
        self.publish(26, 32)
        e('s_mov_b64 exec, -1')
        e('ds_read_b128 %s, v28 offset:%d' % (vr(64), L_F))
        e('ds_read_b128 %s, v28 offset:%d' % (vr(68), L_F + 16))
        e('v_lshrrev_b32 v26, 2, v%d' % vL)
        e('s_lshl_b32 s59, s%d, 11' % sVID)
        e('s_lshl_b32 s60, s%d, 8' % sXCD)
        e('s_add_u32 s59, s59, s60')
        e('s_add_u32 s59, s59, 0x%x' % WS_HP)
        e('v_lshl_add_u32 v29, v26, 4, s59')
        self.ts(5)
        e('s_barrier')
        self.ts(6)
        for w in range(8):
            e('ds_read_b128 %s, v25 offset:%d' % (vr(32 + 4 * w), L_OPART + 1024 * w))
        for w in range(8):
            e('s_waitcnt lgkmcnt(%d)' % (0 if cfg.diag == 1 else 7 - w))
            sel = 'op_sel:[0,1,0] op_sel_hi:[1,1,1]' if w & 1 else 'op_sel:[0,0,0] op_sel_hi:[1,0,1]'
            acc = 32 + 4 * (w & 1)
            for hh in (0, 2):
                if w < 2:
                    e('v_pk_mul_f32 %s, %s, %s %s' % (vr(acc + hh, 2), vr(32 + 4 * w + hh, 2), vr(64 + (w & ~1), 2),
                                                     'op_sel:[0,1] op_sel_hi:[1,1]' if w & 1 else 'op_sel:[0,0] op_sel_hi:[1,0]'))
                else:
                    e('v_pk_fma_f32 %s, %s, %s, %s %s' % (vr(acc + hh, 2), vr(32 + 4 * w + hh, 2), vr(64 + (w & ~1), 2),
                                                         vr(acc + hh, 2), sel))
        for hh in (0, 2):
            e('v_pk_add_f32 %s, %s, %s' % (vr(32 + hh, 2), vr(32 + hh, 2), vr(36 + hh, 2)))
        self.tag(32, vMASK)
        self.publish(24, 32)
        self.ts(7)
        e('s_cmp_lt_u32 s%d, %d' % (sVID, NWO))
        e('s_cbranch_scc1 L_c_wo')
        e('s_cmp_lt_u32 s%d, %d' % (sVID, NWO + NML))
        e('s_cbranch_scc1 L_c_mlp')
        snapC = e.snap()
        if cfg.pf2:
            e('s_mul_i32 s59, s%d, %d' % (sXCD, 2 * 36864))
            e('s_add_u32 s59, s59, %d' % (128 * 36864 + 65536))
            e('v_lshl_add_u32 v24, v%d, 7, s59' % vL)
            e('global_load_dword v25, v24, %s' % sr(sW2))
        self.ts_store()
        e('s_endpgm')

        e.restore(snapC)
        e.label('L_c_wo')
        e('s_barrier')
        e('s_barrier')
        self.ts(8)
        for k in range(4):
            e('ds_read_b128 %s, v22 offset:%d' % (vr(40 + 4 * k), L_QPART + 4 * QS * k))
        e('s_waitcnt lgkmcnt(%d)' % (0 if cfg.diag else 2))
        for hh in (0, 2):
            e('v_pk_add_f32 %s, %s, %s' % (vr(40 + hh, 2), vr(40 + hh, 2), vr(44 + hh, 2)))
        e('s_waitcnt lgkmcnt(0)')
        for hh in (0, 2):
            e('v_pk_add_f32 %s, %s, %s' % (vr(48 + hh, 2), vr(48 + hh, 2), vr(52 + hh, 2)))
        for hh in (0, 2):
            e('v_pk_add_f32 %s, %s, %s' % (vr(40 + hh, 2), vr(40 + hh, 2), vr(48 + hh, 2)))
        for d in (X1, X2):
            for c in range(4):
                e('v_add_f32_dpp v%d, v%d, v%d %s' % (40 + c, 40 + c, 40 + c, d))
        self.tag(40, vMASK)
        e('s_mov_b64 exec, s[62:63]')
        e('global_store_dwordx4 v29, %s, %s sc1' % (vr(40), sr(sWS)))
        e('s_mov_b64 exec, -1')
        self.ts(9)
        self.ts_store()
        e('s_endpgm')

        e.restore(snapC)
        e.label('L_c_mlp')
        e('s_barrier')
        e.wait_vm0()

        e.label('L_mlp_w')
        e.restore(([], [it[2] for it in self.mlp_loads()[:self.nw]]))
        self.mlp_late()
        self.mlp_masks()
        self.ts(13)
        vP = vVt
        c1 = -2.0 * LOG2E * 0.7978845608028654

        def m1_read(base):
            for i in range(4):
                e('ds_read2st64_b32 %s, v%d offset0:%d offset1:%d' % (vr(vP + 2 * i, 2), vM1R, base // 256 + 2 * i, base // 256 + 2 * i + 1))
            e('ds_read_b32 v%d, v%d offset:%d' % (vP + 8, vM1R, base + 2048))

        def m1_sum(u, extra=0):
            out = ['s_waitcnt lgkmcnt(%d)' % (0 if cfg.diag else 3 + extra),
                   'v_pk_add_f32 %s, %s, %s' % (vr(vP, 2), vr(vP, 2), vr(vP + 2, 2)),
                   's_waitcnt lgkmcnt(%d)' % (0 if cfg.diag else 1 + extra),
                   'v_pk_add_f32 %s, %s, %s' % (vr(vP + 4, 2), vr(vP + 4, 2), vr(vP + 6, 2)),
                   'v_pk_add_f32 %s, %s, %s' % (vr(vP, 2), vr(vP, 2), vr(vP + 4, 2)),
                   's_waitcnt lgkmcnt(%d)' % (0 if cfg.diag else extra),
                   'v_add_f32 v%d, v%d, v%d' % (vP, vP, vP + 8),
                   'v_add_f32 v%d, v%d, v%d' % (vP, vP, vP + 1),
                   'v_add_f32_dpp v%d, v%d, v%d %s' % (u, vP, vP, ROR(4, 0xa)),
                   'v_add_f32_dpp v%d, v%d, v%d %s' % (u, vP, vP, ROR(12, 0x5))]
            return out

        if cfg.fold:
            for p_ in range(4):
                e('v_and_b32 v%d, s%d, v%d' % (vONE + p_, sONES, vM + p_))
            for t in range(4):
                e.wait_vm('A%d' % t)
                e(self.mfma(vD, vONE, vA1 + 4 * t, t == 0))
            for c in range(4):
                e('v_add_f32_dpp v%d, v%d, v%d %s' % (vD + c, vD + c, vD + c, ROR(8)))
            e('s_mov_b64 exec, %s' % sr(sM1))
            e('ds_write_b128 v%d, %s offset:%d' % (vM1W, vr(vD), L_CP))
            e('s_mov_b64 exec, -1')
            self.barrier()
            m1_read(L_CP)
            for x in m1_sum(vCS):
                e(x)
        hpl = [('global_load_dwordx4 %s, v%d, %s offset:%d sc1' % (vr(vP + 4 * u), vHPA, sr(sWS), 1024 * u),
                vP + 4 * u, 'f24', [44, 46][u]) for u in range(2)]
        for it in hpl:
            e(it[0])
        e.wait_vm('FB')
        self.ts(14)
        e('v_and_b32 v%d, 0xffff0000, v%d' % (vHX + 1, vHX))
        e('v_lshlrev_b32 v%d, 16, v%d' % (vHX, vHX))
        e('v_lshlrev_b32 v%d, 16, v%d' % (vB1, vB1))
        e('v_lshlrev_b32 v%d, 16, v%d' % (vFB, vFB))
        self.poll('L_hp_poll', hpl, vT, first_issued=True)
        for it in self.mlp_loads()[self.nw:]:
            e(it[1], it[2])
        self.ts(8)
        self.cnt(5)
        for hh in (0, 2):
            e('v_pk_add_f32 %s, %s, %s' % (vr(vP + hh, 2), vr(vP + hh, 2), vr(vP + 4 + hh, 2)))
        y0, y1 = vP, vP + 1
        self.bank_reduce(vP, vP + 4, vP)
        e(self.rnd(y0, y0))
        e(self.rnd(y1, y1))
        e('v_add_f32 v%d, v%d, v%d' % (y0, y0, vHX))
        e('v_add_f32 v%d, v%d, v%d' % (y1, y1, vHX + 1))
        vD1 = vT
        u = vP + 2

        def stat_write(a0, a1, z, z2, lst):
            out = ['v_add_f32 v%d, v%d, v%d' % (z, a0, a1),
                   'v_mul_f32 v%d, v%d, v%d' % (z2, a0, a0),
                   'v_fmac_f32 v%d, v%d, v%d' % (z2, a1, a1),
                   'v_cndmask_b32 v%d, v%d, v%d, %s' % (z, z, z2, sr(sBIT0))]
            out += ['v_add_f32_dpp v%d, v%d, v%d %s' % (z, z, z, d) for d in (X1, X2, ROR(8))]
            return out

        def stat_sum(b, z, z2):
            out = ['v_pk_add_f32 %s, %s, %s' % (vr(b, 2), vr(b, 2), vr(b + 4, 2)),
                   'v_pk_add_f32 %s, %s, %s' % (vr(b + 2, 2), vr(b + 2, 2), vr(b + 6, 2)),
                   'v_pk_add_f32 %s, %s, %s' % (vr(b, 2), vr(b, 2), vr(b + 2, 2)),
                   'v_add_f32 v%d, v%d, v%d' % (z, b, b + 1)]
            out += ['v_add_f32_dpp v%d, v%d, v%d %s' % (z, z, z, d) for d in (X2, ROR(4), ROR(8))]
            out += ['v_mov_b32_dpp v%d, v%d quad_perm:[1,1,3,3] %s' % (z2, z, DPP),
                    'v_mov_b32_dpp v%d, v%d quad_perm:[0,0,2,2] %s' % (z, z, DPP)]
            return out

        Aops = [self.a_ops_quad(vKt + 4 * jj, y1 if (jj & 1) else y0, jj >> 1) for jj in range(8)]
        Mops = [self.mfma(vD1 if (jj & 1) else vD, vKt + 4 * jj, vA1 + 4 * (jj >> 1), jj < 2) for jj in range(8)]
        if cfg.fold:
            e(self.rnd(vH, y0))
            e(self.rnd(vH + 1, y1))
            e('v_cvt_pk_bf16_f32 v%d, v%d, v%d' % (y0, y0, y0))
            e('v_cvt_pk_bf16_f32 v%d, v%d, v%d' % (y1, y1, y1))
            self.ts(9)
            z, z2 = vP + 2, vP + 3
            seq = list(Aops[0])
            for j in range(8):
                if j + 1 < 8:
                    seq += Aops[j + 1]
                seq.append(Mops[j])
            self.weave(stat_write(vH, vH + 1, z, z2, L_ST1), seq)
            e('s_mov_b64 exec, %s' % sr(sL2))
            e('ds_write_b32 v%d, v%d offset:%d' % (vSTW, z, L_ST1))
            e('s_mov_b64 exec, -1')
            for c in range(4):
                e('v_add_f32_dpp v%d, v%d, v%d %s' % (vD + c, vD1 + c, vD + c, ROR(8)))
            e('s_mov_b64 exec, %s' % sr(sM1))
            e('ds_write_b128 v%d, %s offset:%d' % (vM1W, vr(vD), L_QPART))
            e('s_mov_b64 exec, -1')
            self.barrier()
            self.ts(10)
            b = vKt
            e('ds_read_b128 %s, v%d offset:%d' % (vr(b), vSTR, L_ST1))
            e('ds_read_b128 %s, v%d offset:%d' % (vr(b + 4), vSTR, L_ST1 + 16))
            m1_read(L_QPART)
            e('s_waitcnt lgkmcnt(%d)' % (0 if cfg.diag else 5))
            z, z2, mu, va, m1, sd, r1, t, m2, r2 = range(b + 8, b + 18)
            st = stat_sum(b, z, z2) + [
                'v_mul_f32 v%d, v%d, v%d' % (mu, z, vINVM),
                'v_mul_f32 v%d, v%d, v%d' % (va, z2, vINVM),
                'v_fma_f32 v%d, -v%d, v%d, v%d' % (va, mu, mu, va),
                self.rnd(m1, mu),
                self.rnd(t, va),
                'v_add_f32 v%d, %s, v%d' % (t, f32(1e-5), t),
                self.rnd(t, t),
                'v_sqrt_f32 v%d, v%d' % (sd, t),
                'v_sub_f32 v%d, v%d, v%d' % (mu, mu, m1),
                self.rnd(sd, sd),
                'v_rcp_f32 v%d, v%d' % (r1, sd),
                'v_mul_f32 v%d, v%d, v%d' % (va, va, r1),
                'v_mul_f32 v%d, v%d, v%d' % (mu, mu, r1),
                'v_mul_f32 v%d, v%d, v%d' % (va, va, r1),
                self.rnd(m2, mu),
                self.rnd(t, va),
                'v_fma_f32 v%d, v%d, v%d, v%d' % (m2, m1, r1, m2),
                'v_add_f32 v%d, %s, v%d' % (t, f32(1e-5), t),
                'v_mul_f32 v%d, v%d, v%d' % (m2, m2, vCS),
                self.rnd(t, t),
                'v_sqrt_f32 v%d, v%d' % (t, t),
                self.rnd(t, t),
                'v_rcp_f32 v%d, v%d' % (r2, t),
            ]
            k = 4
            for x in st[:k]:
                e(x)
            self.weave(st[k:], m1_sum(u))
            e('v_fma_f32 v%d, v%d, v%d, -v%d' % (u, u, r1, m2))
            e('v_mul_f32 v%d, v%d, v%d' % (u, u, r2))
        else:
            for ln, lst in ((0, L_ST1), (1, L_ST2)):
                e(self.rnd(y0, y0))
                e(self.rnd(y1, y1))
                z, z2 = vP + 2, vP + 3
                sw = stat_write(y0, y1, z, z2, lst)
                for x in sw[:4]:
                    e(x)
                if ln == 0:
                    e('v_mov_b32 v%d, v%d' % (vH, y0))
                    e('v_mov_b32 v%d, v%d' % (vH + 1, y1))
                for x in sw[4:]:
                    e(x)
                e('s_mov_b64 exec, %s' % sr(sL2))
                e('ds_write_b32 v%d, v%d offset:%d' % (vSTW, z, lst))
                e('s_mov_b64 exec, -1')
                self.barrier()
                e('ds_read_b128 %s, v%d offset:%d' % (vr(vP + 4), vSTR, lst))
                e('ds_read_b128 %s, v%d offset:%d' % (vr(vP + 8), vSTR, lst + 16))
                e('s_waitcnt lgkmcnt(0)')
                for x in stat_sum(vP + 4, z, z2):
                    e(x)
                m, sd, r, t = vP + 4, vP + 5, vP + 6, vP + 7
                sc = self.ln_scalars('v%d' % z, 'v%d' % z2, vINVM, m, sd, r, t)
                a0 = self.ln_apply(y0, m, sd, r, vP + 8, cfg.refine)
                a1 = self.ln_apply(y1, m, sd, r, vP + 9, cfg.refine)
                for x in sc[:4]:
                    e(x)
                self.weave(sc[4:], a0[:2] + a1[:2])
                self.weave(a0[2:], a1[2:])
            e('v_cvt_pk_bf16_f32 v%d, v%d, v%d' % (y0, y0, y0))
            e('v_cvt_pk_bf16_f32 v%d, v%d, v%d' % (y1, y1, y1))
            self.ts(9)
            self.chain(Aops, Mops)
            for c in range(4):
                e('v_add_f32_dpp v%d, v%d, v%d %s' % (vD + c, vD1 + c, vD + c, ROR(8)))
            e('s_mov_b64 exec, %s' % sr(sM1))
            e('ds_write_b128 v%d, %s offset:%d' % (vM1W, vr(vD), L_QPART))
            e('s_mov_b64 exec, -1')
            self.barrier()
            self.ts(10)
            m1_read(L_QPART)
            for x in m1_sum(u):
                e(x)
        e(self.rnd(u, u))
        e('v_add_f32 v%d, v%d, v%d' % (u, u, vB1))
        e(self.rnd(u, u))
        e('v_mul_f32 v%d, v%d, v%d' % (u + 1, u, u))
        e('v_fmaak_f32 v%d, v%d, v%d, %s' % (u + 1, u + 1, vGC, f32(c1)))
        e('v_mul_f32 v%d, v%d, v%d' % (u + 1, u + 1, u))
        e('v_exp_f32 v%d, v%d' % (u + 1, u + 1))
        e('v_add_f32 v%d, 1.0, v%d' % (u + 1, u + 1))
        e('v_rcp_f32 v%d, v%d' % (u + 1, u + 1))
        e('v_mul_f32 v%d, v%d, v%d' % (u, u, u + 1))
        e('v_cvt_pk_bf16_f32 v%d, v%d, v%d' % (u, u, u))
        self.ts(11)
        e.wait_vm('B3')
        self.chain([['v_and_b32_dpp v%d, v%d, v%d quad_perm:[%d,%d,%d,%d] %s' % (vKt + 4 * jj + p, u, vM + p, jj, jj, jj, jj, DPP)
                     for p in range(4)] for jj in range(4)],
                   [self.mfma(vD, vKt + 4 * jj, vA2 + 4 * jj, jj == 0) for jj in range(4)])
        e('s_lshr_b32 s59, s%d, 4' % sID)
        for c in range(4):
            e('v_permlane32_swap_b32 v%d, v%d' % (vD + c, vP + 4 + c))
        for c in range(4):
            e('v_add_f32_dpp v%d, v%d, v%d %s' % (vD + c, vP + 4 + c, vD + c, ROR(8)))
        self.tag(vD, vMASKM)
        e('s_mov_b64 exec, 0x00ff00ff')
        e('global_store_dwordx4 v%d, %s, %s sc1' % (vFPA, vr(vD), sr(sWS)))
        e('s_mov_b64 exec, -1')
        self.ts(12)
        if cfg.b9:
            e('s_barrier')
        e('s_cmp_lg_u32 s59, s%d' % sW)
        e('s_cbranch_scc1 L_m_done')
        fl = [('global_load_dwordx4 %s, v%d, %s sc1' % (vr(vP), vFF0, sr(sWS)), vP, 'f24', 44),
              ('global_load_dwordx4 %s, v%d, %s sc1' % (vr(vP + 4), vFF1, sr(sWS)), vP + 4, 'f24', 46),
              ('global_load_dwordx4 %s, v%d, %s sc1' % (vr(vP + 8), vFF2, sr(sWS)), vP + 8, 'f24', 52, '0xffff')]
        e('s_and_b32 s59, s%d, 12' % sID)
        e('s_and_b32 s60, s%d, 3' % sID)
        e('s_lshl2_add_u32 s59, s59, s60')
        e('v_readlane_b32 s60, v%d, s59' % vH)
        e('v_readlane_b32 s61, v%d, s59' % (vH + 1))
        e('s_add_u32 s59, s59, 8')
        e('v_readlane_b32 s62, v%d, s59' % vH)
        e('v_readlane_b32 s63, v%d, s59' % (vH + 1))
        e('v_writelane_b32 v%d, s60, 0' % vH)
        e('v_writelane_b32 v%d, s62, 16' % vH)
        e('v_writelane_b32 v%d, s61, 32' % vH)
        e('v_writelane_b32 v%d, s63, 48' % vH)
        self.mask64(60, 0x00010001)
        self.ts(3)
        self.poll('L_ff_poll', fl, vT)
        self.ts(6)
        self.cnt(4)
        for hh in (0, 2):
            e('v_pk_add_f32 %s, %s, %s' % (vr(vP + hh, 2), vr(vP + hh, 2), vr(vP + 4 + hh, 2)))
        e('s_mov_b64 exec, 0xffff')
        for hh in (0, 2):
            e('v_pk_add_f32 %s, %s, %s' % (vr(vP + hh, 2), vr(vP + hh, 2), vr(vP + 8 + hh, 2)))
        e('s_mov_b64 exec, -1')
        e('v_permlane32_swap_b32 v%d, v%d' % (vP, vP + 1))
        e('v_permlane32_swap_b32 v%d, v%d' % (vP + 2, vP + 3))
        e('v_add_f32 v%d, v%d, v%d' % (vP, vP, vP + 1))
        e('v_add_f32 v%d, v%d, v%d' % (vP + 2, vP + 2, vP + 3))
        e('v_permlane16_swap_b32 v%d, v%d' % (vP, vP + 2))
        e('v_add_f32 v%d, v%d, v%d' % (vP, vP, vP + 2))
        for d in (X1, X2, HM, MI):
            e('v_add_f32_dpp v%d, v%d, v%d %s' % (vP, vP, vP, d))
        e(self.rnd(vP, vP))
        e('v_add_f32 v%d, v%d, v%d' % (vP, vP, vFB))
        e(self.rnd(vP, vP))
        e('v_add_f32 v%d, v%d, v%d' % (vP, vP, vH))
        e('v_cvt_pk_bf16_f32 v%d, v%d, v%d' % (vP, vP, vP))
        e('s_mov_b64 exec, s[60:61]')
        e('global_store_short v%d, v%d, %s' % (vOUT, vP, sr(sOUT)))
        e('s_cmp_lg_u32 s%d, 0' % sID)
        e('s_cbranch_scc1 L_m_done')
        e('s_mov_b64 exec, 1')
        e('v_mov_b32 v%d, 0' % (vP + 1))
        e('v_mov_b32 v%d, s%d' % (vP + 2, sT))
        e('global_store_dword v%d, v%d, %s sc1' % (vP + 1, vP + 2, sr(sWS)))
        e.label('L_m_done')
        e('s_mov_b64 exec, -1')
        self.ts(15)
        self.ts_store()
        e.label('L_end')
        e('s_endpgm')

        e.raw('.section .rodata,"a"')
        e.raw('.p2align 6')
        e.raw('.amdhsa_kernel %s' % K)
        e.raw('  .amdhsa_next_free_vgpr 168')
        e.raw('  .amdhsa_next_free_sgpr 102')
        e.raw('  .amdhsa_accum_offset 168')
        e.raw('  .amdhsa_group_segment_fixed_size 0')
        e.raw('  .amdhsa_kernarg_size 104')
        e.raw('  .amdhsa_user_sgpr_count 2')
        e.raw('  .amdhsa_user_sgpr_kernarg_segment_ptr 1')
        e.raw('  .amdhsa_system_sgpr_workgroup_id_x 1')
        e.raw('.end_amdhsa_kernel')
        return e.text()

    def mlp_masks(self):
        self.mask64(sBIT0, 0xf0f0f0f0)
        self.mask64(sL2, 0x00110011)
        self.mask64(sM1, 0x000f000f, 0x00f000f0)

    def mlp_early(self):
        e = self.e
        e('s_max_u32 s59, s%d, %d' % (sVID, NWO))
        e('s_sub_u32 s59, s59, %d' % NWO)
        e('s_min_u32 s59, s59, %d' % (NML - 1))
        e('s_lshr_b32 s60, s59, 1')
        e('s_lshl3_add_u32 s61, s%d, s60' % sXCD)
        e('s_add_u32 s%d, s%d, 64' % (sID, sXCD))
        e('s_cmp_lt_u32 s60, 8')
        e('s_cselect_b32 s61, s61, s%d' % sID)
        e('s_and_b32 s59, s59, 1')
        e('s_lshl1_add_u32 s%d, s61, s59' % sID)
        rho, c16, t2, t3 = vEA, vEA + 1, vEA + 2, vEA + 3
        e('v_lshrrev_b32 v%d, 3, v%d' % (rho, vL))
        e('v_and_b32 v%d, 0x70, v%d' % (c16, vKV))
        e('v_and_b32 v%d, 3, v%d' % (t2, vL))
        e('v_and_b32 v%d, 0x30, v%d' % (vW1O, vL))
        e('v_bfe_u32 v%d, v%d, 2, 1' % (t3, vL))
        e('v_lshl_add_u32 v%d, v%d, 1, v%d' % (vW1O, t3, vW1O))
        e('v_and_b32 v%d, 1, v%d' % (vW2O, rho))
        e('v_add_u32 v%d, v%d, v%d' % (vW1O, vW1O, vW2O))
        e('v_mov_b32 v%d, 9216' % vW2O)
        e('v_lshlrev_b32 v%d, 4, v%d' % (t2, t2))
        e('v_mad_u32_u24 v%d, v%d, v%d, v%d' % (vW1O, vW1O, vW2O, t2))
        e('v_mov_b32 v%d, %d' % (vW2O, 4 * 1152))
        e('v_mad_u32_u24 v%d, v%d, v%d, v%d' % (vW2O, rho, vW2O, c16))
        e('s_mul_i32 s59, s%d, %d' % (sW, 64 * 9216))
        e('s_lshl_b32 s60, s%d, 6' % sID)
        e('s_add_u32 s59, s59, s60')
        self.add64(sA, sW1, 's59')
        e('s_mul_i32 s59, s%d, %d' % (sID, 32 * 1152))
        e('s_lshl_b32 s60, s%d, 7' % sW)
        e('s_add_u32 s59, s59, s60')
        self.add64(sB, sW2, 's59')

    def mlp_late(self):
        e = self.e
        rho, c16, t2, t3 = vMA, vMA + 1, vMA + 2, vMA + 3
        e('v_lshrrev_b32 v%d, 3, v%d' % (rho, vL))
        e('v_and_b32 v%d, 0x70, v%d' % (c16, vKV))
        e('v_and_b32 v%d, 3, v%d' % (t2, vL))
        e('v_and_b32 v%d, 4, v%d' % (t3, vL))
        e('s_lshl_b32 s60, s%d, 6' % sID)
        e('v_lshl_add_u32 v%d, v%d, 2, v%d' % (vM1R, rho, t2))
        e('v_lshl_add_u32 v%d, v%d, 1, s60' % (vB1, vM1R))
        e('global_load_ushort v%d, v%d, %s' % (vB1, vB1, sr(sB1)), 'BI')
        e('v_lshlrev_b32 v%d, 2, v%d' % (vM1R, vM1R))
        e('v_lshl_add_u32 v%d, v%d, 5, v%d' % (vM1R, t3, vM1R))
        e('s_lshl_b32 s60, s%d, 7' % sW)
        e('v_and_b32 v%d, 0x30, v%d' % (vHPA, vL))
        e('v_lshl_add_u32 v%d, v%d, 1, s60' % (vHX, vHPA))
        e('v_lshl_add_u32 v%d, v%d, 3, v%d' % (vHX, t2, vHX))
        e('v_and_b32 v%d, 1, v%d' % (vOUT, rho))
        e('v_lshl_add_u32 v%d, v%d, 2, v%d' % (vHX, vOUT, vHX))
        e('global_load_dword v%d, v%d, %s' % (vHX, vHX, sr(sX)), 'HX')
        e('v_lshrrev_b32 v%d, 5, v%d' % (vOUT, vL))
        e('v_and_b32 v%d, 16, v%d' % (t3, vL))
        e('v_lshrrev_b32 v%d, 3, v%d' % (vFB, t3))
        e('v_add_u32 v%d, v%d, v%d' % (vOUT, vOUT, vFB))
        e('s_lshl_b32 s59, s%d, 3' % sID)
        e('v_lshl_add_u32 v%d, v%d, 1, s59' % (vOUT, vOUT))
        e('global_load_ushort v%d, v%d, %s' % (vFB, vOUT, sr(sB2)), 'FB')
        e('s_lshl_b32 s59, s%d, 11' % sW)
        e('s_add_u32 s59, s59, 0x%x' % WS_HP)
        e('v_lshl_add_u32 v%d, v%d, 2, s59' % (vHPA, vHPA))
        e('v_lshl_add_u32 v%d, v%d, 4, v%d' % (vHPA, t2, vHPA))
        e('v_and_b32 v%d, 12, v%d' % (vM1W, vL))
        e('v_lshl_add_u32 v%d, v%d, 6, v%d' % (vHPA, vM1W, vHPA))
        e('v_lshrrev_b32 v%d, 5, v%d' % (vM1W, vL))
        e('v_lshlrev_b32 v%d, 7, v%d' % (vM1W, vM1W))
        e('v_lshl_add_u32 v%d, v%d, 5, v%d' % (vM1W, t2, vM1W))
        e('s_lshl_b32 s61, s%d, 8' % sW)
        e('v_add3_u32 v%d, v%d, v%d, s61' % (vM1W, vM1W, t3))
        if self.cfg.fpt:
            e('s_lshl_b32 s59, s%d, 4' % sID)
            e('s_add_u32 s59, s59, 0x%x' % WS_FP)
            e('v_lshl_add_u32 v%d, v%d, 1, v%d' % (vFPA, c16, t3))
            e('v_add_u32 v%d, s61, v%d' % (vFPA, vFPA))
            e('v_mul_u32_u24 v%d, 144, v%d' % (vFPA, vFPA))
            e('v_add_u32 v%d, s59, v%d' % (vFPA, vFPA))
        else:
            e('s_mul_i32 s59, s%d, 2304' % sID)
            e('s_add_u32 s59, s59, s61')
            e('s_add_u32 s59, s59, 0x%x' % WS_FP)
            e('v_lshl_add_u32 v%d, v%d, 1, v%d' % (vFPA, c16, t3))
            e('v_add_u32 v%d, s59, v%d' % (vFPA, vFPA))
        e('v_and_b32 v%d, 1, v%d' % (vSTW, vL))
        e('v_lshlrev_b32 v%d, 8, v%d' % (vSTW, vSTW))
        e('v_bfe_u32 v%d, v%d, 1, 3' % (vSTR, vL))
        e('v_lshl_add_u32 v%d, v%d, 5, v%d' % (vSTR, vSTR, vSTW))
        e('v_and_b32 v%d, 4, v%d' % (vSTW, vL))
        e('v_lshlrev_b32 v%d, 6, v%d' % (vSTW, vSTW))
        e('v_lshrrev_b32 v%d, 4, v%d' % (rho, vL))
        e('v_lshl_add_u32 v%d, v%d, 2, v%d' % (vSTW, rho, vSTW))
        e('s_lshl_b32 s59, s%d, 4' % sW)
        e('v_add_u32 v%d, s59, v%d' % (vSTW, vSTW))
        sa, sb = (2304, 16) if self.cfg.fpt else (16, 2304)
        e('s_mul_i32 s59, s%d, %d' % (sID, sa))
        e('s_add_u32 s59, s59, 0x%x' % WS_FP)
        e('v_mov_b32 v%d, %d' % (t3, sb))
        e('v_mad_u32_u24 v%d, v%d, v%d, s59' % (vFF0, vL, t3))
        e('v_add_u32 v%d, %d, v%d' % (vFF1, 64 * sb, vFF0))
        e('v_and_b32 v%d, 15, v%d' % (vFF2, vL))
        e('s_add_u32 s59, s59, %d' % (128 * sb))
        e('v_mad_u32_u24 v%d, v%d, v%d, s59' % (vFF2, vFF2, t3))
        e('v_mov_b32 v%d, %s' % (vINVM, f32(1.0 / 576)))
        e('v_mov_b32 v%d, %s' % (vGC, f32(-2.0 * LOG2E * 0.7978845608028654 * 0.044715)))
        e('v_mov_b32 v%d, 0xffffff00' % vMASKM)

    def mlp_loads(self):
        out = []
        for t in range(4):
            it = ('load', 'global_load_dwordx4 %s, v%d, %s nt' % (vr(vA1 + 4 * t), vW1O, sr(sA)), 'A%d' % t)
            if t < 3:
                it += ('s_add_u32 s%d, s%d, 36864' % (sA, sA), 's_addc_u32 s%d, s%d, 0' % (sA + 1, sA + 1))
            out.append(it)
        for jj in range(4):
            out.append(('load', 'global_load_dwordx4 %s, v%d, %s offset:%d%s' % (
                vr(vA2 + 4 * jj), vW2O, sr(sB), 1152 * jj, '' if self.cfg.pf2 else ' nt'), 'B%d' % jj))
        return out


def make_plan(text):
    wo = list(range(NWO))
    slow = [6, 7, 16, 17]
    norm = [j for j in range(NML) if j not in slow]
    idle = [27, 28, 29, 30, 31]
    plan = []
    for half in text.split('|'):
        base = 0
        cnt = 0
        for tok in half.split(','):
            r = tok[0]
            n, _, k = tok[1:].partition('*')
            for _ in range(int(k or 1)):
                if r == 'w':
                    v = wo.pop(0)
                elif r == 'm':
                    v = NWO + (norm.pop(0) if norm else slow.pop())
                elif r == 's':
                    v = NWO + slow.pop(0)
                else:
                    v = idle.pop(0)
                plan.append((base, int(n), v))
                base += int(n)
                cnt += 1
        assert base == 128 and cnt == 16, (half, base, cnt)
    assert not wo and not slow and not norm
    return plan


def main():
    ap = argparse.ArgumentParser()
    ap.add_argument('-o', default='k.s')
    ap.add_argument('--diag', type=int, default=0)
    ap.add_argument('--spin', type=int, default=0x2000)
    ap.add_argument('--plan', default='i10*4,m9*7,w5*5|i9,m9*7,s9*4,w5*4')
    ap.add_argument('--b0', type=int, default=1)
    ap.add_argument('--nka', type=int, default=2)
    ap.add_argument('--nkb', type=int, default=3)
    ap.add_argument('--win', type=int, default=2)
    ap.add_argument('--nb2', type=int, default=2)
    ap.add_argument('--pre', type=int, default=0)
    ap.add_argument('--up', type=int, default=7)
    ap.add_argument('--aft', type=int, default=20)
    ap.add_argument('--winm', type=int, default=4)
    ap.add_argument('--ains', default='2,0')
    ap.add_argument('--wini', type=int, default=3)
    ap.add_argument('--nb2i', type=int, default=2)
    ap.add_argument('--prei', type=int, default=0)
    ap.add_argument('--upi', type=int, default=8)
    ap.add_argument('--winw', type=int, default=2)
    ap.add_argument('--nb2w', type=int, default=6)
    ap.add_argument('--prew', type=int, default=0)
    ap.add_argument('--upw', type=int, default=11)
    ap.add_argument('--aftw', type=int, default=13)
    ap.add_argument('--winp', type=int, default=8)
    ap.add_argument('--wmid', type=int, default=0)
    ap.add_argument('--nfb', type=int, default=64)
    ap.add_argument('--refine', type=int, default=0)
    ap.add_argument('--fold', type=int, default=1)
    ap.add_argument('--b9', type=int, default=1)
    ap.add_argument('--pf2', type=int, default=0)
    ap.add_argument('--fpt', type=int, default=0)
    ap.add_argument('--b2pre', type=int, default=0)
    cfg = ap.parse_args()
    cfg.ains = [int(x) for x in cfg.ains.split(',') if x != '']
    g = Gen(cfg)
    g.plan = make_plan(cfg.plan)
    g.nw = 4 + (cfg.b2pre if cfg.pf2 else 4)
    txt = g.build()
    open(cfg.o, 'w').write(txt)
    print('wrote', cfg.o, 'instructions', g.e.nins)


if __name__ == '__main__':
    main()
```
